```python
import torch

def _softmax(x, axis=-1):
    return torch.softmax(x, dim=axis)
def _gelu(x):
    return torch.nn.functional.gelu(x, approximate="tanh")
def _silu(x):
    return torch.nn.functional.silu(x)
def _sigmoid(x):
    return torch.sigmoid(x)
def _layernorm(x, axis=-1, eps=1e-5):
    m = x.mean(dim=axis, keepdim=True)
    v = x.var(dim=axis, keepdim=True, unbiased=False)
    return (x - m) / torch.sqrt(v + eps)
def _scatter_add(tgt, idx, src, axis=0):
    return tgt.clone().index_add_(axis, idx, src)
def _segment_sum(src, seg, n):
    out = torch.zeros((n,) + src.shape[1:], dtype=src.dtype)
    return out.index_add_(0, seg, src)
def _pad(x, pw):
    flat = tuple(v for pair in reversed(pw) for v in pair)
    return torch.nn.functional.pad(x, flat)

kernel_name = 'recurrent_scan__gqa_block_cached__geglu_ffn__decode'

def setup_inputs():

    _w = (lambda a: (lambda t: t.to(torch.bfloat16) if t.is_floating_point() else t)(torch.as_tensor(a)))
    def _A_setup():
        B, Sq, D = 1, 1, 448
        Hq, Hkv, Sk, Dh = 16, 8, 16384, 256
        assert Hq % Hkv == 0, (Hq, Hkv)
        return {
            "x": _w((lambda *s: torch.randn(*s, dtype=torch.bfloat16) * 0.05)(B, Sq, D)),
            "k_cache": _w((lambda *s: torch.randn(*s, dtype=torch.bfloat16) * 0.8)(B, Hkv, Sk, Dh)),
            "v_cache": _w((lambda *s: torch.randn(*s, dtype=torch.bfloat16) * 0.8)(B, Hkv, Sk, Dh)),
            "wq": _w((lambda *s: torch.randn(*s, dtype=torch.bfloat16) * 0.8)(D, Hq * Dh) * (D ** -0.5)),
            "wo": _w((lambda *s: torch.randn(*s, dtype=torch.bfloat16) * 0.8)(Hq * Dh, D) * ((Hq * Dh) ** -0.5)),
        }
    _A_in = _A_setup()

    def _B_setup():
        B, S, D, F = 1, 1, 448, 1792
        return {
            "x": _w((lambda *s: torch.randn(*s, dtype=torch.bfloat16) * 0.05)(B, S, D)),
            "w_gate": _w((lambda *s: torch.randn(*s, dtype=torch.bfloat16) * 0.2)(D, F)),
            "w_up": _w((lambda *s: torch.randn(*s, dtype=torch.bfloat16) * 0.2)(D, F)),
            "w_down": _w((lambda *s: torch.randn(*s, dtype=torch.bfloat16) * 0.2)(F, D)),
        }
    _B_in = _B_setup()

    return {
        "A_x": _A_in["x"],
        "A_k_cache": _A_in["k_cache"],
        "A_v_cache": _A_in["v_cache"],
        "A_wq": _A_in["wq"],
        "A_wo": _A_in["wo"],
        "B_x": _B_in["x"],
        "B_w_gate": _B_in["w_gate"],
        "B_w_up": _B_in["w_up"],
        "B_w_down": _B_in["w_down"],
    }

def reference(A_x, A_k_cache, A_v_cache, A_wq, A_wo, B_x, B_w_gate, B_w_up, B_w_down):
    def _A_ref(x, k_cache, v_cache, wq, wo):
        B, Sq, D = x.shape
        Hq, Dh = 16, 256
        Hkv = k_cache.shape[1]
        rep = Hq // Hkv
        q = (lambda x, *d: x.permute(*d))((x @ wq).reshape(B, Sq, Hq, Dh), 0, 2, 1, 3)
        k = (lambda x, n, axis: torch.repeat_interleave(x, n, dim=axis))(k_cache, rep, axis=1)
        v = (lambda x, n, axis: torch.repeat_interleave(x, n, dim=axis))(v_cache, rep, axis=1)
        scores = torch.einsum("bhqd,bhkd->bhqk", q, k) * (Dh ** -0.5)
        p = _softmax(scores, axis=-1)
        o = torch.einsum("bhqk,bhkd->bhqd", p, v)
        return (lambda x, *d: x.permute(*d))(o, 0, 2, 1, 3).reshape(B, Sq, Hq * Dh) @ wo

    def _B_ref(x, w_gate, w_up, w_down):
        return (_gelu(x @ w_gate) * (x @ w_up)) @ w_down

    x = A_x
    xn = _layernorm(x, axis=-1)
    s = _A_ref(xn, A_k_cache, A_v_cache, A_wq, A_wo)
    g = _silu(_B_ref(xn, B_w_gate, B_w_up, B_w_down))
    return x + s * g
```

```python
import re
TRANS = ("v_exp_f32","v_log_f32","v_rcp_f32","v_rsq_f32","v_sqrt_f32","v_sin_f32","v_cos_f32")
def _regs(tok):
    tok = tok.strip()
    neg = tok.lstrip('-')
    if neg.startswith('abs(') or neg.startswith('|'):
        neg = neg.replace('abs(','').replace(')','').replace('|','')
    tok = neg
    m = re.fullmatch(r'([vsa])(\d+)', tok)
    if m: return {(m.group(1), int(m.group(2)))}
    m = re.fullmatch(r'([vsa])\[(\d+):(\d+)\]', tok)
    if m: return {(m.group(1), i) for i in range(int(m.group(2)), int(m.group(3))+1)}
    if tok == 'vcc': return {('s',106),('s',107)}
    if tok == 'vcc_lo': return {('s',106)}
    if tok == 'vcc_hi': return {('s',107)}
    if tok == 'exec': return {('s',126),('s',127)}
    if tok == 'exec_lo': return {('s',126)}
    if tok == 'exec_hi': return {('s',127)}
    if tok == 'm0': return {('s',124)}
    return set()
def _split(s):
    out=[]; depth=0; cur=''
    for ch in s:
        if ch in '[(': depth+=1
        if ch in '])': depth-=1
        if ch==',' and depth==0: out.append(cur.strip()); cur=''
        else: cur+=ch
    if cur.strip(): out.append(cur.strip())
    return out
class Ins:
    def __init__(self, text):
        self.text=text
        t=text.strip()
        parts=t.split(None,1)
        self.op=parts[0]
        rest=parts[1] if len(parts)>1 else ''
        ops=_split(rest)
        mods=''
        if ops:
            last=ops[-1].split(None,1)
            ops[-1]=last[0]
            mods=last[1] if len(last)>1 else ''
        self.ops=ops; self.mods=mods
        op=self.op
        base=op.replace('_e32','').replace('_e64','').replace('_dpp','')
        self.base=base
        self.mfma=op.startswith('v_mfma')
        self.valu=op.startswith('v_') and not self.mfma
        self.salu=op.startswith('s_')
        self.vmem=op.startswith('buffer_') or op.startswith('global_')
        self.ds=op.startswith('ds_')
        self.trans=base in TRANS
        self.dpp=('quad_perm' in mods) or ('row_' in mods) or op.endswith('_dpp')
        self.dot=base.startswith('v_dot2')
        self.permlane=base.startswith('v_permlane')
        self.readlane=base in ('v_readlane_b32','v_readfirstlane_b32')
        self.passes = 0
        if self.mfma:
            self.passes = 8 if '32x32' in op else 4
        R=[_regs(o) for o in ops]
        self.defs=set(); self.uses=set(); self.A=set(); self.B=set(); self.C=set(); self.storedata=set(); self.lanesel=set()
        if self.mfma:
            self.defs=R[0]; self.A=R[1]; self.B=R[2]; self.C=R[3]; self.uses=R[1]|R[2]|R[3]
        elif self.valu:
            if base.startswith('v_cmp'):
                self.defs=R[0]; self.uses=set().union(*R[1:])
            elif self.permlane and 'swap' in base:
                self.defs=R[0]|R[1]; self.uses=R[0]|R[1]
            elif base in ('v_add_co_u32','v_sub_co_u32','v_addc_co_u32','v_subb_co_u32'):
                self.defs=R[0]|R[1]; self.uses=set().union(*R[2:])
            else:
                self.defs=R[0]; self.uses=set().union(*R[1:]) if len(R)>1 else set()
                if base in ('v_fmac_f32','v_mac_f32','v_dot2c_f32_bf16','v_writelane_b32') or self.dpp:
                    self.uses|=R[0]
                if base=='v_cndmask_b32' and len(ops)==3: self.uses|=_regs('vcc')
                if base=='v_readlane_b32': self.lanesel=R[2]
                if base=='v_writelane_b32': self.lanesel=R[2]
        elif self.vmem:
            if 'load' in op or ('atomic' in op and 'sc0' in mods):
                if op.startswith('global_atomic'):
                    self.defs=R[0]; self.uses=set().union(*R[1:])
                elif op.startswith('buffer_atomic'):
                    self.defs=R[0]; self.uses=set().union(*R)
                elif mods.endswith('lds') or ' lds' in (' '+mods):
                    self.uses=set().union(*R)
                else:
                    self.defs=R[0]; self.uses=set().union(*R[1:])
            else:
                self.uses=set().union(*R) if R else set()
                if op.startswith('buffer_store'): self.storedata=R[0]
                elif op.startswith('global_store'): self.storedata=R[1]
                if not ('x3' in op or 'x4' in op): self.storedata=set()
        elif self.ds:
            if op.startswith('ds_read') or op.startswith('ds_bpermute') or op.startswith('ds_swizzle') or '_rtn' in op:
                self.defs=R[0]; self.uses=set().union(*R[1:]) if len(R)>1 else set()
            else:
                self.uses=set().union(*R)
        elif self.salu:
            if op.startswith('s_cmp') or op.startswith('s_cbranch') or op in ('s_waitcnt','s_nop','s_barrier','s_endpgm','s_branch','s_sleep','s_setprio','s_setpc_b64','s_bitcmp1_b32','s_bitcmp0_b32'):
                self.uses=set().union(*R) if R else set()
            else:
                self.defs=R[0] if R else set(); self.uses=set().union(*R[1:]) if len(R)>1 else set()
                if 'saveexec' in op: self.defs=self.defs|_regs('exec')
        self.ws = 1
        if op=='s_nop': self.ws=int(ops[0],0)+1
def vonly(S): return {r for r in S if r[0] in 'va'}
def sonly(S): return {r for r in S if r[0]=='s'}
def need(P, X):
    n=0
    if P.valu:
        pv=vonly(P.defs); ps=sonly(P.defs)
        if X.mfma and pv & X.uses: n=max(n,2)
        if X.valu and X.dpp and pv & X.uses: n=max(n,2)
        if X.permlane and pv & X.uses: n=max(n,2)
        if P.trans and X.valu and not X.trans and pv & X.uses: n=max(n,1)
        if P.trans and X.valu and X.trans and pv & X.uses: n=max(n,1)
        if X.readlane and pv & X.uses: n=max(n,1)
        if ps:
            if X.valu and ps & X.uses: n=max(n,2)
            if X.valu and ps & X.lanesel: n=max(n,4)
            if X.vmem and ps & X.uses: n=max(n,5)
            if X.salu and ps & X.uses: n=max(n,1)
        if P.dot and pv & (X.uses|X.defs):
            if X.dot and X.base==P.base and not (pv & (X.uses - X.defs)) :
                pass
            else: n=max(n,3)
        if P.permlane and X.valu and pv & X.uses: n=max(n,1)
    if P.mfma:
        p=P.passes
        raw = {2:5,4:8,8:12,16:20}[p]; ovl={2:4,4:6,8:10,16:18}[p]; war={2:1,4:3,8:7,16:15}[p]
        D=P.defs
        if X.mfma:
            if D & (X.A|X.B): n=max(n,raw)
            if D & X.C:
                if not (X.C==D and X.passes==p): n=max(n,ovl)
            elif D & X.defs: n=max(n,ovl)
        elif X.valu:
            if D & (X.uses|X.defs): n=max(n,raw)
            if P.C & X.defs: n=max(n,war)
        elif X.vmem or X.ds:
            if D & (X.uses|X.defs): n=max(n,raw)
    if P.storedata:
        if P.storedata & X.defs: n=max(n, 2 if X.valu else 1)
    if P.salu and ('s',124) in P.defs and (X.vmem and 'lds' in X.mods): n=max(n,1)
    if P.salu and ((('s',126) in P.defs) or (('s',127) in P.defs)) and X.valu and (X.dpp or X.permlane or X.readlane): n=max(n,1)
    if P.salu and ((('s',126) in P.defs) or (('s',127) in P.defs)) and X.mfma: n=max(n,1)
    return n
class Asm:
    def __init__(self):
        self.lines=[]; self.hist=[]; self.nops=0
    def raw(self, s): self.lines.append(s)
    def c(self, s): self.lines.append('    ; '+s)
    def label(self, name, flush=True):
        if flush: self.flush()
        self.lines.append(name+':')
    def _emit(self, X):
        self.lines.append('    '+X.text); self.hist.append(X)
        if len(self.hist)>40: self.hist=self.hist[-40:]
    def I(self, text):
        for t in text.strip().split('\n'):
            t=t.strip()
            if not t or t.startswith(';'): continue
            X=Ins(t)
            d=0; req=0
            for P in reversed(self.hist):
                if d>=20: break
                r=need(P,X)-d
                if r>req: req=r
                d+=P.ws
            while req>0:
                k=min(req,16); self._emit(Ins(f's_nop {k-1}')); self.nops+=k; req-=k
            self._emit(X)
    def flush(self):
        d=0; req=0
        for P in reversed(self.hist):
            if d>=20: break
            w=0
            if P.mfma: w={4:8,8:12}[P.passes]
            elif P.valu:
                w=2
                if sonly(P.defs): w=5
                if P.dot: w=3 if w<3 else w
            elif P.storedata: w=2
            r=w-d
            if r>req: req=r
            d+=P.ws
        while req>0:
            k=min(req,16); self._emit(Ins(f's_nop {k-1}')); req-=k
        self.hist=[]
    def text(self): return '\n'.join(self.lines)+'\n'
```

```python
import sys, argparse
from asmlib import Asm
NAME="recurrent_scan__gqa_block_cached__geglu_ffn__decode"
HDR = """; Kernarg layout for this problem (96 bytes, ptrs only, base s[0:1]):
"""
WS_QX=0x1000; WS_ML=0x8000; WS_YP=0x10000; WS_H1=0x100000; WS_SP=0x200000; WS_ST=0x300000; WS_SIZE=0x400000
L_Q=0; L_O=2048; L_M=10240; L_X0=12288; L_X1=14336; LDS=16384
C_SCALE=0x3db8aa3b
def f2u(x):
    import struct; return struct.unpack('<I',struct.pack('<f',x))[0]

class G:
    def __init__(s, o):
        s.o=o; s.A=Asm(); s.nst=0
    def stamp(s, i):
        if s.o.stamps: s.A.I(f"s_memrealtime s[{80+2*i}:{81+2*i}]")
    def stamps_out(s):
        if not s.o.stamps: return
        A=s.A
        A.I("s_waitcnt vmcnt(0) lgkmcnt(0)")
        A.I("s_mov_b64 exec, 1")
        A.I(f"s_lshl_b32 s60, s2, 3\ns_add_u32 s60, s60, s3\ns_lshl_b32 s60, s60, 6\ns_add_u32 s60, s60, {WS_ST}")
        A.I("s_mov_b32 s72, s30\ns_mov_b32 s73, s31\ns_mov_b32 s74, %d\ns_mov_b32 s75, 0x20000"%WS_SIZE)
        A.I("v_mov_b32 v2, s60")
        for q in range(4):
            for r in range(4): A.I(f"v_mov_b32 v{4+r}, s{80+4*q+r}")
            A.I(f"buffer_store_dwordx4 v[4:7], v2, s[72:75], 0 offen offset:{16*q}")
            A.I("s_waitcnt vmcnt(0)")
        A.I("s_mov_b64 exec, -1")
    def zero_stamps(s):
        if s.o.stamps:
            for i in range(16): s.A.I(f"s_mov_b32 s{80+i}, 0")
    def srd(s, r, lo, size):
        s.A.I(f"s_mov_b32 s{r}, s{lo}\ns_mov_b32 s{r+1}, s{lo+1}\ns_mov_b32 s{r+2}, {size}\ns_mov_b32 s{r+3}, 0x20000")
    def row_allreduce(s, op, regs, steps=(8,4,2,1)):
        for st in steps:
            for r in regs: s.A.I(f"{op}_dpp v{r}, v{r}, v{r} row_ror:{st} row_mask:0xf bank_mask:0xf")
    def cross_rows(s, op, regs, tmps):
        A=s.A
        for sw in ("v_permlane16_swap_b32","v_permlane32_swap_b32"):
            for r,t in zip(regs,tmps): A.I(f"v_mov_b32 v{t}, v{r}")
            for r,t in zip(regs,tmps): A.I(f"{sw} v{r}, v{t}")
            for r,t in zip(regs,tmps): A.I(f"{op} v{r}, v{r}, v{t}")
    def wave_allreduce(s, op, regs, tmps):
        s.row_allreduce(op, regs); s.cross_rows(op, regs, tmps)
    def bf16r(s, dst, src):
        s.A.I(f"v_cvt_pk_bf16_f32 v{dst}, v{src}, 0\nv_lshlrev_b32 v{dst}, 16, v{dst}")
    def make_masks(s, m0, lane, t0, t1):
        A=s.A
        A.I(f"v_and_b32 v{t0}, 1, v{lane}\nv_lshlrev_b32 v{t0}, 4, v{t0}\nv_mov_b32 v{t1}, 0xffff\nv_lshlrev_b32 v{t0}, v{t0}, v{t1}")
        A.I(f"v_bfe_u32 v{t1}, v{lane}, 1, 2")
        for r in range(4):
            A.I(f"v_cmp_eq_u32 vcc, {r}, v{t1}\nv_cndmask_b32 v{m0+r}, 0, v{t0}, vcc")
    def tag_from_E(s):
        s.A.I("s_mul_i32 s6, s6, 0x9E3779B1\ns_add_u32 s6, s6, 0x7F4A7C15")
    def poll(s, name, loads, tags, acc, pre=None, sleep=0):
        A=s.A
        A.I(f"s_mov_b32 s62, {s.o.timeout}")
        A.label(name)
        if pre: A.I(pre)
        for l in loads: A.I(l)
        A.I("s_mov_b64 exec, -1")
        A.I("s_waitcnt vmcnt(0)")
        A.I(f"v_xor_b32 v{acc}, s6, v{tags[0]}")
        for t in tags[1:]: A.I(f"v_bitop3_b32 v{acc}, v{t}, s6, v{acc} bitop3:0xbe")
        A.I(f"v_cmp_ne_u32 vcc, 0, v{acc}")
        A.I(f"s_cbranch_vccz {name}_ok")
        if sleep: A.I(f"s_sleep {sleep}")
        A.I("s_sub_u32 s62, s62, 1\ns_cmp_lg_u32 s62, 0")
        A.I(f"s_cbranch_scc1 {name}")
        A.label(name+"_ok")
    def layernorm(s, ldsbase):
        A=s.A
        for d in range(4):
            A.I(f"v_lshlrev_b32 v{10+2*d}, 16, v{4+d}\nv_and_b32 v{11+2*d}, 0xffff0000, v{4+d}")
        A.I("v_add_f32 v18, v10, v11\nv_add_f32 v19, v12, v13\nv_add_f32 v20, v14, v15\nv_add_f32 v21, v16, v17")
        A.I("v_add_f32 v18, v18, v19\nv_add_f32 v20, v20, v21\nv_add_f32 v18, v18, v20")
        s.wave_allreduce("v_add_f32",[18],[19])
        A.I(f"v_mul_f32 v18, {hex(f2u(1/448))}, v18")
        for i in range(8): A.I(f"v_sub_f32 v{20+i}, v{10+i}, v18")
        A.I("v_mul_f32 v19, v20, v20")
        for i in range(1,8): A.I(f"v_fmac_f32 v19, v{20+i}, v{20+i}")
        A.I("v_cmp_gt_u32 vcc, 56, v1\nv_cndmask_b32 v19, 0, v19, vcc")
        s.wave_allreduce("v_add_f32",[19],[20])
        A.I(f"v_mul_f32 v19, {hex(f2u(1/448))}, v19")
        s.bf16r(18,18); s.bf16r(19,19)
        A.I("v_add_f32 v19, 0x3727c5ac, v19"); s.bf16r(19,19)
        A.I("v_sqrt_f32 v19, v19"); s.bf16r(19,19)
        A.I("v_rcp_f32 v8, v19")
        for i in range(8): A.I(f"v_sub_f32 v{20+i}, v{10+i}, v18")
        for i in range(8): A.I(f"v_cvt_pk_bf16_f32 v{20+i}, v{20+i}, 0")
        for i in range(8): A.I(f"v_lshlrev_b32 v{20+i}, 16, v{20+i}")
        for i in range(8): A.I(f"v_mul_f32 v{10+i}, v{20+i}, v8")
        for i in range(8): A.I(f"v_fma_f32 v{20+i}, -v{10+i}, v19, v{20+i}")
        for i in range(8): A.I(f"v_fmac_f32 v{10+i}, v{20+i}, v8")
        for i in range(8): A.I(f"v_cvt_pk_bf16_f32 v{20+i}, v{10+i}, 0")
        A.I(f"v_lshlrev_b32 v9, 5, v1")
        A.I(f"ds_write_b128 v9, v[20:23] offset:{ldsbase}\nds_write_b128 v9, v[24:27] offset:{ldsbase+16}")
        A.I("s_waitcnt lgkmcnt(0)")
    def matvec_publish(s, nt, avals, wregs, masks, dacc, areg, voff, srd, tagv):
        A=s.A
        for t in range(nt):
            a=areg+4*(t%2)
            for r in range(4): A.I(f"v_and_b32 v{a+r}, v{avals[t]}, v{masks+r}")
            for cb in range(4):
                c = "0" if t==0 else f"v[{dacc+4*cb}:{dacc+4*cb+3}]"
                w=wregs(t,cb)
                A.I(f"v_mfma_f32_16x16x32_bf16 v[{dacc+4*cb}:{dacc+4*cb+3}], v[{a}:{a+3}], v[{w}:{w+3}], {c}")
        A.I("s_mov_b32 s56, 0\ns_mov_b32 s57, -1")
        for cb in range(4):
            d=dacc+4*cb
            A.I(f"v_cndmask_b32 v{d}, v{d}, v{d+2}, s[56:57]")
            A.I(f"v_cndmask_b32 v{d+2}, v{d+1}, v{d+3}, s[56:57]")
            A.I(f"v_mov_b32 v{d+1}, {tagv}\nv_mov_b32 v{d+3}, {tagv}")
        for cb in range(4):
            d=dacc+4*cb
            if cb==3: A.I("s_mov_b32 exec_lo, 0x00ff00ff\ns_mov_b32 exec_hi, 0x00ff00ff")
            A.I(f"buffer_store_dwordx4 v[{d}:{d+3}], v{voff}, s[{srd}:{srd+3}], 0 offen offset:{cb*1024} sc1")
        A.I("s_mov_b64 exec, -1")
    def pub_voff(s, dst, t0, base_sreg):
        A=s.A
        A.I(f"v_and_b32 v{dst}, 15, v1\nv_lshlrev_b32 v{dst}, 6, v{dst}")
        A.I(f"v_bfe_u32 v{t0}, v1, 4, 1\nv_lshlrev_b32 v{t0}, 5, v{t0}\nv_add_u32 v{dst}, v{dst}, v{t0}")
        A.I(f"v_lshrrev_b32 v{t0}, 5, v1\nv_lshlrev_b32 v{t0}, 4, v{t0}\nv_add3_u32 v{dst}, v{dst}, v{t0}, s{base_sreg}")

    def stream(s):
        A=s.A; o=s.o
        VK,VV,NEGM,LS,CS,T=2,3,4,5,6,7
        MK=8; Q0=12; Q1=16; D=20; AP=24; O0=28; O1=32; P=36; RING=40
        NS=o.ns; DD=o.d; NSETS=32
        A.c("---- stream waves")
        A.I("v_bfe_u32 v8, v1, 2, 2\nv_lshlrev_b32 v8, 9, v8")
        A.I("v_lshrrev_b32 v9, 4, v1\nv_lshlrev_b32 v10, 6, v9")
        A.I("v_and_b32 v11, 3, v1\nv_lshlrev_b32 v11, 4, v11")
        A.I(f"v_add3_u32 v{VK}, v8, v10, v11")
        A.I("v_lshlrev_b32 v9, 9, v9\nv_and_b32 v10, 15, v1\nv_lshlrev_b32 v10, 4, v10")
        A.I(f"v_add_u32 v{VV}, v9, v10")
        A.I("s_lshl_b32 s54, s5, 18\ns_lshl_b32 s55, s3, 11\ns_add_u32 s54, s54, s55")
        A.I(f"v_add_u32 v{VK}, s54, v{VK}\nv_add_u32 v{VV}, s54, v{VV}")
        A.I(f"s_mul_i32 s44, s2, {o.rot}\ns_and_b32 s44, s44, 31\ns_lshl_b32 s44, s44, 13")
        A.I("s_lshl_b32 s55, s4, 23")
        A.I("s_waitcnt lgkmcnt(0)")
        A.I("s_add_u32 s32, s10, s55\ns_addc_u32 s33, s11, 0\ns_mov_b32 s34, 0x800000\ns_mov_b32 s35, 0x20000")
        A.I("s_add_u32 s36, s12, s55\ns_addc_u32 s37, s13, 0\ns_mov_b32 s38, 0x800000\ns_mov_b32 s39, 0x20000")
        st={'issued':0,'landed':0,'slot':{}, 'free':list(range(NS))}
        nt=" nt" if o.nt else ""
        def issue():
            x=st['issued']; se,part=divmod(x,4)
            if part==0:
                st['slot'][se]=st['free'].pop(0)
                if se>0: A.I("s_add_u32 s44, s44, 8192\ns_and_b32 s44, s44, 0x3ffff")
            r=RING+16*st['slot'][se]+4*part
            if part<2: A.I(f"buffer_load_dwordx4 v[{r}:{r+3}], v{VK}, s[32:35], s44 offen offset:{256*part}{nt}")
            else: A.I(f"buffer_load_dwordx4 v[{r}:{r+3}], v{VV}, s[36:39], s44 offen offset:{256*(part-2)}{nt}")
            st['issued']+=1
        def can_issue():
            x=st['issued']
            if x>=4*NSETS: return False
            return (x%4!=0) or bool(st['free'])
        def wait_landed(n):
            if st['landed']>=n: return
            A.I(f"s_waitcnt vmcnt({st['issued']-n})"); st['landed']=n
        def pace():
            x=st['issued']
            if x-st['landed']>=DD: wait_landed(x-DD+1)
            issue()
        for x in range(min(DD,4*o.p)): issue()
        A.I("s_load_dword s6, s[30:31], 0")
        s.make_masks(MK,1,37,38)
        A.I(f"v_mov_b32 v{CS}, {hex(C_SCALE)}\nv_mov_b32 v{NEGM}, 0\nv_mov_b32 v{LS}, 0")
        for r in range(8): A.I(f"v_mov_b32 v{O0+r}, 0")
        while st['issued']<4*o.p: pace()
        s.stamp(1)
        A.I("s_barrier")
        s.stamp(2)
        A.I(f"v_lshlrev_b32 v37, 4, v1")
        A.I(f"ds_read_b128 v[{Q0}:{Q0+3}], v37 offset:{L_Q}\nds_read_b128 v[{Q1}:{Q1+3}], v37 offset:{L_Q+1024}")
        A.I("s_waitcnt lgkmcnt(0)")
        s.tag_from_E()
        stubs=[]
        def process(se):
            sl=RING+16*st['slot'][se]
            wait_landed(4*se+2)
            A.I(f"v_mfma_f32_16x16x32_bf16 v[{D}:{D+3}], v[{sl}:{sl+3}], v[{Q0}:{Q0+3}], 0")
            A.I(f"v_mfma_f32_16x16x32_bf16 v[{D}:{D+3}], v[{sl+4}:{sl+7}], v[{Q1}:{Q1+3}], v[{D}:{D+3}]")
            A.I(f"v_mov_b32 v{T}, v{NEGM}")
            A.I(f"v_mov_b32 v37, 0")
            A.I(f"v_fmac_f32_dpp v{T}, v{D}, v{CS} quad_perm:[0,0,0,0] row_mask:0xf bank_mask:0xf")
            A.I(f"v_fmac_f32_dpp v37, v{D+1}, v{CS} quad_perm:[1,1,1,1] row_mask:0xf bank_mask:0xf")
            A.I(f"v_fmac_f32_dpp v{T}, v{D+2}, v{CS} quad_perm:[2,2,2,2] row_mask:0xf bank_mask:0xf")
            A.I(f"v_fmac_f32_dpp v37, v{D+3}, v{CS} quad_perm:[3,3,3,3] row_mask:0xf bank_mask:0xf")
            A.I(f"v_add_f32 v{T}, v{T}, v37")
            if se==0:
                A.I(f"v_mov_b32 v37, v{T}")
                s.cross_rows("v_max_f32",[37],[38])
                A.I(f"v_sub_f32 v{NEGM}, 0, v37\nv_sub_f32 v{T}, v{T}, v37")
            else:
                A.I(f"v_cmp_lt_f32 vcc, {hex(f2u(o.thr))}, v{T}")
                A.I(f"s_cbranch_vccnz L_stub{se}")
                A.raw(f"L_res{se}:")
                stubs.append(se)
            A.I(f"v_exp_f32 v{T}, v{T}")
            A.I(f"v_cvt_pk_bf16_f32 v{P}, v{T}, v{T}")
            A.I(f"v_add_f32 v{LS}, v{LS}, v{T}")
            for r in range(4): A.I(f"v_and_b32 v{AP+r}, v{P}, v{MK+r}")
            wait_landed(4*se+4)
            A.I(f"v_mfma_f32_16x16x32_bf16 v[{O0}:{O0+3}], v[{AP}:{AP+3}], v[{sl+8}:{sl+11}], v[{O0}:{O0+3}]")
            A.I(f"v_mfma_f32_16x16x32_bf16 v[{O1}:{O1+3}], v[{AP}:{AP+3}], v[{sl+12}:{sl+15}], v[{O1}:{O1+3}]")
            st['free'].append(st['slot'][se])
        sp=0
        while sp<NSETS:
            backlog = st['landed']//4 - sp
            if backlog>0:
                process(sp); sp+=1
                if can_issue(): pace()
            elif can_issue(): pace()
            else:
                process(sp); sp+=1
        s.stamp(3)
        s.cross_rows("v_add_f32",[LS],[37])
        A.I(f"v_sub_f32 v38, 0, v{NEGM}")
        A.I("v_lshrrev_b32 v39, 3, v1\nv_lshlrev_b32 v39, 4, v39\ns_lshl_b32 s54, s3, 2\nv_add_u32 v39, s54, v39")
        A.I("s_mov_b32 exec_lo, 0x101\ns_mov_b32 exec_hi, 0")
        A.I(f"ds_write_b32 v39, v38 offset:{L_M}\nds_write_b32 v39, v{LS} offset:{L_M+32}")
        A.I("s_mov_b64 exec, -1")
        A.I("v_lshrrev_b32 v39, 5, v1\nv_lshlrev_b32 v39, 10, v39\nv_and_b32 v37, 15, v1\nv_lshlrev_b32 v37, 5, v37\nv_add_u32 v39, v39, v37")
        A.I("v_bfe_u32 v37, v1, 4, 1\nv_lshlrev_b32 v37, 4, v37\ns_lshl_b32 s54, s3, 11\nv_add3_u32 v39, v39, v37, s54")
        A.I(f"ds_write_b128 v39, v[{O0}:{O0+3}] offset:{L_O}\nds_write_b128 v39, v[{O1}:{O1+3}] offset:{L_O+512}")
        A.I("s_waitcnt lgkmcnt(0)")
        A.I("s_barrier")
        s.stamp(4)
        A.I("s_lshr_b32 s54, s3, 1")
        A.I("s_and_b32 s55, s3, 1\ns_lshl_b32 s55, s55, 6\nv_add_u32 v2, s55, v1")
        A.I("s_lshl_b32 s55, s54, 10\nv_lshlrev_b32 v3, 3, v2\nv_add_u32 v3, s55, v3")
        A.I("s_lshl_b32 s55, s54, 4\nv_mov_b32 v4, s55")
        A.I(f"ds_read_b128 v[8:11], v4 offset:{L_M}\nds_read_b128 v[12:15], v4 offset:{L_M+32}")
        for w in range(4): A.I(f"ds_read_b64 v[{16+2*w}:{17+2*w}], v3 offset:{L_O+2048*w}")
        s.srd(40,30,WS_SIZE)
        A.I(f"s_lshl_b32 s55, s4, 5\ns_lshl_b32 s56, s54, 4\ns_add_u32 s55, s55, s56\ns_lshl_b32 s55, s55, 12\ns_lshl_b32 s56, s5, 7\ns_add_u32 s55, s55, s56\ns_add_u32 s55, s55, {WS_H1}")
        A.I("v_lshrrev_b32 v5, 3, v2\nv_lshlrev_b32 v5, 12, v5\nv_and_b32 v6, 7, v2\nv_lshlrev_b32 v6, 4, v6\nv_add3_u32 v5, v5, v6, s55")
        A.I(f"s_lshl_b32 s56, s2, 1\ns_add_u32 s56, s56, s54\ns_lshl_b32 s56, s56, 4\ns_add_u32 s56, s56, {WS_ML}\nv_mov_b32 v6, s56")
        A.I("s_waitcnt lgkmcnt(0)")
        A.I("v_max3_f32 v24, v8, v9, v10\nv_max_f32 v24, v24, v11")
        for w in range(4): A.I(f"v_sub_f32 v{8+w}, v{8+w}, v24")
        for w in range(4): A.I(f"v_exp_f32 v{8+w}, v{8+w}")
        A.I("v_mul_f32 v26, v8, v12\nv_mul_f32 v28, v8, v16\nv_mul_f32 v30, v8, v17")
        for w in range(1,4):
            A.I(f"v_fmac_f32 v26, v{8+w}, v{12+w}\nv_fmac_f32 v28, v{8+w}, v{16+2*w}\nv_fmac_f32 v30, v{8+w}, v{17+2*w}")
        A.I("v_mov_b32 v25, s6\nv_mov_b32 v27, s6\nv_mov_b32 v29, s6\nv_mov_b32 v31, s6")
        A.I("buffer_store_dwordx4 v[28:31], v5, s[40:43], 0 offen sc1")
        A.I("s_bitcmp1_b32 s3, 0\ns_cbranch_scc1 L_st_done")
        A.I("s_mov_b64 exec, 1")
        A.I("buffer_store_dwordx4 v[24:27], v6, s[40:43], 0 offen sc1")
        A.I("s_mov_b64 exec, -1")
        A.label("L_st_done")
        s.stamp(5)
        s.stamps_out()
        A.I("s_endpgm")
        for se in stubs:
            A.label(f"L_stub{se}", flush=False)
            A.I(f"s_call_b64 s[52:53], L_rare\ns_branch L_res{se}")
        A.hist=[]
        A.label("L_rare", flush=False)
        A.I("s_nop 7")
        A.I(f"v_mov_b32 v37, v{T}")
        s.cross_rows("v_max_f32",[37],[38])
        A.I(f"v_max_f32 v37, 0, v37")
        A.I(f"v_sub_f32 v{NEGM}, v{NEGM}, v37\nv_sub_f32 v{T}, v{T}, v37")
        A.I("v_sub_f32 v38, 0, v37\nv_exp_f32 v38, v38")
        A.I(f"v_mul_f32 v{LS}, v{LS}, v38")
        A.I("v_readlane_b32 s54, v38, 0\nv_readlane_b32 s55, v38, 8")
        A.I("v_mov_b32 v39, s54\nv_mov_b32 v37, s55\ns_mov_b32 s56, 0\ns_mov_b32 s57, -1")
        A.I("v_cndmask_b32 v39, v39, v37, s[56:57]")
        for r in range(8): A.I(f"v_mul_f32 v{O0+r}, v{O0+r}, v39")
        A.flush()
        A.I("s_setpc_b64 s[52:53]")

    def h0(s):
        A=s.A; o=s.o
        wf=" nt" if o.wnt else ""
        A.label("L_h0")
        s.srd(32,8,896); s.srd(36,14,448*8192); s.srd(40,30,WS_SIZE)
        A.I("v_lshlrev_b32 v2, 4, v1\nbuffer_load_dwordx4 v[4:7], v2, s[32:35], 0 offen")
        A.I("s_and_b32 s54, s5, 7\ns_lshl_b32 s54, s54, 2\ns_lshr_b32 s55, s5, 3\ns_add_u32 s54, s54, s55")
        A.I("s_lshl_b32 s55, s4, 10\ns_lshl_b32 s56, s54, 5\ns_add_u32 s55, s55, s56")
        A.I("v_lshrrev_b32 v3, 1, v1\nv_lshlrev_b32 v3, 13, v3\nv_and_b32 v8, 1, v1\nv_lshlrev_b32 v8, 4, v8\nv_add3_u32 v3, v3, v8, s55")
        for k in range(14):
            A.I(f"s_mov_b32 s57, {k*262144}\nbuffer_load_dwordx4 v[{64+4*k}:{67+4*k}], v3, s[36:39], s57 offen{wf}")
        A.I("s_waitcnt vmcnt(14)")
        s.layernorm(L_X0)
        A.I("v_lshrrev_b32 v9, 1, v1\nv_lshlrev_b32 v9, 2, v9")
        for k in range(14): A.I(f"ds_read_b32 v{32+k}, v9 offset:{L_X0+128*k}")
        for i in range(8): A.I(f"v_mov_b32 v{10+i}, 0")
        A.I("s_waitcnt lgkmcnt(0)")
        s.tag_from_E()
        for k in range(14): A.I(f"v_lshlrev_b32 v{46+k}, 16, v{32+k}")
        for k in range(14):
            A.I(f"s_waitcnt vmcnt({13-k})")
            for d in range(4):
                A.I(f"v_dot2c_f32_bf16 v{10+2*d}, v{64+4*k+d}, v{32+k}\nv_dot2c_f32_bf16 v{11+2*d}, v{64+4*k+d}, v{46+k}")
        s.stamp(1)
        for e in range(4): A.I(f"v_permlane32_swap_b32 v{10+e}, v{14+e}")
        for e in range(4): A.I(f"v_add_f32 v{10+e}, v{10+e}, v{14+e}")
        for e in range(2): A.I(f"v_permlane16_swap_b32 v{10+e}, v{12+e}")
        for e in range(2): A.I(f"v_add_f32 v{10+e}, v{10+e}, v{12+e}")
        s.row_allreduce("v_add_f32",[10,11],(8,4,2))
        A.I("v_cvt_pk_bf16_f32 v20, v10, v11\nv_mov_b32 v21, s6")
        A.I(f"s_lshl_b32 s55, s4, 11\ns_lshl_b32 s56, s54, 6\ns_add_u32 s55, s55, s56\ns_add_u32 s55, s55, {WS_QX}")
        A.I("v_and_b32 v8, 1, v1\nv_lshlrev_b32 v8, 5, v8\nv_lshrrev_b32 v9, 4, v1\nv_lshlrev_b32 v9, 3, v9\nv_add3_u32 v8, v8, v9, s55")
        A.I("s_mov_b32 exec_lo, 0x00030003\ns_mov_b32 exec_hi, 0x00030003")
        A.I("buffer_store_dwordx2 v[20:21], v8, s[40:43], 0 offen sc1")
        A.I("s_mov_b64 exec, -1")
        s.stamp(2)
        A.I(f"s_lshl_b32 s55, s4, 11\ns_add_u32 s55, s55, {WS_QX}")
        A.I("v_bfe_u32 v8, v1, 3, 1\nv_lshlrev_b32 v8, 10, v8\nv_lshrrev_b32 v9, 4, v1\nv_lshlrev_b32 v9, 7, v9\nv_add_u32 v8, v8, v9\nv_and_b32 v9, 3, v1\nv_lshlrev_b32 v9, 5, v9\nv_add3_u32 v8, v8, v9, s55")
        loads=[f"buffer_load_dwordx4 v[{64+4*i}:{67+4*i}], v8, s[40:43], 0 offen offset:{off} sc1" for i,off in enumerate((0,16,512,528))]
        s.poll("L_pq", loads, [65,67,69,71,73,75,77,79], 9, sleep=1)
        s.stamp(3)
        for i,(d,src) in enumerate(((20,64),(21,66),(22,68),(23,70),(24,72),(25,74),(26,76),(27,78))): A.I(f"v_mov_b32 v{d}, v{src}")
        A.I("v_lshlrev_b32 v9, 4, v1")
        A.I(f"ds_write_b128 v9, v[20:23] offset:{L_Q}\nds_write_b128 v9, v[24:27] offset:{L_Q+1024}")
        A.I("s_waitcnt lgkmcnt(0)")
        A.I("s_barrier")
        s.stamps_out()
        A.I("s_endpgm")

    def h1(s):
        A=s.A; o=s.o
        wf=" nt" if o.wnt else ""
        A.label("L_h1")
        A.I("s_cmp_ge_u32 s2, 224\ns_cbranch_scc1 L_end")
        s.srd(32,8,896); s.srd(36,20,448*3584); s.srd(44,22,448*3584); s.srd(48,24,1792*896); s.srd(40,30,WS_SIZE)
        A.I("v_lshlrev_b32 v2, 4, v1\nbuffer_load_dwordx4 v[4:7], v2, s[32:35], 0 offen")
        A.I("s_and_b32 s54, s2, 7\ns_mul_i32 s54, s54, 28\ns_lshr_b32 s55, s2, 3\ns_add_u32 s54, s54, s55")
        A.I("s_lshl_b32 s55, s54, 4\nv_mul_u32_u24 v3, 3584, v1\nv_add_u32 v3, s55, v3")
        for k in range(7):
            A.I(f"s_mov_b32 s57, {k*229376}")
            A.I(f"buffer_load_dwordx4 v[{64+4*k}:{67+4*k}], v3, s[36:39], s57 offen{wf}")
            A.I(f"buffer_load_dwordx4 v[{92+4*k}:{95+4*k}], v3, s[44:47], s57 offen{wf}")
        A.I("v_bfe_u32 v8, v1, 4, 1\nv_lshlrev_b32 v8, 2, v8\nv_lshrrev_b32 v9, 5, v1\nv_lshlrev_b32 v9, 1, v9\nv_add_u32 v8, v8, v9")
        A.I("s_lshl_b32 s55, s54, 3\nv_add_u32 v8, s55, v8\nv_mul_u32_u24 v8, 896, v8\nv_and_b32 v9, 15, v1\nv_lshlrev_b32 v9, 4, v9\nv_add_u32 v8, v8, v9")
        for t in range(2):
            for cb in range(4):
                r=120+16*t+4*cb
                A.I(f"buffer_load_dwordx4 v[{r}:{r+3}], v8, s[48:51], 0 offen offset:{t*896+cb*256}{wf}")
        A.I("s_barrier")
        A.I("s_waitcnt vmcnt(22)")
        s.layernorm(L_X1)
        A.I("v_lshlrev_b32 v9, 2, v1")
        for k in range(7): A.I(f"ds_read_b32 v{32+k}, v9 offset:{L_X1+256*k}")
        for i in range(16): A.I(f"v_mov_b32 v{10+i}, 0")
        A.I("s_waitcnt lgkmcnt(0)")
        s.tag_from_E()
        for k in range(7): A.I(f"v_lshlrev_b32 v{46+k}, 16, v{32+k}")
        A.I("s_waitcnt vmcnt(8)")
        for k in range(7):
            for d in range(4):
                A.I(f"v_dot2c_f32_bf16 v{10+2*d}, v{64+4*k+d}, v{32+k}\nv_dot2c_f32_bf16 v{11+2*d}, v{64+4*k+d}, v{46+k}")
                A.I(f"v_dot2c_f32_bf16 v{18+2*d}, v{92+4*k+d}, v{32+k}\nv_dot2c_f32_bf16 v{19+2*d}, v{92+4*k+d}, v{46+k}")
        for e in range(8): A.I(f"v_permlane32_swap_b32 v{10+e}, v{18+e}")
        for e in range(8): A.I(f"v_add_f32 v{10+e}, v{10+e}, v{18+e}")
        for e in range(4): A.I(f"v_permlane16_swap_b32 v{10+e}, v{14+e}")
        for e in range(4): A.I(f"v_add_f32 v{10+e}, v{10+e}, v{14+e}")
        s.row_allreduce("v_add_f32",[10,11,12,13])
        for e in range(4): A.I(f"v_mov_b32 v{14+e}, v{10+e}")
        for e in range(4): A.I(f"v_permlane32_swap_b32 v{10+e}, v{14+e}")
        for e in range(8): s.bf16r(10+e,10+e)
        k1=-2*0.7978845608028654*1.4426950408889634
        for e in range(4): A.I(f"v_mul_f32 v{18+e}, v{10+e}, v{10+e}")
        A.I(f"v_mov_b32 v26, {hex(f2u(0.044715))}\nv_mov_b32 v27, {hex(f2u(k1))}")
        for e in range(4): A.I(f"v_fma_f32 v{18+e}, v{18+e}, v26, 1.0")
        for e in range(4): A.I(f"v_mul_f32 v{18+e}, v{18+e}, v{10+e}")
        for e in range(4): A.I(f"v_mul_f32 v{18+e}, v27, v{18+e}")
        for e in range(4): A.I(f"v_exp_f32 v{18+e}, v{18+e}")
        for e in range(4): A.I(f"v_add_f32 v{18+e}, 1.0, v{18+e}")
        for e in range(4): A.I(f"v_rcp_f32 v{18+e}, v{18+e}")
        for e in range(4): A.I(f"v_mul_f32 v{18+e}, v{18+e}, v{10+e}")
        for e in range(4): s.bf16r(18+e,18+e)
        for e in range(4): A.I(f"v_mul_f32 v{18+e}, v{18+e}, v{14+e}")
        A.I("s_mov_b32 s56, 0\ns_mov_b32 s57, -1")
        for t in range(2): A.I(f"v_cndmask_b32 v{22+t}, v{18+t}, v{20+t}, s[56:57]")
        for t in range(2): A.I(f"v_cvt_pk_bf16_f32 v{22+t}, v{22+t}, v{22+t}")
        s.make_masks(28,1,8,9)
        A.I(f"s_mul_i32 s55, s2, 3584\ns_add_u32 s55, s55, {WS_YP}")
        s.pub_voff(2,8,55)
        A.I("s_waitcnt vmcnt(0)")
        s.matvec_publish(2,[22,23],lambda t,cb:120+16*t+4*cb,28,40,32,2,40,"s6")
        s.stamp(1)
        s.stamps_out()
        A.I("s_endpgm")

    def h2(s):
        A=s.A; o=s.o
        wf=" nt" if o.wnt else ""
        A.label("L_h2")
        s.srd(36,16,4096*896); s.srd(40,30,WS_SIZE)
        A.I("s_lshl_b32 s54, s2, 4")
        A.I("v_lshrrev_b32 v8, 4, v1\nv_lshlrev_b32 v8, 2, v8\nv_add_u32 v8, s54, v8\nv_mul_u32_u24 v8, 896, v8\nv_and_b32 v9, 15, v1\nv_lshlrev_b32 v9, 4, v9\nv_add_u32 v8, v8, v9")
        for t in range(4):
            for cb in range(4):
                r=64+16*t+4*cb
                A.I(f"buffer_load_dwordx4 v[{r}:{r+3}], v8, s[36:39], 0 offen offset:{t*896+cb*256}{wf}")
        s.make_masks(28,1,8,9)
        A.I(f"s_lshl_b32 s54, s2, 12\ns_add_u32 s54, s54, {WS_H1}")
        A.I("v_and_b32 v8, 15, v1\nv_lshlrev_b32 v3, 7, v8\nv_lshrrev_b32 v9, 4, v1\nv_lshlrev_b32 v9, 5, v9\nv_add3_u32 v3, v3, v9, s54")
        A.I(f"s_lshl_b32 s54, s4, 10\ns_lshr_b32 s55, s5, 4\ns_lshl_b32 s55, s55, 4\ns_add_u32 s54, s54, s55\ns_add_u32 s54, s54, {WS_ML}")
        A.I("v_lshlrev_b32 v4, 5, v8\nv_add_u32 v4, s54, v4")
        A.I(f"s_mul_i32 s55, s2, 3584\ns_add_u32 s55, s55, {WS_SP}")
        s.pub_voff(2,8,55)
        A.I("s_barrier")
        A.I("s_waitcnt lgkmcnt(0)")
        s.tag_from_E()
        A.I("s_barrier")
        s.stamp(1)
        loads=[f"buffer_load_dwordx4 v[{128+4*i}:{131+4*i}], v3, s[40:43], 0 offen offset:{off} sc1" for i,off in enumerate((0,16,2048,2064))]
        loads+=[f"buffer_load_dwordx4 v[{144+4*i}:{147+4*i}], v4, s[40:43], 0 offen offset:{off} sc1" for i,off in enumerate((0,512))]
        s.poll("L_p1", loads, [129,131,133,135,137,139,141,143,145,147,149,151], 9)
        s.stamp(2)
        A.I("v_max_f32 v10, v144, v148")
        s.row_allreduce("v_max_f32",[10])
        A.I("v_sub_f32 v11, v144, v10\nv_sub_f32 v12, v148, v10\nv_exp_f32 v11, v11\nv_exp_f32 v12, v12")
        A.I("v_mul_f32 v13, v11, v146\nv_fmac_f32 v13, v12, v150")
        for t in range(4): A.I(f"v_mul_f32 v{14+t}, v11, v{128+2*t}")
        for t in range(4): A.I(f"v_fmac_f32 v{14+t}, v12, v{136+2*t}")
        s.row_allreduce("v_add_f32",[13,14,15,16,17])
        A.I("v_rcp_f32 v13, v13")
        for t in range(4): A.I(f"v_mul_f32 v{14+t}, v{14+t}, v13")
        for t in range(4): A.I(f"v_cvt_pk_bf16_f32 v{14+t}, v{14+t}, v{14+t}")
        s.matvec_publish(4,[14,15,16,17],lambda t,cb:64+16*t+4*cb,28,40,32,2,40,"s6")
        s.stamp(3)
        s.stamps_out()
        A.I("s_endpgm")

    def h3(s):
        A=s.A; o=s.o
        A.label("L_h3")
        A.I("s_cmp_ge_u32 s2, 112\ns_cbranch_scc1 L_end")
        s.srd(32,8,896); s.srd(36,26,896); s.srd(40,30,WS_SIZE)
        A.I("s_lshl_b32 s54, s2, 3\nv_mov_b32 v2, s54\nbuffer_load_dwordx2 v[4:5], v2, s[32:35], 0 offen")
        A.I("s_lshl_b32 s54, s2, 5\nv_mul_u32_u24 v3, 3584, v1\nv_add_u32 v3, s54, v3")
        for k in range(4): A.I(f"s_mov_b32 s{64+k}, {WS_YP+k*229376}\ns_mov_b32 s{68+k}, {WS_SP+k*229376}")
        A.I("s_barrier")
        A.I("s_waitcnt lgkmcnt(0)")
        s.tag_from_E()
        for r in (88,92):
            A.I(f"v_mov_b32 v{r}, 0\nv_mov_b32 v{r+1}, s6\nv_mov_b32 v{r+2}, 0\nv_mov_b32 v{r+3}, s6")
        def ld(k,half,sreg):
            r=64+8*k+4*half
            return f"buffer_load_dwordx4 v[{r}:{r+3}], v3, s[40:43], s{sreg} offen offset:{16*half} sc1"
        loads=[ld(k,h,64+k) for k in range(3) for h in range(2)]+["s_mov_b32 exec_hi, 0"]+[ld(3,h,67) for h in range(2)]
        tags=[65+2*i for i in range(16)]
        s.poll("L_py", loads, tags, 9, sleep=8)
        def sums():
            for r in range(4):
                off=(r>>1)*4+(r&1)*2
                A.I(f"v_add_f32 v{10+r}, v{64+off}, v{72+off}\nv_add_f32 v{14+r}, v{80+off}, v{88+off}")
            for r in range(4): A.I(f"v_add_f32 v{10+r}, v{10+r}, v{14+r}")
            s.wave_allreduce("v_add_f32",[10,11,12,13],[14,15,16,17])
        sums()
        for r in range(4): s.bf16r(20+r,10+r)
        for r in range(4): A.I(f"v_mul_f32 v{24+r}, {hex(f2u(-1.4426950408889634))}, v{20+r}")
        for r in range(4): A.I(f"v_exp_f32 v{24+r}, v{24+r}")
        for r in range(4): A.I(f"v_add_f32 v{24+r}, 1.0, v{24+r}")
        for r in range(4): A.I(f"v_rcp_f32 v{24+r}, v{24+r}")
        for r in range(4): A.I(f"v_mul_f32 v{20+r}, v{20+r}, v{24+r}")
        for r in range(4): s.bf16r(20+r,20+r)
        A.I("v_lshlrev_b32 v24, 16, v4\nv_and_b32 v25, 0xffff0000, v4\nv_lshlrev_b32 v26, 16, v5\nv_and_b32 v27, 0xffff0000, v5")
        s.stamp(1)
        A.I("s_barrier")
        s.stamp(2)
        loads=[ld(k,h,68+k) for k in range(4) for h in range(2)]
        s.poll("L_ps", loads, tags, 9)
        s.stamp(3)
        sums()
        for r in range(4): s.bf16r(10+r,10+r)
        for r in range(4): A.I(f"v_mul_f32 v{10+r}, v{10+r}, v{20+r}")
        for r in range(4): s.bf16r(10+r,10+r)
        for r in range(4): A.I(f"v_add_f32 v{10+r}, v{10+r}, v{24+r}")
        A.I("v_cvt_pk_bf16_f32 v14, v10, v11\nv_cvt_pk_bf16_f32 v15, v12, v13")
        A.I("s_mov_b64 exec, 1")
        A.I("buffer_store_dwordx2 v[14:15], v2, s[36:39], 0 offen")
        A.I("s_cmp_lg_u32 s2, 0\ns_cbranch_scc1 L_h3_done")
        A.I("v_mov_b32 v16, 0\nv_mov_b32 v17, s6\nbuffer_store_dword v17, v16, s[40:43], 0 offen")
        A.label("L_h3_done")
        A.I("s_mov_b64 exec, -1")
        s.stamp(4)
        s.stamps_out()
        A.I("s_endpgm")

    def build(s):
        A=s.A; o=s.o
        A.raw(HDR.rstrip())
        A.raw(f"; @launch grid=(256,1,1) block=(512,1,1) lds={LDS}")
        A.raw('.amdgcn_target "amdgcn-amd-amdhsa--gfx950"')
        A.raw(".text"); A.raw(f".globl {NAME}_kernel"); A.raw(".p2align 8"); A.raw(f".type {NAME}_kernel,@function"); A.raw(f"{NAME}_kernel:")
        A.I("s_cmp_ge_u32 s2, 256\ns_cbranch_scc1 L_end")
        s.zero_stamps()
        s.stamp(0)
        A.I("s_load_dwordx8 s[8:15], s[0:1], 0\ns_load_dwordx8 s[16:23], s[0:1], 32\ns_load_dwordx8 s[24:31], s[0:1], 64")
        A.I("v_lshrrev_b32 v2, 6, v0\nv_and_b32 v1, 63, v0\nv_readfirstlane_b32 s3, v2")
        A.I("s_lshr_b32 s4, s2, 5\ns_and_b32 s5, s2, 31")
        A.I("s_cmp_ge_u32 s3, 4\ns_cbranch_scc1 L_helpers")
        s.stream()
        A.hist=[]
        A.label("L_helpers", flush=False)
        A.I("s_waitcnt lgkmcnt(0)")
        A.I("s_load_dword s6, s[30:31], 0")
        A.I("s_cmp_eq_u32 s3, 5\ns_cbranch_scc1 L_h1\ns_cmp_eq_u32 s3, 6\ns_cbranch_scc1 L_h2\ns_cmp_eq_u32 s3, 7\ns_cbranch_scc1 L_h3")
        s.h0(); A.hist=[]
        s.h1(); A.hist=[]
        s.h2(); A.hist=[]
        s.h3(); A.hist=[]
        A.label("L_end", flush=False)
        A.I("s_endpgm")
        A.raw('.section .rodata,"a"'); A.raw(".p2align 6"); A.raw(f".amdhsa_kernel {NAME}_kernel")
        A.raw("  .amdhsa_next_free_vgpr 256\n  .amdhsa_next_free_sgpr 102\n  .amdhsa_accum_offset 256\n  .amdhsa_group_segment_fixed_size 0\n  .amdhsa_kernarg_size 96\n  .amdhsa_user_sgpr_count 2\n  .amdhsa_user_sgpr_kernarg_segment_ptr 1\n  .amdhsa_system_sgpr_workgroup_id_x 1\n  .amdhsa_float_denorm_mode_32 3\n.end_amdhsa_kernel")
        return A.text()

if __name__=="__main__":
    ap=argparse.ArgumentParser()
    ap.add_argument("-o",dest="out",default="k.s")
    ap.add_argument("--p",type=int,default=11)
    ap.add_argument("--ns",type=int,default=13)
    ap.add_argument("--d",type=int,default=8)
    ap.add_argument("--rot",type=int,default=0)
    ap.add_argument("--nt",type=int,default=1)
    ap.add_argument("--wnt",type=int,default=0)
    ap.add_argument("--thr",type=float,default=8.0)
    ap.add_argument("--timeout",type=int,default=200000)
    ap.add_argument("--stamps",type=int,default=0)
    o=ap.parse_args()
    open(o.out,"w").write(G(o).build())
```

```python
import sys, argparse
from asmlib import Asm
NAME="recurrent_scan__gqa_block_cached__geglu_ffn__decode"
HDR = """; Kernarg layout for this problem (96 bytes, ptrs only, base s[0:1]):
"""
WS_ML=0x8000; WS_QX=0x20000; WS_GX=0x40000; WS_YP=0x80000; WS_H1=0x180000; WS_SP=0x280000; WS_ST=0x380000; WS_SIZE=0x400000
YSTR=7168; SSTR=8192
L_Q=0; L_O=2048; L_M=10240; L_X=12288; LDS=16384
C_SCALE=0x3db8aa3b
def f2u(x):
    import struct; return struct.unpack('<I',struct.pack('<f',x))[0]

class G:
    def __init__(s, o):
        s.o=o; s.A=Asm(); s.nst=0
    def stamp(s, i):
        if s.o.stamps: s.A.I(f"s_memrealtime s[{80+2*i}:{81+2*i}]")
    def stamps_out(s):
        if not s.o.stamps: return
        A=s.A
        A.I("s_waitcnt vmcnt(0) lgkmcnt(0)")
        A.I("s_mov_b64 exec, 1")
        A.I(f"s_lshl_b32 s60, s2, 3\ns_add_u32 s60, s60, s3\ns_lshl_b32 s60, s60, 6\ns_add_u32 s60, s60, {WS_ST}")
        A.I("s_mov_b32 s72, s30\ns_mov_b32 s73, s31\ns_mov_b32 s74, %d\ns_mov_b32 s75, 0x20000"%WS_SIZE)
        A.I("v_mov_b32 v2, s60")
        for q in range(4):
            for r in range(4): A.I(f"v_mov_b32 v{4+r}, s{80+4*q+r}")
            A.I(f"buffer_store_dwordx4 v[4:7], v2, s[72:75], 0 offen offset:{16*q}")
            A.I("s_waitcnt vmcnt(0)")
        A.I("s_mov_b64 exec, -1")
    def zero_stamps(s):
        if s.o.stamps:
            for i in range(16): s.A.I(f"s_mov_b32 s{80+i}, 0")
            s.A.I("s_nop 0")
    def srd(s, r, lo, size):
        s.A.I(f"s_mov_b32 s{r}, s{lo}\ns_mov_b32 s{r+1}, s{lo+1}\ns_mov_b32 s{r+2}, {size}\ns_mov_b32 s{r+3}, 0x20000")
    def row_allreduce(s, op, regs, steps=(8,4,2,1)):
        for st in steps:
            for r in regs: s.A.I(f"{op}_dpp v{r}, v{r}, v{r} row_ror:{st} row_mask:0xf bank_mask:0xf")
    def cross_rows(s, op, regs, tmps):
        A=s.A
        for sw in ("v_permlane16_swap_b32","v_permlane32_swap_b32"):
            for r,t in zip(regs,tmps): A.I(f"v_mov_b32 v{t}, v{r}")
            for r,t in zip(regs,tmps): A.I(f"{sw} v{r}, v{t}")
            for r,t in zip(regs,tmps): A.I(f"{op} v{r}, v{r}, v{t}")
    def wave_allreduce(s, op, regs, tmps):
        s.row_allreduce(op, regs); s.cross_rows(op, regs, tmps)
    def bf16r(s, dst, src):
        s.A.I(f"v_cvt_pk_bf16_f32 v{dst}, v{src}, 0\nv_lshlrev_b32 v{dst}, 16, v{dst}")
    def make_masks(s, m0, lane, t0, t1):
        A=s.A
        A.I(f"v_and_b32 v{t0}, 1, v{lane}\nv_lshlrev_b32 v{t0}, 4, v{t0}\nv_mov_b32 v{t1}, 0xffff\nv_lshlrev_b32 v{t0}, v{t0}, v{t1}")
        A.I(f"v_bfe_u32 v{t1}, v{lane}, 1, 2")
        for r in range(4):
            A.I(f"v_cmp_eq_u32 vcc, {r}, v{t1}\nv_cndmask_b32 v{m0+r}, 0, v{t0}, vcc")
    def tag_from_E(s):
        s.A.I("s_mul_i32 s6, s6, 0x9E3779B1\ns_add_u32 s6, s6, 0x7F4A7C15")
    def poll(s, name, loads, tags, acc, pre=None, sleep=0):
        A=s.A
        A.I(f"s_mov_b32 s62, {s.o.timeout}")
        A.label(name)
        if pre: A.I(pre)
        for l in loads: A.I(l)
        A.I("s_mov_b64 exec, -1")
        A.I("s_waitcnt vmcnt(0)")
        A.I(f"v_xor_b32 v{acc}, s6, v{tags[0]}")
        for t in tags[1:]: A.I(f"v_bitop3_b32 v{acc}, v{t}, s6, v{acc} bitop3:0xbe")
        A.I(f"v_cmp_ne_u32 vcc, 0, v{acc}")
        A.I(f"s_cbranch_vccz {name}_ok")
        if sleep: A.I(f"s_sleep {sleep}")
        A.I("s_sub_u32 s62, s62, 1\ns_cmp_lg_u32 s62, 0")
        A.I(f"s_cbranch_scc1 {name}")
        A.label(name+"_ok")
    def layernorm(s, ldsbase):
        A=s.A
        for d in range(4):
            A.I(f"v_lshlrev_b32 v{10+2*d}, 16, v{4+d}\nv_and_b32 v{11+2*d}, 0xffff0000, v{4+d}")
        A.I("v_add_f32 v18, v10, v11\nv_add_f32 v19, v12, v13\nv_add_f32 v20, v14, v15\nv_add_f32 v21, v16, v17")
        A.I("v_add_f32 v18, v18, v19\nv_add_f32 v20, v20, v21\nv_add_f32 v18, v18, v20")
        s.wave_allreduce("v_add_f32",[18],[19])
        A.I(f"v_mul_f32 v18, {hex(f2u(1/448))}, v18")
        for i in range(8): A.I(f"v_sub_f32 v{20+i}, v{10+i}, v18")
        A.I("v_mul_f32 v19, v20, v20")
        for i in range(1,8): A.I(f"v_fmac_f32 v19, v{20+i}, v{20+i}")
        A.I("v_cmp_gt_u32 vcc, 56, v1\nv_cndmask_b32 v19, 0, v19, vcc")
        s.wave_allreduce("v_add_f32",[19],[20])
        A.I(f"v_mul_f32 v19, {hex(f2u(1/448))}, v19")
        s.bf16r(18,18); s.bf16r(19,19)
        A.I("v_add_f32 v19, 0x3727c5ac, v19"); s.bf16r(19,19)
        A.I("v_sqrt_f32 v19, v19"); s.bf16r(19,19)
        A.I("v_rcp_f32 v8, v19")
        for i in range(8): A.I(f"v_sub_f32 v{20+i}, v{10+i}, v18")
        for i in range(8): A.I(f"v_cvt_pk_bf16_f32 v{20+i}, v{20+i}, 0")
        for i in range(8): A.I(f"v_lshlrev_b32 v{20+i}, 16, v{20+i}")
        for i in range(8): A.I(f"v_mul_f32 v{10+i}, v{20+i}, v8")
        for i in range(8): A.I(f"v_fma_f32 v{20+i}, -v{10+i}, v19, v{20+i}")
        for i in range(8): A.I(f"v_fmac_f32 v{10+i}, v{20+i}, v8")
        for i in range(8): A.I(f"v_cvt_pk_bf16_f32 v{20+i}, v{10+i}, 0")
        A.I(f"v_lshlrev_b32 v9, 5, v1")
        A.I(f"ds_write_b128 v9, v[20:23] offset:{ldsbase}\nds_write_b128 v9, v[24:27] offset:{ldsbase+16}")
        A.I("s_waitcnt lgkmcnt(0)")
    def matvec_publish(s, nt, avals, wregs, masks, dacc, areg, voff, srd, tagv, stride):
        A=s.A
        for t in range(nt):
            a=areg+4*(t%2)
            for r in range(4): A.I(f"v_and_b32 v{a+r}, v{avals[t]}, v{masks+r}")
            for cb in range(4):
                c = "0" if t==0 else f"v[{dacc+4*cb}:{dacc+4*cb+3}]"
                w=wregs(t,cb)
                A.I(f"v_mfma_f32_16x16x32_bf16 v[{dacc+4*cb}:{dacc+4*cb+3}], v[{a}:{a+3}], v[{w}:{w+3}], {c}")
        A.I("s_mov_b32 s56, 0\ns_mov_b32 s57, -1")
        for cb in range(4):
            d=dacc+4*cb
            A.I(f"v_cndmask_b32 v{d}, v{d}, v{d+2}, s[56:57]")
            A.I(f"v_cndmask_b32 v{d+2}, v{d+1}, v{d+3}, s[56:57]")
            A.I(f"v_mov_b32 v{d+1}, {tagv}\nv_mov_b32 v{d+3}, {tagv}")
        for cb in range(4):
            d=dacc+4*cb
            if cb==3: A.I("s_mov_b32 exec_lo, 0x00ff00ff\ns_mov_b32 exec_hi, 0x00ff00ff")
            A.I(f"s_mov_b32 s58, {cb*32*stride}")
            A.I(f"buffer_store_dwordx4 v[{d}:{d+3}], v{voff}, s[{srd}:{srd+3}], s58 offen sc1")
        A.I("s_mov_b64 exec, -1")
    def pub_voff(s, dst, t0, base, stride):
        A=s.A
        A.I(f"v_and_b32 v{dst}, 15, v1\nv_lshlrev_b32 v{dst}, 1, v{dst}\nv_bfe_u32 v{t0}, v1, 4, 1\nv_add_u32 v{dst}, v{dst}, v{t0}")
        A.I(f"v_mul_u32_u24 v{dst}, {stride}, v{dst}")
        A.I(f"s_lshl_b32 s55, s2, 5\ns_add_u32 s55, s55, {base}")
        A.I(f"v_lshrrev_b32 v{t0}, 5, v1\nv_lshlrev_b32 v{t0}, 4, v{t0}\nv_add3_u32 v{dst}, v{dst}, v{t0}, s55")
    def reduce8(s, a):
        A=s.A
        for e in range(4): A.I(f"v_permlane32_swap_b32 v{a+e}, v{a+4+e}")
        for e in range(4): A.I(f"v_add_f32 v{a+e}, v{a+e}, v{a+4+e}")
        for e in range(2): A.I(f"v_permlane16_swap_b32 v{a+e}, v{a+2+e}")
        for e in range(2): A.I(f"v_add_f32 v{a+e}, v{a+e}, v{a+2+e}")
        s.row_allreduce("v_add_f32",[a,a+1],(8,))
    def pub8(s, a, voff, srd):
        A=s.A
        A.I(f"v_mov_b32 v{a+2}, v{a+1}\nv_mov_b32 v{a+1}, s6\nv_mov_b32 v{a+3}, s6")
        A.I("s_mov_b32 exec_lo, 0x00ff00ff\ns_mov_b32 exec_hi, 0x00ff00ff")
        A.I(f"buffer_store_dwordx4 v[{a}:{a+3}], v{voff}, s[{srd}:{srd+3}], 0 offen sc1")
        A.I("s_mov_b64 exec, -1")
    def pub8_voff(s, dst, t0, sbase):
        A=s.A
        A.I(f"v_and_b32 v{dst}, 7, v1\nv_lshlrev_b32 v{dst}, 6, v{dst}\nv_lshrrev_b32 v{t0}, 4, v1\nv_lshlrev_b32 v{t0}, 4, v{t0}\nv_add3_u32 v{dst}, v{dst}, v{t0}, s{sbase}")
    def bcast_rows(s, dst, src, lanefn):
        for kg in range(4):
            s.A.I(f"v_mov_b32_dpp v{dst}, v{src} row_newbcast:{lanefn(kg)} row_mask:{hex(1<<kg)} bank_mask:0xf")

    def stream(s):
        A=s.A; o=s.o
        VK,VV,NEGM,LS,CS,T=2,3,4,5,6,7
        MK=8; Q0=12; Q1=16; D=20; AP=24; O0=28; O1=32; P=36; RING=40
        NS=o.ns; DD=o.d; NSETS=32
        A.c("---- stream waves")
        A.I("v_bfe_u32 v8, v1, 2, 2\nv_lshlrev_b32 v8, 9, v8")
        A.I("v_lshrrev_b32 v9, 4, v1\nv_lshlrev_b32 v10, 6, v9")
        A.I("v_and_b32 v11, 3, v1\nv_lshlrev_b32 v11, 4, v11")
        A.I(f"v_add3_u32 v{VK}, v8, v10, v11")
        A.I("v_lshlrev_b32 v9, 9, v9\nv_and_b32 v10, 15, v1\nv_lshlrev_b32 v10, 4, v10")
        A.I(f"v_add_u32 v{VV}, v9, v10")
        A.I("s_lshl_b32 s54, s5, 18\ns_lshl_b32 s55, s3, 11\ns_add_u32 s54, s54, s55")
        A.I(f"v_add_u32 v{VK}, s54, v{VK}\nv_add_u32 v{VV}, s54, v{VV}")
        A.I(f"s_mul_i32 s44, s2, {o.rot}\ns_and_b32 s44, s44, 31\ns_lshl_b32 s44, s44, 13")
        A.I("s_lshl_b32 s55, s4, 23")
        A.I("s_waitcnt lgkmcnt(0)")
        A.I("s_add_u32 s32, s10, s55\ns_addc_u32 s33, s11, 0\ns_mov_b32 s34, 0x800000\ns_mov_b32 s35, 0x20000")
        A.I("s_add_u32 s36, s12, s55\ns_addc_u32 s37, s13, 0\ns_mov_b32 s38, 0x800000\ns_mov_b32 s39, 0x20000")
        st={'issued':0,'landed':0,'slot':{}, 'free':list(range(NS))}
        nt=" nt" if o.nt else ""
        def issue():
            x=st['issued']; se,part=divmod(x,4)
            if part==0:
                st['slot'][se]=st['free'].pop(0)
                if se>0: A.I("s_add_u32 s44, s44, 8192\ns_and_b32 s44, s44, 0x3ffff")
            r=RING+16*st['slot'][se]+4*part
            if part<2: A.I(f"buffer_load_dwordx4 v[{r}:{r+3}], v{VK}, s[32:35], s44 offen offset:{256*part}{nt}")
            else: A.I(f"buffer_load_dwordx4 v[{r}:{r+3}], v{VV}, s[36:39], s44 offen offset:{256*(part-2)}{nt}")
            st['issued']+=1
        def can_issue():
            x=st['issued']
            if x>=4*NSETS: return False
            return (x%4!=0) or bool(st['free'])
        def wait_landed(n):
            if st['landed']>=n: return
            A.I(f"s_waitcnt vmcnt({st['issued']-n})"); st['landed']=n
        def pace():
            x=st['issued']
            if x-st['landed']>=DD: wait_landed(x-DD+1)
            issue()
        for x in range(min(DD,4*o.p)): issue()
        A.I("s_load_dword s6, s[30:31], 0")
        s.make_masks(MK,1,37,38)
        A.I(f"v_mov_b32 v{CS}, {hex(C_SCALE)}\nv_mov_b32 v{NEGM}, 0\nv_mov_b32 v{LS}, 0")
        for r in range(8): A.I(f"v_mov_b32 v{O0+r}, 0")
        while st['issued']<4*o.p: pace()
        s.stamp(1)
        A.I("s_barrier")
        s.stamp(2)
        A.I("v_bfe_u32 v37, v1, 3, 1\nv_lshlrev_b32 v37, 9, v37\nv_lshrrev_b32 v38, 4, v1\nv_lshlrev_b32 v38, 6, v38\nv_add_u32 v37, v37, v38\nv_and_b32 v38, 3, v1\nv_lshlrev_b32 v38, 4, v38\nv_add_u32 v37, v37, v38")
        A.I(f"ds_read_b128 v[{Q0}:{Q0+3}], v37 offset:{L_Q}\nds_read_b128 v[{Q1}:{Q1+3}], v37 offset:{L_Q+256}")
        A.I("s_waitcnt lgkmcnt(0)")
        s.tag_from_E()
        stubs=[]
        def process(se):
            sl=RING+16*st['slot'][se]
            wait_landed(4*se+2)
            A.I(f"v_mfma_f32_16x16x32_bf16 v[{D}:{D+3}], v[{sl}:{sl+3}], v[{Q0}:{Q0+3}], 0")
            A.I(f"v_mfma_f32_16x16x32_bf16 v[{D}:{D+3}], v[{sl+4}:{sl+7}], v[{Q1}:{Q1+3}], v[{D}:{D+3}]")
            A.I(f"v_mov_b32 v{T}, v{NEGM}")
            A.I(f"v_mov_b32 v37, 0")
            A.I(f"v_fmac_f32_dpp v{T}, v{D}, v{CS} quad_perm:[0,0,0,0] row_mask:0xf bank_mask:0xf")
            A.I(f"v_fmac_f32_dpp v37, v{D+1}, v{CS} quad_perm:[1,1,1,1] row_mask:0xf bank_mask:0xf")
            A.I(f"v_fmac_f32_dpp v{T}, v{D+2}, v{CS} quad_perm:[2,2,2,2] row_mask:0xf bank_mask:0xf")
            A.I(f"v_fmac_f32_dpp v37, v{D+3}, v{CS} quad_perm:[3,3,3,3] row_mask:0xf bank_mask:0xf")
            A.I(f"v_add_f32 v{T}, v{T}, v37")
            if se==0:
                A.I(f"v_mov_b32 v37, v{T}")
                s.cross_rows("v_max_f32",[37],[38])
                A.I(f"v_sub_f32 v{NEGM}, 0, v37\nv_sub_f32 v{T}, v{T}, v37")
            else:
                A.I(f"v_cmp_lt_f32 vcc, {hex(f2u(o.thr))}, v{T}")
                A.I(f"s_cbranch_vccnz L_stub{se}")
                A.raw(f"L_res{se}:")
                stubs.append(se)
            A.I(f"v_exp_f32 v{T}, v{T}")
            A.I(f"v_cvt_pk_bf16_f32 v{P}, v{T}, v{T}")
            A.I(f"v_add_f32 v{LS}, v{LS}, v{T}")
            for r in range(4): A.I(f"v_and_b32 v{AP+r}, v{P}, v{MK+r}")
            wait_landed(4*se+4)
            A.I(f"v_mfma_f32_16x16x32_bf16 v[{O0}:{O0+3}], v[{AP}:{AP+3}], v[{sl+8}:{sl+11}], v[{O0}:{O0+3}]")
            A.I(f"v_mfma_f32_16x16x32_bf16 v[{O1}:{O1+3}], v[{AP}:{AP+3}], v[{sl+12}:{sl+15}], v[{O1}:{O1+3}]")
            st['free'].append(st['slot'][se])
        sp=0
        while sp<NSETS:
            backlog = st['landed']//4 - sp
            if backlog>0:
                process(sp); sp+=1
                if can_issue(): pace()
            elif can_issue(): pace()
            else:
                process(sp); sp+=1
        s.stamp(3)
        s.cross_rows("v_add_f32",[LS],[37])
        A.I(f"v_sub_f32 v38, 0, v{NEGM}")
        A.I("v_lshrrev_b32 v39, 3, v1\nv_lshlrev_b32 v39, 4, v39\ns_lshl_b32 s54, s3, 2\nv_add_u32 v39, s54, v39")
        A.I("s_mov_b32 exec_lo, 0x101\ns_mov_b32 exec_hi, 0")
        A.I(f"ds_write_b32 v39, v38 offset:{L_M}\nds_write_b32 v39, v{LS} offset:{L_M+32}")
        A.I("s_mov_b64 exec, -1")
        A.I("v_lshrrev_b32 v39, 5, v1\nv_lshlrev_b32 v39, 10, v39\nv_and_b32 v37, 15, v1\nv_lshlrev_b32 v37, 5, v37\nv_add_u32 v39, v39, v37")
        A.I("v_bfe_u32 v37, v1, 4, 1\nv_lshlrev_b32 v37, 4, v37\ns_lshl_b32 s54, s3, 11\nv_add3_u32 v39, v39, v37, s54")
        A.I(f"ds_write_b128 v39, v[{O0}:{O0+3}] offset:{L_O}\nds_write_b128 v39, v[{O1}:{O1+3}] offset:{L_O+512}")
        A.I("s_waitcnt lgkmcnt(0)")
        A.I("s_barrier")
        s.stamp(4)
        A.I("s_lshr_b32 s54, s3, 1")
        A.I("s_and_b32 s55, s3, 1\ns_lshl_b32 s55, s55, 6\nv_add_u32 v2, s55, v1")
        A.I("s_lshl_b32 s55, s54, 10\nv_lshlrev_b32 v3, 3, v2\nv_add_u32 v3, s55, v3")
        A.I("s_lshl_b32 s55, s54, 4\nv_mov_b32 v4, s55")
        A.I(f"ds_read_b128 v[8:11], v4 offset:{L_M}\nds_read_b128 v[12:15], v4 offset:{L_M+32}")
        for w in range(4): A.I(f"ds_read_b64 v[{16+2*w}:{17+2*w}], v3 offset:{L_O+2048*w}")
        s.srd(40,30,WS_SIZE)
        A.I(f"s_lshl_b32 s55, s4, 5\ns_lshl_b32 s56, s54, 4\ns_add_u32 s55, s55, s56\ns_lshl_b32 s55, s55, 12\ns_lshl_b32 s56, s5, 7\ns_add_u32 s55, s55, s56\ns_add_u32 s55, s55, {WS_H1}")
        A.I("v_lshrrev_b32 v5, 3, v2\nv_lshlrev_b32 v5, 12, v5\nv_and_b32 v6, 7, v2\nv_lshlrev_b32 v6, 4, v6\nv_add3_u32 v5, v5, v6, s55")
        A.I(f"s_lshl_b32 s56, s4, 1\ns_add_u32 s56, s56, s54\ns_lshl_b32 s56, s56, 5\ns_add_u32 s56, s56, s5\ns_lshl_b32 s56, s56, 4\ns_add_u32 s56, s56, {WS_ML}\nv_mov_b32 v6, s56")
        A.I("s_waitcnt lgkmcnt(0)")
        A.I("v_max3_f32 v24, v8, v9, v10\nv_max_f32 v24, v24, v11")
        for w in range(4): A.I(f"v_sub_f32 v{8+w}, v{8+w}, v24")
        for w in range(4): A.I(f"v_exp_f32 v{8+w}, v{8+w}")
        A.I("v_mul_f32 v26, v8, v12\nv_mul_f32 v28, v8, v16\nv_mul_f32 v30, v8, v17")
        for w in range(1,4):
            A.I(f"v_fmac_f32 v26, v{8+w}, v{12+w}\nv_fmac_f32 v28, v{8+w}, v{16+2*w}\nv_fmac_f32 v30, v{8+w}, v{17+2*w}")
        A.I("v_mov_b32 v25, s6\nv_mov_b32 v27, s6\nv_mov_b32 v29, s6\nv_mov_b32 v31, s6")
        A.I("buffer_store_dwordx4 v[28:31], v5, s[40:43], 0 offen sc1")
        A.I("s_bitcmp1_b32 s3, 0\ns_cbranch_scc1 L_st_done")
        A.I("s_mov_b64 exec, 1")
        A.I("buffer_store_dwordx4 v[24:27], v6, s[40:43], 0 offen sc1")
        A.I("s_mov_b64 exec, -1")
        A.label("L_st_done")
        s.stamp(5)
        s.stamps_out()
        A.I("s_endpgm")
        for se in stubs:
            A.label(f"L_stub{se}", flush=False)
            A.I(f"s_call_b64 s[52:53], L_rare\ns_branch L_res{se}")
        A.hist=[]
        A.label("L_rare", flush=False)
        A.I("s_nop 7")
        A.I(f"v_mov_b32 v37, v{T}")
        s.cross_rows("v_max_f32",[37],[38])
        A.I(f"v_max_f32 v37, 0, v37")
        A.I(f"v_sub_f32 v{NEGM}, v{NEGM}, v37\nv_sub_f32 v{T}, v{T}, v37")
        A.I("v_sub_f32 v38, 0, v37\nv_exp_f32 v38, v38")
        A.I(f"v_mul_f32 v{LS}, v{LS}, v38")
        A.I("v_readlane_b32 s54, v38, 0\nv_readlane_b32 s55, v38, 8")
        A.I("v_mov_b32 v39, s54\nv_mov_b32 v37, s55\ns_mov_b32 s56, 0\ns_mov_b32 s57, -1")
        A.I("v_cndmask_b32 v39, v39, v37, s[56:57]")
        for r in range(8): A.I(f"v_mul_f32 v{O0+r}, v{O0+r}, v39")
        A.flush()
        A.I("s_setpc_b64 s[52:53]")

    def qpoll(s, name):
        A=s.A
        A.I(f"s_sub_u32 s54, s3, 4\ns_lshl_b32 s54, s54, 10\ns_lshl_b32 s55, s4, 14\ns_add_u32 s55, s55, s54\ns_add_u32 s55, s55, {WS_QX}")
        A.I("v_lshlrev_b32 v8, 4, v1\nv_add_u32 v8, s55, v8")
        A.I("v_add_u32 v7, 8192, v8")
        loads=[f"buffer_load_dwordx4 v[64:67], v8, s[40:43], 0 offen sc1", f"s_mov_b32 s58, 4096\nbuffer_load_dwordx4 v[68:71], v8, s[40:43], s58 offen sc1",
               f"buffer_load_dwordx4 v[72:75], v7, s[40:43], 0 offen sc1", f"buffer_load_dwordx4 v[76:79], v7, s[40:43], s58 offen sc1"]
        s.poll(name, loads, [65,67,69,71,73,75,77,79], 9, sleep=s.o.qsleep)
        A.I("v_add_f32 v10, v64, v68\nv_add_f32 v11, v66, v70\nv_add_f32 v12, v72, v76\nv_add_f32 v13, v74, v78")
        A.I("v_add_f32 v10, v10, v12\nv_add_f32 v11, v11, v13\nv_cvt_pk_bf16_f32 v10, v10, v11")
        A.I("s_sub_u32 s54, s3, 4\ns_lshl_b32 s54, s54, 8\nv_lshlrev_b32 v9, 2, v1\nv_add_u32 v9, s54, v9")
        A.I(f"ds_write_b32 v9, v10 offset:{L_Q}")
        A.I("s_waitcnt lgkmcnt(0)")
    def h0(s):
        A=s.A; o=s.o
        wf=" nt" if o.wnt else ""
        A.label("L_h0")
        s.srd(32,8,896); s.srd(36,14,448*8192); s.srd(40,30,WS_SIZE)
        A.I("v_lshlrev_b32 v2, 4, v1\nbuffer_load_dwordx4 v[4:7], v2, s[32:35], 0 offen")
        A.I("s_and_b32 s54, s5, 7\ns_lshr_b32 s59, s5, 3")
        A.I(f"s_lshl_b32 s55, s4, 10\ns_lshl_b32 s56, s54, 7\ns_add_u32 s55, s55, s56\ns_mul_i32 s56, s59, {112*8192}\ns_add_u32 s55, s55, s56")
        A.I("v_lshrrev_b32 v3, 3, v1\nv_lshlrev_b32 v3, 13, v3\nv_and_b32 v8, 7, v1\nv_lshlrev_b32 v8, 4, v8\nv_add3_u32 v3, v3, v8, s55")
        for k in range(14):
            A.I(f"s_mov_b32 s57, {k*65536}\nbuffer_load_dwordx4 v[{64+4*k}:{67+4*k}], v3, s[36:39], s57 offen{wf}")
        A.I("s_waitcnt vmcnt(14)")
        s.layernorm(L_X)
        A.I(f"s_mul_i32 s56, s59, {112*4}\nv_lshrrev_b32 v9, 3, v1\nv_lshlrev_b32 v9, 2, v9\nv_add_u32 v9, s56, v9")
        for k in range(14): A.I(f"ds_read_b32 v{32+k}, v9 offset:{L_X+32*k}")
        for i in range(8): A.I(f"v_mov_b32 v{10+i}, 0")
        A.I(f"s_lshl_b32 s55, s4, 14\ns_lshl_b32 s56, s59, 12\ns_add_u32 s55, s55, s56\ns_lshl_b32 s56, s54, 9\ns_add_u32 s55, s55, s56\ns_add_u32 s55, s55, {WS_QX}")
        s.pub8_voff(2,8,55)
        A.I("s_waitcnt lgkmcnt(0)")
        s.tag_from_E()
        for k in range(14): A.I(f"v_lshlrev_b32 v{46+k}, 16, v{32+k}")
        for k in range(14):
            A.I(f"s_waitcnt vmcnt({13-k})")
            for d in range(4):
                A.I(f"v_dot2c_f32_bf16 v{10+2*d}, v{64+4*k+d}, v{32+k}\nv_dot2c_f32_bf16 v{11+2*d}, v{64+4*k+d}, v{46+k}")
        s.stamp(1)
        s.reduce8(10)
        s.pub8(10,2,40)
        s.stamp(2)
        s.qpoll("L_pq0")
        s.stamp(3)
        A.I("s_barrier")
        s.stamps_out()
        A.I("s_endpgm")

    def h1(s):
        A=s.A; o=s.o
        wf=" nt" if o.wnt else ""
        A.label("L_h1")
        s.srd(40,30,WS_SIZE)
        A.I("s_waitcnt lgkmcnt(0)")
        s.tag_from_E()
        s.qpoll("L_pq1")
        A.I("s_barrier")
        A.I("s_cmp_ge_u32 s2, 224\ns_cbranch_scc1 L_end")
        s.srd(36,20,448*3584); s.srd(44,22,448*3584); s.srd(48,24,1792*896)
        A.I("s_lshr_b32 s54, s2, 3\ns_and_b32 s59, s2, 7")
        A.I(f"s_lshl_b32 s55, s54, 7\ns_mul_i32 s56, s59, {56*3584}\ns_add_u32 s55, s55, s56")
        A.I("v_lshrrev_b32 v3, 3, v1\nv_mul_u32_u24 v3, 3584, v3\nv_and_b32 v8, 7, v1\nv_lshlrev_b32 v8, 4, v8\nv_add3_u32 v3, v3, v8, s55")
        for k in range(7):
            A.I(f"s_mov_b32 s57, {k*28672}")
            A.I(f"buffer_load_dwordx4 v[{64+4*k}:{67+4*k}], v3, s[36:39], s57 offen{wf}")
            A.I(f"buffer_load_dwordx4 v[{92+4*k}:{95+4*k}], v3, s[44:47], s57 offen{wf}")
        A.I("v_lshrrev_b32 v8, 4, v1\nv_lshlrev_b32 v8, 1, v8\ns_lshl_b32 s55, s2, 3\nv_add_u32 v8, s55, v8\nv_mul_u32_u24 v8, 896, v8\nv_and_b32 v9, 15, v1\nv_lshlrev_b32 v9, 4, v9\nv_add_u32 v8, v8, v9")
        for t in range(2):
            for cb in range(4):
                r=120+16*t+4*cb
                if cb==3: A.I("s_mov_b32 exec_lo, 0x00ff00ff\ns_mov_b32 exec_hi, 0x00ff00ff")
                A.I(f"buffer_load_dwordx4 v[{r}:{r+3}], v8, s[48:51], 0 offen offset:{t*896+cb*256}{wf}")
                if cb==3: A.I("s_mov_b64 exec, -1")
        A.I(f"s_mul_i32 s56, s59, {56*4}\nv_lshrrev_b32 v9, 3, v1\nv_lshlrev_b32 v9, 2, v9\nv_add_u32 v9, s56, v9")
        for k in range(7): A.I(f"ds_read_b32 v{32+k}, v9 offset:{L_X+32*k}")
        for i in range(16): A.I(f"v_mov_b32 v{10+i}, 0")
        A.I(f"s_mul_i32 s55, s59, 14336\ns_lshl_b32 s56, s54, 9\ns_add_u32 s55, s55, s56\ns_add_u32 s55, s55, {WS_GX}")
        s.pub8_voff(2,8,55)
        A.I(f"v_add_u32 v3, {8*14336}, v2")
        A.I("s_waitcnt lgkmcnt(0)")
        for k in range(7): A.I(f"v_lshlrev_b32 v{46+k}, 16, v{32+k}")
        A.I("s_waitcnt vmcnt(8)")
        for k in range(7):
            for d in range(4):
                A.I(f"v_dot2c_f32_bf16 v{10+2*d}, v{64+4*k+d}, v{32+k}\nv_dot2c_f32_bf16 v{11+2*d}, v{64+4*k+d}, v{46+k}")
                A.I(f"v_dot2c_f32_bf16 v{18+2*d}, v{92+4*k+d}, v{32+k}\nv_dot2c_f32_bf16 v{19+2*d}, v{92+4*k+d}, v{46+k}")
        s.reduce8(10); s.reduce8(18)
        s.pub8(10,2,40); s.pub8(18,3,40)
        s.stamp(1)
        A.I(f"v_lshrrev_b32 v8, 3, v1\nv_bfe_u32 v9, v1, 2, 1\nv_lshlrev_b32 v9, 3, v9\nv_add_u32 v8, v8, v9\nv_mul_u32_u24 v8, 14336, v8")
        A.I(f"s_lshl_b32 s55, s2, 6\ns_add_u32 s55, s55, {WS_GX}\nv_and_b32 v9, 3, v1\nv_lshlrev_b32 v9, 4, v9\nv_add3_u32 v8, v8, v9, s55")
        s.make_masks(28,1,4,5)
        s.pub_voff(2,4,WS_YP,YSTR)
        s.poll("L_pg", ["buffer_load_dwordx4 v[64:67], v8, s[40:43], 0 offen sc1"], [65,67], 9, sleep=4)
        s.stamp(2)
        A.I("v_mov_b32 v10, v64\nv_mov_b32 v11, v66")
        s.row_allreduce("v_add_f32",[10,11],(8,))
        s.cross_rows("v_add_f32",[10,11],[12,13])
        for e in range(2): s.bf16r(10+e,10+e)
        for e in range(2): A.I(f"v_mov_b32_dpp v{14+e}, v{10+e} row_ror:4 row_mask:0xf bank_mask:0xf")
        k1=-2*0.7978845608028654*1.4426950408889634
        A.I(f"v_mov_b32 v26, {hex(f2u(0.044715))}\nv_mov_b32 v27, {hex(f2u(k1))}")
        for e in range(2): A.I(f"v_mul_f32 v{18+e}, v{10+e}, v{10+e}")
        for e in range(2): A.I(f"v_fma_f32 v{18+e}, v{18+e}, v26, 1.0")
        for e in range(2): A.I(f"v_mul_f32 v{18+e}, v{18+e}, v{10+e}")
        for e in range(2): A.I(f"v_mul_f32 v{18+e}, v27, v{18+e}")
        for e in range(2): A.I(f"v_exp_f32 v{18+e}, v{18+e}")
        for e in range(2): A.I(f"v_add_f32 v{18+e}, 1.0, v{18+e}")
        for e in range(2): A.I(f"v_rcp_f32 v{18+e}, v{18+e}")
        for e in range(2): A.I(f"v_mul_f32 v{18+e}, v{18+e}, v{10+e}")
        for e in range(2): s.bf16r(18+e,18+e)
        for e in range(2): A.I(f"v_mul_f32 v{18+e}, v{18+e}, v{14+e}")
        for e in range(2): A.I(f"v_cvt_pk_bf16_f32 v{18+e}, v{18+e}, v{18+e}")
        for t in range(2): s.bcast_rows(22+t,18+t,lambda kg:kg)
        A.I("s_waitcnt vmcnt(0)")
        s.matvec_publish(2,[22,23],lambda t,cb:120+16*t+4*cb,28,40,32,2,40,"s6",YSTR)
        s.stamp(3)
        s.stamps_out()
        A.I("s_endpgm")

    def h2(s):
        A=s.A; o=s.o
        wf=" nt" if o.wnt else ""
        A.label("L_h2")
        s.srd(36,16,4096*896); s.srd(40,30,WS_SIZE)
        A.I("s_waitcnt lgkmcnt(0)")
        s.tag_from_E()
        s.qpoll("L_pq2")
        A.I("s_barrier")
        A.I("s_lshl_b32 s54, s2, 4")
        A.I("v_lshrrev_b32 v8, 4, v1\nv_lshlrev_b32 v8, 2, v8\nv_add_u32 v8, s54, v8\nv_mul_u32_u24 v8, 896, v8\nv_and_b32 v9, 15, v1\nv_lshlrev_b32 v9, 4, v9\nv_add_u32 v8, v8, v9")
        for t in range(4):
            for cb in range(4):
                r=64+16*t+4*cb
                if cb==3: A.I("s_mov_b32 exec_lo, 0x00ff00ff\ns_mov_b32 exec_hi, 0x00ff00ff")
                A.I(f"buffer_load_dwordx4 v[{r}:{r+3}], v8, s[36:39], 0 offen offset:{t*896+cb*256}{wf}")
                if cb==3: A.I("s_mov_b64 exec, -1")
        s.make_masks(28,1,8,9)
        A.I(f"s_lshl_b32 s54, s2, 12\ns_add_u32 s54, s54, {WS_H1}\nv_lshlrev_b32 v3, 4, v1\nv_add_u32 v3, s54, v3")
        A.I(f"s_lshl_b32 s54, s4, 1\ns_lshr_b32 s55, s5, 4\ns_add_u32 s54, s54, s55\ns_lshl_b32 s54, s54, 9\ns_add_u32 s54, s54, {WS_ML}")
        A.I("v_lshrrev_b32 v4, 3, v1\nv_lshlrev_b32 v4, 4, v4\nv_add_u32 v4, s54, v4")
        s.pub_voff(2,8,WS_SP,SSTR)
        A.I("s_barrier")
        s.stamp(1)
        loads=[f"buffer_load_dwordx4 v[{144+4*q}:{147+4*q}], v4, s[40:43], 0 offen offset:{128*q} sc1" for q in range(4)]
        s.poll("L_p1a", loads, [145,147,149,151,153,155,157,159], 9, sleep=o.h1sleep)
        loads=[f"buffer_load_dwordx4 v[{128+4*q}:{131+4*q}], v3, s[40:43], 0 offen offset:{1024*q} sc1" for q in range(4)]
        s.poll("L_p1b", loads, [129,131,133,135,137,139,141,143], 9)
        s.stamp(2)
        A.I("v_max3_f32 v10, v144, v148, v152\nv_max_f32 v10, v10, v156")
        s.row_allreduce("v_max_f32",[10],(8,)); s.cross_rows("v_max_f32",[10],[11])
        for q in range(4): A.I(f"v_sub_f32 v{12+q}, v{144+4*q}, v10")
        for q in range(4): A.I(f"v_exp_f32 v{12+q}, v{12+q}")
        A.I("v_mul_f32 v16, v12, v146\nv_mul_f32 v17, v12, v128\nv_mul_f32 v18, v12, v130")
        for q in range(1,4): A.I(f"v_fmac_f32 v16, v{12+q}, v{146+4*q}\nv_fmac_f32 v17, v{12+q}, v{128+4*q}\nv_fmac_f32 v18, v{12+q}, v{130+4*q}")
        s.row_allreduce("v_add_f32",[16,17,18],(8,)); s.cross_rows("v_add_f32",[16,17,18],[19,20,21])
        A.I("v_rcp_f32 v16, v16")
        A.I("v_mul_f32 v17, v17, v16\nv_mul_f32 v18, v18, v16")
        A.I("v_cvt_pk_bf16_f32 v17, v17, v17\nv_cvt_pk_bf16_f32 v18, v18, v18")
        for t in range(4): s.bcast_rows(22+t,17+(t&1),lambda kg:2*kg+(t>>1))
        s.matvec_publish(4,[22,23,24,25],lambda t,cb:64+16*t+4*cb,28,40,32,2,40,"s6",SSTR)
        s.stamp(3)
        A.I("s_barrier")
        s.stamps_out()
        A.I("s_endpgm")

    def h3(s):
        A=s.A; o=s.o
        A.label("L_h3")
        s.srd(40,30,WS_SIZE)
        A.I("s_waitcnt lgkmcnt(0)")
        s.tag_from_E()
        s.qpoll("L_pq3")
        A.I("s_barrier")
        A.I("s_cmp_ge_u32 s2, 112\ns_cbranch_scc1 L_end")
        s.srd(32,8,896); s.srd(36,26,896)
        A.I("s_lshl_b32 s54, s2, 3\nv_and_b32 v2, 1, v1\nv_lshlrev_b32 v2, 2, v2\nv_add_u32 v2, s54, v2\nbuffer_load_dword v4, v2, s[32:35], 0 offen")
        A.I(f"s_mul_i32 s54, s2, {YSTR}\ns_add_u32 s54, s54, {WS_YP}\nv_lshlrev_b32 v3, 4, v1\nv_add_u32 v3, s54, v3\nv_add_u32 v6, 4096, v3")
        def ld(q):
            r=64+4*q
            return f"buffer_load_dwordx4 v[{r}:{r+3}], v{3 if q<4 else 6}, s[40:43], 0 offen offset:{1024*(q%4)} sc1"
        def sums(n):
            A.I("v_add_f32 v10, v64, v68\nv_add_f32 v11, v66, v70\nv_add_f32 v12, v72, v76\nv_add_f32 v13, v74, v78")
            A.I("v_add_f32 v14, v80, v84\nv_add_f32 v15, v82, v86")
            if n==8: A.I("v_add_f32 v16, v88, v92\nv_add_f32 v17, v90, v94")
            else: A.I("v_mov_b32 v16, v88\nv_mov_b32 v17, v90")
            A.I("v_add_f32 v10, v10, v12\nv_add_f32 v11, v11, v13\nv_add_f32 v14, v14, v16\nv_add_f32 v15, v15, v17\nv_add_f32 v10, v10, v14\nv_add_f32 v11, v11, v15")
            s.row_allreduce("v_add_f32",[10,11],(8,4,2)); s.cross_rows("v_add_f32",[10,11],[12,13])
        s.poll("L_py", [ld(q) for q in range(7)], [65+2*i for i in range(14)], 9, sleep=16)
        sums(7)
        for r in range(2): s.bf16r(20+r,10+r)
        for r in range(2): A.I(f"v_mul_f32 v{24+r}, {hex(f2u(-1.4426950408889634))}, v{20+r}")
        for r in range(2): A.I(f"v_exp_f32 v{24+r}, v{24+r}")
        for r in range(2): A.I(f"v_add_f32 v{24+r}, 1.0, v{24+r}")
        for r in range(2): A.I(f"v_rcp_f32 v{24+r}, v{24+r}")
        for r in range(2): A.I(f"v_mul_f32 v{20+r}, v{20+r}, v{24+r}")
        for r in range(2): s.bf16r(20+r,20+r)
        A.I("v_lshlrev_b32 v24, 16, v4\nv_and_b32 v25, 0xffff0000, v4")
        A.I(f"s_mul_i32 s54, s2, {SSTR}\ns_add_u32 s54, s54, {WS_SP}\nv_lshlrev_b32 v3, 4, v1\nv_add_u32 v3, s54, v3\nv_add_u32 v6, 4096, v3")
        s.stamp(1)
        A.I("s_barrier")
        s.stamp(2)
        A.I("s_barrier")
        s.poll("L_ps", [ld(q) for q in range(8)], [65+2*i for i in range(16)], 9)
        s.stamp(3)
        sums(8)
        for r in range(2): s.bf16r(10+r,10+r)
        for r in range(2): A.I(f"v_mul_f32 v{10+r}, v{10+r}, v{20+r}")
        for r in range(2): s.bf16r(10+r,10+r)
        for r in range(2): A.I(f"v_add_f32 v{10+r}, v{10+r}, v{24+r}")
        A.I("v_cvt_pk_bf16_f32 v14, v10, v11")
        A.I("s_mov_b64 exec, 3")
        A.I("buffer_store_dword v14, v2, s[36:39], 0 offen")
        A.I("s_cmp_lg_u32 s2, 0\ns_cbranch_scc1 L_h3_done")
        A.I("s_mov_b64 exec, 1")
        A.I("v_mov_b32 v16, 0\nv_mov_b32 v17, s6\nbuffer_store_dword v17, v16, s[40:43], 0 offen")
        A.label("L_h3_done")
        A.I("s_mov_b64 exec, -1")
        s.stamp(4)
        s.stamps_out()
        A.I("s_endpgm")

    def build(s):
        A=s.A; o=s.o
        A.raw(HDR.rstrip())
        A.raw(f"; @launch grid=(256,1,1) block=(512,1,1) lds={LDS}")
        A.raw('.amdgcn_target "amdgcn-amd-amdhsa--gfx950"')
        A.raw(".text"); A.raw(f".globl {NAME}_kernel"); A.raw(".p2align 8"); A.raw(f".type {NAME}_kernel,@function"); A.raw(f"{NAME}_kernel:")
        A.I("s_cmp_ge_u32 s2, 256\ns_cbranch_scc1 L_end")
        s.zero_stamps()
        s.stamp(0)
        A.I("s_load_dwordx8 s[8:15], s[0:1], 0\ns_load_dwordx8 s[16:23], s[0:1], 32\ns_load_dwordx8 s[24:31], s[0:1], 64")
        A.I("v_lshrrev_b32 v2, 6, v0\nv_and_b32 v1, 63, v0\nv_readfirstlane_b32 s3, v2")
        A.I("s_lshr_b32 s4, s2, 5\ns_and_b32 s5, s2, 31")
        A.I("s_cmp_ge_u32 s3, 4\ns_cbranch_scc1 L_helpers")
        s.stream()
        A.hist=[]
        A.label("L_helpers", flush=False)
        A.I("s_waitcnt lgkmcnt(0)")
        A.I("s_load_dword s6, s[30:31], 0")
        A.I("s_cmp_eq_u32 s3, 5\ns_cbranch_scc1 L_h1\ns_cmp_eq_u32 s3, 6\ns_cbranch_scc1 L_h2\ns_cmp_eq_u32 s3, 7\ns_cbranch_scc1 L_h3")
        s.h0(); A.hist=[]
        s.h1(); A.hist=[]
        s.h2(); A.hist=[]
        s.h3(); A.hist=[]
        A.label("L_end", flush=False)
        A.I("s_endpgm")
        A.raw('.section .rodata,"a"'); A.raw(".p2align 6"); A.raw(f".amdhsa_kernel {NAME}_kernel")
        A.raw("  .amdhsa_next_free_vgpr 256\n  .amdhsa_next_free_sgpr 102\n  .amdhsa_accum_offset 256\n  .amdhsa_group_segment_fixed_size 0\n  .amdhsa_kernarg_size 96\n  .amdhsa_user_sgpr_count 2\n  .amdhsa_user_sgpr_kernarg_segment_ptr 1\n  .amdhsa_system_sgpr_workgroup_id_x 1\n  .amdhsa_float_denorm_mode_32 3\n.end_amdhsa_kernel")
        return A.text()

if __name__=="__main__":
    ap=argparse.ArgumentParser()
    ap.add_argument("-o",dest="out",default="k.s")
    ap.add_argument("--p",type=int,default=11)
    ap.add_argument("--ns",type=int,default=13)
    ap.add_argument("--d",type=int,default=8)
    ap.add_argument("--rot",type=int,default=0)
    ap.add_argument("--nt",type=int,default=1)
    ap.add_argument("--wnt",type=int,default=1)
    ap.add_argument("--thr",type=float,default=8.0)
    ap.add_argument("--timeout",type=int,default=200000)
    ap.add_argument("--stamps",type=int,default=0)
    ap.add_argument("--qsleep",type=int,default=2)
    ap.add_argument("--h1sleep",type=int,default=2)
    o=ap.parse_args()
    open(o.out,"w").write(G(o).build())
```

```python
import sys, argparse
from asmlib import Asm
NAME="recurrent_scan__gqa_block_cached__geglu_ffn__decode"
HDR = """; Kernarg layout for this problem (96 bytes, ptrs only, base s[0:1]):
"""
WS_ML=0x8000; WS_CT=0x10000; WS_QX=0x20000; WS_GX=0x40000; WS_YP=0x80000; WS_H1=0x180000; WS_SP=0x280000; WS_ST=0x380000; WS_SIZE=0x400000
FSTR=32768
L_Q=0; L_O=2048; L_M=10240; L_F=10496; L_G=10512; L_Y=10752; L_S=11008; L_QU=11264; L_P=11776; L_X=12288; LDS=16384
Q_EMPTY=0xfffffffe; Q_END=0xffffffff
C_SCALE=0x3db8aa3b
def f2u(x):
    import struct; return struct.unpack('<I',struct.pack('<f',x))[0]

class G:
    def __init__(s, o):
        s.o=o; s.A=Asm(); s.nst=0
    def stamp(s, i):
        if s.o.stamps: s.A.I(f"s_memrealtime s[{80+2*i}:{81+2*i}]")
    def stamps_out(s):
        if not s.o.stamps: return
        A=s.A
        A.I("s_waitcnt vmcnt(0) lgkmcnt(0)")
        A.I("s_mov_b64 exec, 1")
        A.I(f"s_lshl_b32 s60, s2, 3\ns_add_u32 s60, s60, s3\ns_lshl_b32 s60, s60, 6\ns_add_u32 s60, s60, {WS_ST}")
        A.I("s_mov_b32 s72, s30\ns_mov_b32 s73, s31\ns_mov_b32 s74, %d\ns_mov_b32 s75, 0x20000"%WS_SIZE)
        A.I("v_mov_b32 v2, s60")
        for q in range(4):
            for r in range(4): A.I(f"v_mov_b32 v{4+r}, s{80+4*q+r}")
            A.I(f"buffer_store_dwordx4 v[4:7], v2, s[72:75], 0 offen offset:{16*q}")
            A.I("s_waitcnt vmcnt(0)")
        A.I("s_mov_b64 exec, -1")
    def zero_stamps(s):
        if s.o.stamps:
            for i in range(16): s.A.I(f"s_mov_b32 s{80+i}, 0")
            s.A.I("s_nop 0")
    def srd(s, r, lo, size):
        s.A.I(f"s_mov_b32 s{r}, s{lo}\ns_mov_b32 s{r+1}, s{lo+1}\ns_mov_b32 s{r+2}, {size}\ns_mov_b32 s{r+3}, 0x20000")
    def row_allreduce(s, op, regs, steps=(8,4,2,1)):
        for st in steps:
            for r in regs: s.A.I(f"{op}_dpp v{r}, v{r}, v{r} row_ror:{st} row_mask:0xf bank_mask:0xf")
    def cross_rows(s, op, regs, tmps):
        A=s.A
        for sw in ("v_permlane16_swap_b32","v_permlane32_swap_b32"):
            for r,t in zip(regs,tmps): A.I(f"v_mov_b32 v{t}, v{r}")
            for r,t in zip(regs,tmps): A.I(f"{sw} v{r}, v{t}")
            for r,t in zip(regs,tmps): A.I(f"{op} v{r}, v{r}, v{t}")
    def wave_allreduce(s, op, regs, tmps):
        s.row_allreduce(op, regs); s.cross_rows(op, regs, tmps)
    def bf16r(s, dst, src):
        s.A.I(f"v_cvt_pk_bf16_f32 v{dst}, v{src}, 0\nv_lshlrev_b32 v{dst}, 16, v{dst}")
    def make_masks(s, m0, lane, t0, t1):
        A=s.A
        A.I(f"v_and_b32 v{t0}, 1, v{lane}\nv_lshlrev_b32 v{t0}, 4, v{t0}\nv_mov_b32 v{t1}, 0xffff\nv_lshlrev_b32 v{t0}, v{t0}, v{t1}")
        A.I(f"v_bfe_u32 v{t1}, v{lane}, 1, 2")
        for r in range(4):
            A.I(f"v_cmp_eq_u32 vcc, {r}, v{t1}\nv_cndmask_b32 v{m0+r}, 0, v{t0}, vcc")
    def tag_from_E(s):
        s.A.I("s_mul_i32 s6, s6, 0x9E3779B1\ns_add_u32 s6, s6, 0x7F4A7C15")
    def poll(s, name, loads, tags, acc, pre=None, sleep=0, lanes=None):
        A=s.A
        A.I(f"s_mov_b32 s62, {s.o.timeout}")
        A.label(name)
        if pre: A.I(pre)
        for l in loads: A.I(l)
        if lanes is None: A.I("s_mov_b64 exec, -1")
        A.I("s_waitcnt vmcnt(0)")
        A.I(f"v_xor_b32 v{acc}, s6, v{tags[0]}")
        for t in tags[1:]: A.I(f"v_bitop3_b32 v{acc}, v{t}, s6, v{acc} bitop3:0xbe")
        A.I(f"v_cmp_ne_u32 vcc, 0, v{acc}")
        A.I(f"s_cbranch_vccz {name}_ok")
        if sleep: A.I(f"s_sleep {sleep}")
        A.I("s_sub_u32 s62, s62, 1\ns_cmp_lg_u32 s62, 0")
        A.I(f"s_cbranch_scc1 {name}")
        A.label(name+"_ok")
        if lanes is not None: A.I("s_mov_b64 exec, -1")
    def layernorm(s, ldsbase):
        A=s.A
        for d in range(4):
            A.I(f"v_lshlrev_b32 v{10+2*d}, 16, v{4+d}\nv_and_b32 v{11+2*d}, 0xffff0000, v{4+d}")
        A.I("v_add_f32 v18, v10, v11\nv_add_f32 v19, v12, v13\nv_add_f32 v20, v14, v15\nv_add_f32 v21, v16, v17")
        A.I("v_add_f32 v18, v18, v19\nv_add_f32 v20, v20, v21\nv_add_f32 v18, v18, v20")
        s.wave_allreduce("v_add_f32",[18],[19])
        A.I(f"v_mul_f32 v18, {hex(f2u(1/448))}, v18")
        for i in range(8): A.I(f"v_sub_f32 v{20+i}, v{10+i}, v18")
        A.I("v_mul_f32 v19, v20, v20")
        for i in range(1,8): A.I(f"v_fmac_f32 v19, v{20+i}, v{20+i}")
        A.I("v_cmp_gt_u32 vcc, 56, v1\nv_cndmask_b32 v19, 0, v19, vcc")
        s.wave_allreduce("v_add_f32",[19],[20])
        A.I(f"v_mul_f32 v19, {hex(f2u(1/448))}, v19")
        s.bf16r(18,18); s.bf16r(19,19)
        A.I("v_add_f32 v19, 0x3727c5ac, v19"); s.bf16r(19,19)
        A.I("v_sqrt_f32 v19, v19"); s.bf16r(19,19)
        A.I("v_rcp_f32 v8, v19")
        for i in range(8): A.I(f"v_sub_f32 v{20+i}, v{10+i}, v18")
        for i in range(8): A.I(f"v_cvt_pk_bf16_f32 v{20+i}, v{20+i}, 0")
        for i in range(8): A.I(f"v_lshlrev_b32 v{20+i}, 16, v{20+i}")
        for i in range(8): A.I(f"v_mul_f32 v{10+i}, v{20+i}, v8")
        for i in range(8): A.I(f"v_fma_f32 v{20+i}, -v{10+i}, v19, v{20+i}")
        for i in range(8): A.I(f"v_fmac_f32 v{10+i}, v{20+i}, v8")
        for i in range(8): A.I(f"v_cvt_pk_bf16_f32 v{20+i}, v{10+i}, 0")
        A.I(f"v_lshlrev_b32 v9, 5, v1")
        A.I(f"ds_write_b128 v9, v[20:23] offset:{ldsbase}\nds_write_b128 v9, v[24:27] offset:{ldsbase+16}")
        A.I("s_waitcnt lgkmcnt(0)")
    def matvec_prep(s, px, st, tagv):
        A=s.A
        A.I(f"v_lshrrev_b32 v{px}, 2, v1\nv_bfe_u32 v{px+1}, v1, 1, 1\nv_lshlrev_b32 v{px+1}, 4, v{px+1}\nv_add_u32 v{px}, v{px}, v{px+1}")
        A.I(f"v_and_b32 v{px+1}, 1, v1\nv_lshlrev_b32 v{px+1}, 5, v{px+1}\nv_add_u32 v{px}, v{px}, v{px+1}\nv_lshlrev_b32 v{px}, 2, v{px}")
        for cb in range(4): A.I(f"v_mov_b32 v{st+4*cb+1}, {tagv}\nv_mov_b32 v{st+4*cb+3}, {tagv}")
        A.I("s_mov_b32 s70, 0\ns_mov_b32 s71, -1")
        for cb in range(4): A.I(f"s_mov_b32 s{64+cb}, {cb*8*FSTR}")
    def matvec_publish(s, nt, avals, wregs, masks, dacc, areg, voff, srd, px, st):
        A=s.A
        for t in range(nt):
            a=areg+4*(t%2)
            for r in range(4): A.I(f"v_and_b32 v{a+r}, v{avals[t]}, v{masks+r}")
            for cb in range(4):
                c = "0" if t==0 else f"v[{dacc+4*cb}:{dacc+4*cb+3}]"
                w=wregs(t,cb)
                A.I(f"v_mfma_f32_16x16x32_bf16 v[{dacc+4*cb}:{dacc+4*cb+3}], v[{a}:{a+3}], v[{w}:{w+3}], {c}")
        for cb in range(4):
            d=dacc+4*cb
            A.I(f"v_cndmask_b32 v{d}, v{d}, v{d+2}, s[70:71]")
            A.I(f"v_cndmask_b32 v{d+1}, v{d+1}, v{d+3}, s[70:71]")
            A.I(f"ds_bpermute_b32 v{st+4*cb}, v{px}, v{d}\nds_bpermute_b32 v{st+4*cb+2}, v{px}, v{d+1}")
        for cb in range(4):
            A.I("s_waitcnt lgkmcnt(%d)"%(0 if s.o.stamps else 6-2*cb))
            if cb==3: A.I("s_mov_b32 exec_hi, 0")
            A.I(f"buffer_store_dwordx4 v[{st+4*cb}:{st+4*cb+3}], v{voff}, s[{srd}:{srd+3}], s{64+cb} offen sc1")
        A.I("s_mov_b64 exec, -1")
    def pub_voff(s, dst, t0, base):
        A=s.A
        A.I(f"v_lshrrev_b32 v{dst}, 3, v1\nv_lshlrev_b32 v{dst}, 15, v{dst}\nv_and_b32 v{t0}, 7, v1\nv_lshlrev_b32 v{t0}, 4, v{t0}")
        A.I(f"s_lshl_b32 s55, s2, 7\ns_add_u32 s55, s55, {base}\nv_add3_u32 v{dst}, v{dst}, v{t0}, s55")
    def rowsplit_voff(s, dst, t0, sbase):
        A=s.A
        A.I(f"v_bfe_u32 v{dst}, v1, 1, 3\nv_lshlrev_b32 v{dst}, 7, v{dst}\nv_lshrrev_b32 v{t0}, 4, v1\nv_lshlrev_b32 v{t0}, 5, v{t0}\nv_add_u32 v{dst}, v{dst}, v{t0}")
        A.I(f"v_and_b32 v{t0}, 1, v1\nv_lshlrev_b32 v{t0}, 4, v{t0}\nv_add3_u32 v{dst}, v{dst}, v{t0}, s{sbase}")
    def reduce8(s, a):
        A=s.A
        for e in range(4): A.I(f"v_permlane32_swap_b32 v{a+e}, v{a+4+e}")
        for e in range(4): A.I(f"v_add_f32 v{a+e}, v{a+e}, v{a+4+e}")
        for e in range(2): A.I(f"v_permlane16_swap_b32 v{a+e}, v{a+2+e}")
        for e in range(2): A.I(f"v_add_f32 v{a+e}, v{a+e}, v{a+2+e}")
        s.row_allreduce("v_add_f32",[a,a+1],(8,))
    def pub8(s, a, voff, srd):
        A=s.A
        A.I(f"v_mov_b32 v{a+2}, v{a+1}\nv_mov_b32 v{a+1}, s6\nv_mov_b32 v{a+3}, s6")
        A.I("s_mov_b32 exec_lo, 0x00ff00ff\ns_mov_b32 exec_hi, 0x00ff00ff")
        A.I(f"buffer_store_dwordx4 v[{a}:{a+3}], v{voff}, s[{srd}:{srd+3}], 0 offen sc1")
        A.I("s_mov_b64 exec, -1")
    def pub8_voff(s, dst, t0, sbase):
        A=s.A
        A.I(f"v_and_b32 v{dst}, 7, v1\nv_lshlrev_b32 v{dst}, 6, v{dst}\nv_lshrrev_b32 v{t0}, 4, v1\nv_lshlrev_b32 v{t0}, 4, v{t0}\nv_add3_u32 v{dst}, v{dst}, v{t0}, s{sbase}")
    def bcast_rows(s, dst, src, lanefn):
        for kg in range(4):
            s.A.I(f"v_mov_b32_dpp v{dst}, v{src} row_newbcast:{lanefn(kg)} row_mask:{hex(1<<kg)} bank_mask:0xf")

    def stream(s):
        A=s.A; o=s.o
        VK,VV,NEGM,LS,CS,T=2,3,4,5,6,7
        MK=8; Q0=12; Q1=16; D=20; AP=24; O0=28; O1=32; P=36; RING=40
        NS=o.ns; DD=o.d; NSETS=32-o.dyn; LAG=DD//4; RS=LAG+1
        A.c("---- stream waves")
        A.I("v_bfe_u32 v8, v1, 2, 2\nv_lshlrev_b32 v8, 9, v8")
        A.I("v_lshrrev_b32 v9, 4, v1\nv_lshlrev_b32 v10, 6, v9")
        A.I("v_and_b32 v11, 3, v1\nv_lshlrev_b32 v11, 4, v11")
        A.I(f"v_add3_u32 v{VK}, v8, v10, v11")
        A.I("v_lshlrev_b32 v9, 9, v9\nv_and_b32 v10, 15, v1\nv_lshlrev_b32 v10, 4, v10")
        A.I(f"v_add_u32 v{VV}, v9, v10")
        A.I("s_lshl_b32 s55, s3, 11")
        A.I(f"v_add_u32 v{VK}, s55, v{VK}\nv_add_u32 v{VV}, s55, v{VV}\nv_mov_b32 v0, 0")
        A.I(f"s_lshl_b32 s44, s5, 18")
        A.I("s_lshl_b32 s55, s4, 23")
        A.I("s_waitcnt lgkmcnt(0)")
        A.I("s_add_u32 s32, s10, s55\ns_addc_u32 s33, s11, 0\ns_mov_b32 s34, 0x800000\ns_mov_b32 s35, 0x20000")
        A.I("s_add_u32 s36, s12, s55\ns_addc_u32 s37, s13, 0\ns_mov_b32 s38, 0x800000\ns_mov_b32 s39, 0x20000")
        st={'issued':0,'landed':0,'slot':{}, 'free':list(range(NS))}
        nt=" nt" if o.nt else ""
        def issue():
            x=st['issued']; se,part=divmod(x,4)
            if part==0:
                st['slot'][se]=st['free'].pop(0)
                if se>0: A.I("s_add_u32 s44, s44, 8192")
                if o.dyn and se>=NSETS-o.lead: A.I(f"v_mov_b32 v38, {se}\nds_max_u32 v0, v38 offset:{L_P}")
                if o.st2 and se==16: s.stamp(5)
                if o.st2 and se==20: s.stamp(6)
                if o.st2 and se==NSETS-1: s.stamp(7)
            r=RING+16*st['slot'][se]+4*part
            if part<2: A.I(f"buffer_load_dwordx4 v[{r}:{r+3}], v{VK}, s[32:35], s44 offen offset:{256*part}{nt}")
            else: A.I(f"buffer_load_dwordx4 v[{r}:{r+3}], v{VV}, s[36:39], s44 offen offset:{256*(part-2)}{nt}")
            st['issued']+=1
        def can_issue():
            x=st['issued']
            if x>=4*NSETS: return False
            return (x%4!=0) or bool(st['free'])
        def wait_landed(n):
            if st['landed']>=n: return
            A.I(f"s_waitcnt vmcnt({st['issued']-n})"); st['landed']=n
        def pace():
            x=st['issued']
            if x-st['landed']>=DD: wait_landed(x-DD+1)
            issue()
        for x in range(min(o.d0,4*o.p)): issue()
        A.I("s_load_dword s6, s[30:31], 0")
        A.I("s_barrier")
        s.make_masks(MK,1,37,38)
        A.I(f"v_mov_b32 v{CS}, {hex(C_SCALE)}\nv_mov_b32 v{NEGM}, 0\nv_mov_b32 v{LS}, 0")
        for r in range(8): A.I(f"v_mov_b32 v{O0+r}, 0")
        A.I("v_lshrrev_b32 v248, 3, v1\nv_lshlrev_b32 v248, 4, v248\ns_lshl_b32 s54, s3, 2\nv_add_u32 v248, s54, v248")
        A.I("v_lshrrev_b32 v249, 5, v1\nv_lshlrev_b32 v249, 10, v249\nv_and_b32 v37, 15, v1\nv_lshlrev_b32 v37, 5, v37\nv_add_u32 v249, v249, v37")
        A.I("v_bfe_u32 v37, v1, 4, 1\nv_lshlrev_b32 v37, 4, v37\ns_lshl_b32 s54, s3, 11\nv_add3_u32 v249, v249, v37, s54")
        A.I("s_lshr_b32 s54, s3, 1\ns_and_b32 s55, s3, 1\ns_lshl_b32 s55, s55, 6\nv_add_u32 v37, s55, v1")
        A.I("s_lshl_b32 s55, s54, 10\nv_lshlrev_b32 v250, 3, v37\nv_add_u32 v250, s55, v250")
        A.I("s_lshl_b32 s55, s54, 4\nv_mov_b32 v251, s55")
        s.srd(40,30,WS_SIZE)
        A.I(f"s_lshl_b32 s55, s4, 5\ns_lshl_b32 s56, s54, 4\ns_add_u32 s55, s55, s56\ns_lshl_b32 s55, s55, 12\ns_lshl_b32 s56, s5, 7\ns_add_u32 s55, s55, s56\ns_add_u32 s55, s55, {WS_H1}")
        A.I("v_lshrrev_b32 v252, 3, v37\nv_lshlrev_b32 v252, 12, v252\nv_and_b32 v37, 7, v37\nv_lshlrev_b32 v37, 4, v37\nv_add3_u32 v252, v252, v37, s55")
        if o.d0<DD:
            wait_landed(1)
            while st['issued']<DD: issue()
        while st['issued']<4*o.p: pace()
        s.stamp(1)
        A.I("s_waitcnt lgkmcnt(0)")
        s.tag_from_E()
        if not (o.dbg&1):
            A.I(f"s_mov_b32 s62, {o.timeout}\nv_mov_b32 v39, 0")
            A.label("L_qw")
            A.I(f"ds_read_b128 v[20:23], v39 offset:{L_G}\ns_waitcnt lgkmcnt(0)")
            A.I("v_and_b32 v37, v20, v21\nv_and_b32 v38, v22, v23\nv_and_b32 v37, v37, v38")
            A.I("v_cmp_eq_u32 vcc, 0, v37\ns_cbranch_vccz L_qw_ok\ns_sleep 1\ns_sub_u32 s62, s62, 1\ns_cmp_lg_u32 s62, 0\ns_cbranch_scc1 L_qw")
            A.label("L_qw_ok")
        s.stamp(2)
        A.I("v_bfe_u32 v37, v1, 3, 1\nv_lshlrev_b32 v37, 9, v37\nv_lshrrev_b32 v38, 4, v1\nv_lshlrev_b32 v38, 6, v38\nv_add_u32 v37, v37, v38\nv_and_b32 v38, 3, v1\nv_lshlrev_b32 v38, 4, v38\nv_add_u32 v37, v37, v38")
        A.I(f"ds_read_b128 v[{Q0}:{Q0+3}], v37 offset:{L_Q}\nds_read_b128 v[{Q1}:{Q1+3}], v37 offset:{L_Q+256}")
        A.I("s_waitcnt lgkmcnt(0)")
        stubs=[]
        def proc(sl, name, first=False, kwait=None, vwait=None):
            if kwait: kwait()
            A.I(f"v_mfma_f32_16x16x32_bf16 v[{D}:{D+3}], v[{sl}:{sl+3}], v[{Q0}:{Q0+3}], 0")
            A.I(f"v_mfma_f32_16x16x32_bf16 v[{D}:{D+3}], v[{sl+4}:{sl+7}], v[{Q1}:{Q1+3}], v[{D}:{D+3}]")
            A.I(f"v_mov_b32 v{T}, v{NEGM}")
            A.I(f"v_mov_b32 v37, 0")
            A.I(f"v_fmac_f32_dpp v{T}, v{D}, v{CS} quad_perm:[0,0,0,0] row_mask:0xf bank_mask:0xf")
            A.I(f"v_fmac_f32_dpp v37, v{D+1}, v{CS} quad_perm:[1,1,1,1] row_mask:0xf bank_mask:0xf")
            A.I(f"v_fmac_f32_dpp v{T}, v{D+2}, v{CS} quad_perm:[2,2,2,2] row_mask:0xf bank_mask:0xf")
            A.I(f"v_fmac_f32_dpp v37, v{D+3}, v{CS} quad_perm:[3,3,3,3] row_mask:0xf bank_mask:0xf")
            A.I(f"v_add_f32 v{T}, v{T}, v37")
            if first:
                A.I(f"v_mov_b32 v37, v{T}")
                s.cross_rows("v_max_f32",[37],[38])
                A.I(f"v_sub_f32 v{NEGM}, 0, v37\nv_sub_f32 v{T}, v{T}, v37")
            else:
                A.I(f"v_cmp_lt_f32 vcc, {hex(f2u(o.thr))}, v{T}")
                A.I(f"s_cbranch_vccnz L_stub{name}")
                A.raw(f"L_res{name}:")
                stubs.append(name)
            A.I(f"v_exp_f32 v{T}, v{T}")
            A.I(f"v_cvt_pk_bf16_f32 v{P}, v{T}, v{T}")
            A.I(f"v_add_f32 v{LS}, v{LS}, v{T}")
            for r in range(4): A.I(f"v_and_b32 v{AP+r}, v{P}, v{MK+r}")
            if vwait: vwait()
            A.I(f"v_mfma_f32_16x16x32_bf16 v[{O0}:{O0+3}], v[{AP}:{AP+3}], v[{sl+8}:{sl+11}], v[{O0}:{O0+3}]")
            A.I(f"v_mfma_f32_16x16x32_bf16 v[{O1}:{O1+3}], v[{AP}:{AP+3}], v[{sl+12}:{sl+15}], v[{O1}:{O1+3}]")
        def process(se):
            proc(RING+16*st['slot'][se], str(se), se==0, lambda: wait_landed(4*se+2), lambda: wait_landed(4*se+4))
            st['free'].append(st['slot'][se])
        sp=0
        last = NSETS-LAG if o.dyn else NSETS
        while sp<last or (o.dyn and st['issued']<4*NSETS):
            backlog = st['landed']//4 - sp
            if backlog>0 and sp<last:
                process(sp); sp+=1
                if can_issue(): pace()
            elif can_issue(): pace()
            else:
                process(sp); sp+=1
        if o.dyn:
            assert st['issued']==4*NSETS and sp==NSETS-LAG, (st['issued'], sp)
            DS={}
            for x in range(NSETS-LAG,NSETS): DS[x%RS]=st['slot'][x]
            DS[NSETS%RS]=st['free'][0]
            assert len(set(DS.values()))==RS
            A.I("s_mov_b32 s46, 0")
            A.I(f"s_mov_b32 s47, {NSETS}")
            A.I(f"v_mov_b32 v39, s46\nds_read_b32 v38, v39 offset:{L_QU}")
            order=[(NSETS+i)%RS for i in range(RS)]
            for i,ph in enumerate(order):
                A.label(f"L_dyn{ph}", flush=True)
                A.I(f"s_mov_b32 s62, {o.timeout}")
                A.label(f"L_dq{ph}", flush=False)
                A.I("s_waitcnt lgkmcnt(0)\nv_readfirstlane_b32 s44, v38")
                A.I(f"s_cmp_lt_u32 s44, {hex(Q_EMPTY)}\ns_cbranch_scc1 L_dgo{ph}")
                A.I(f"s_cmp_eq_u32 s44, {hex(Q_END)}\ns_cbranch_scc1 L_drain{ph}")
                A.I(f"s_sub_u32 s62, s62, 1\ns_cmp_eq_u32 s62, 0\ns_cbranch_scc1 L_drain{ph}")
                A.I(f"s_sleep 1\nds_read_b32 v38, v39 offset:{L_QU}\ns_branch L_dq{ph}")
                A.label(f"L_dgo{ph}", flush=False)
                A.I(f"v_mov_b32 v38, s47\nds_max_u32 v0, v38 offset:{L_P}")
                sl=RING+16*DS[ph]
                for part in range(4):
                    A.I(f"s_waitcnt vmcnt({DD-1})")
                    r=sl+4*part
                    if part<2: A.I(f"buffer_load_dwordx4 v[{r}:{r+3}], v{VK}, s[32:35], s44 offen offset:{256*part}{nt}")
                    else: A.I(f"buffer_load_dwordx4 v[{r}:{r+3}], v{VV}, s[36:39], s44 offen offset:{256*(part-2)}{nt}")
                A.I("s_add_u32 s46, s46, 4\ns_add_u32 s47, s47, 1")
                proc(RING+16*DS[(ph-LAG)%RS], f"d{ph}")
                A.I(f"v_mov_b32 v39, s46\nds_read_b32 v38, v39 offset:{L_QU}")
                if i==RS-1: A.I(f"s_branch L_dyn{order[0]}")
            for ph in order:
                A.label(f"L_drain{ph}", flush=True)
                cnt=[4*LAG]
                for t in range(LAG,0,-1):
                    def kw(n=4*t-2): A.I(f"s_waitcnt vmcnt({n})")
                    def vw(n=4*t-4): A.I(f"s_waitcnt vmcnt({n})")
                    proc(RING+16*DS[(ph-t)%RS], f"e{ph}_{t}", False, kw, vw)
                A.I("s_branch L_sdone")
            A.label("L_sdone", flush=True)
        s.stamp(3)
        s.cross_rows("v_add_f32",[LS],[37])
        A.I(f"v_sub_f32 v38, 0, v{NEGM}")
        A.I(f"ds_write_b128 v249, v[{O0}:{O0+3}] offset:{L_O}\nds_write_b128 v249, v[{O1}:{O1+3}] offset:{L_O+512}")
        A.I("s_mov_b32 exec_lo, 0x101\ns_mov_b32 exec_hi, 0")
        A.I(f"ds_write_b32 v248, v38 offset:{L_M}\nds_write_b32 v248, v{LS} offset:{L_M+32}")
        A.I("s_mov_b64 exec, -1")
        A.I("s_waitcnt lgkmcnt(0)")
        A.I("s_barrier")
        s.stamp(4)
        A.I(f"ds_read_b128 v[8:11], v251 offset:{L_M}\nds_read_b128 v[12:15], v251 offset:{L_M+32}")
        for w in range(4): A.I(f"ds_read_b64 v[{16+2*w}:{17+2*w}], v250 offset:{L_O+2048*w}")
        A.I("v_mov_b32 v31, s6\ns_mov_b32 s56, 0xaaaaaaaa\ns_mov_b32 s57, 0xaaaaaaaa")
        A.I("s_waitcnt lgkmcnt(%d)"%(0 if o.stamps else 4))
        A.I("v_max3_f32 v24, v8, v9, v10\nv_max_f32 v24, v24, v11")
        for w in range(4): A.I(f"v_sub_f32 v{8+w}, v{8+w}, v24")
        for w in range(4): A.I(f"v_exp_f32 v{8+w}, v{8+w}")
        A.I("s_waitcnt lgkmcnt(0)")
        A.I("v_mul_f32 v26, v8, v12\nv_mul_f32 v28, v8, v16\nv_mul_f32 v29, v8, v17")
        for w in range(1,4):
            A.I(f"v_fmac_f32 v26, v{8+w}, v{12+w}\nv_fmac_f32 v28, v{8+w}, v{16+2*w}\nv_fmac_f32 v29, v{8+w}, v{17+2*w}")
        A.I("v_cndmask_b32 v30, v24, v26, s[56:57]")
        A.I("buffer_store_dwordx4 v[28:31], v252, s[40:43], 0 offen sc1")
        if not o.st2: s.stamp(5)
        if not (o.dbg&4):
            A.I("s_cmp_ge_u32 s2, 28\ns_cbranch_scc1 L_st_end")
            s.final()
        A.label("L_st_end")
        s.stamps_out()
        A.I("s_endpgm")
        for se in stubs:
            A.label(f"L_stub{se}", flush=False)
            A.I(f"s_call_b64 s[52:53], L_rare\ns_branch L_res{se}")
        A.hist=[]
        A.label("L_rare", flush=False)
        A.I("s_nop 7")
        A.I(f"v_mov_b32 v37, v{T}")
        s.cross_rows("v_max_f32",[37],[38])
        A.I(f"v_max_f32 v37, 0, v37")
        A.I(f"v_sub_f32 v{NEGM}, v{NEGM}, v37\nv_sub_f32 v{T}, v{T}, v37")
        A.I("v_sub_f32 v38, 0, v37\nv_exp_f32 v38, v38")
        A.I(f"v_mul_f32 v{LS}, v{LS}, v38")
        A.I("v_readlane_b32 s54, v38, 0\nv_readlane_b32 s55, v38, 8")
        A.I("v_mov_b32 v39, s54\nv_mov_b32 v37, s55\ns_mov_b32 s56, 0\ns_mov_b32 s57, -1")
        A.I("v_cndmask_b32 v39, v39, v37, s[56:57]")
        for r in range(8): A.I(f"v_mul_f32 v{O0+r}, v{O0+r}, v39")
        A.flush()
        A.I("s_setpc_b64 s[52:53]")

    def final(s):
        A=s.A; o=s.o
        s.srd(32,8,896); s.srd(36,26,896)
        A.I("s_lshl_b32 s54, s2, 5\nv_and_b32 v2, 7, v1\nv_lshlrev_b32 v7, 3, v2\nv_lshlrev_b32 v2, 2, v2\nv_add_u32 v2, s54, v2\nbuffer_load_dword v4, v2, s[32:35], 0 offen")
        A.I(f"s_lshl_b32 s54, s2, 15\ns_mul_i32 s55, s3, {56*128}\ns_add_u32 s55, s55, s54\ns_add_u32 s55, s55, {WS_YP}")
        def voff():
            if o.lin2: A.I("v_lshlrev_b32 v3, 4, v1\nv_add_u32 v3, s55, v3")
            else: s.rowsplit_voff(3,8,55)
            A.I("v_add_u32 v6, 4096, v3")
        voff()
        if o.lin2: A.I("s_lshl_b32 s54, s3, 6\nv_add_u32 v5, s54, v7")
        else:
            A.I("v_lshrrev_b32 v5, 4, v1\nv_lshlrev_b32 v5, 4, v5\nv_and_b32 v8, 1, v1\nv_lshlrev_b32 v8, 3, v8\ns_lshl_b32 s54, s3, 6\nv_add3_u32 v5, v5, v8, s54")
        def ld(q):
            r=64+4*q
            return f"buffer_load_dwordx4 v[{r}:{r+3}], v{3 if q<4 else 6}, s[40:43], 0 offen offset:{1024*(q%4)} sc1"
        def sums(n, ldsoff):
            A.I("v_add_f32 v10, v64, v68\nv_add_f32 v11, v66, v70\nv_add_f32 v12, v72, v76\nv_add_f32 v13, v74, v78")
            A.I("v_add_f32 v14, v80, v84\nv_add_f32 v15, v82, v86")
            if n==8: A.I("v_add_f32 v16, v88, v92\nv_add_f32 v17, v90, v94")
            else: A.I("v_mov_b32 v16, v88\nv_mov_b32 v17, v90")
            A.I("v_add_f32 v10, v10, v12\nv_add_f32 v11, v11, v13\nv_add_f32 v14, v14, v16\nv_add_f32 v15, v15, v17\nv_add_f32 v10, v10, v14\nv_add_f32 v11, v11, v15")
            if o.lin2:
                s.row_allreduce("v_add_f32",[10,11],(8,)); s.cross_rows("v_add_f32",[10,11],[12,13])
                A.I(f"s_mov_b64 exec, 0xff\nds_write_b64 v5, v[10:11] offset:{ldsoff}\ns_mov_b64 exec, -1\ns_waitcnt lgkmcnt(0)")
            else:
                s.row_allreduce("v_add_f32",[10,11],(2,4,8))
                A.I(f"s_mov_b32 exec_lo, 0x00030003\ns_mov_b32 exec_hi, 0x00030003\nds_write_b64 v5, v[10:11] offset:{ldsoff}\ns_mov_b64 exec, -1\ns_waitcnt lgkmcnt(0)")
        def gather(ldsoff):
            for w in range(4): A.I(f"ds_read_b64 v[{12+2*w}:{13+2*w}], v7 offset:{ldsoff+64*w}")
            A.I("s_waitcnt lgkmcnt(0)")
            A.I("v_add_f32 v10, v12, v14\nv_add_f32 v11, v13, v15\nv_add_f32 v16, v16, v18\nv_add_f32 v17, v17, v19\nv_add_f32 v10, v10, v16\nv_add_f32 v11, v11, v17")
        s.poll("L_py", [ld(q) for q in range(7)], [65+2*i for i in range(14)], 9, sleep=4)
        sums(7, L_Y)
        A.I(f"s_lshl_b32 s54, s2, 15\ns_lshl_b32 s55, s3, 13\ns_add_u32 s55, s55, s54\ns_add_u32 s55, s55, {WS_SP}")
        voff()
        A.I("v_lshlrev_b32 v24, 16, v4\nv_and_b32 v25, 0xffff0000, v4")
        if not o.st2: s.stamp(6)
        A.I("s_barrier")
        gather(L_Y)
        for r in range(2): s.bf16r(20+r,10+r)
        for r in range(2): A.I(f"v_mul_f32 v{22+r}, {hex(f2u(-1.4426950408889634))}, v{20+r}")
        for r in range(2): A.I(f"v_exp_f32 v{22+r}, v{22+r}")
        for r in range(2): A.I(f"v_add_f32 v{22+r}, 1.0, v{22+r}")
        for r in range(2): A.I(f"v_rcp_f32 v{22+r}, v{22+r}")
        for r in range(2): A.I(f"v_mul_f32 v{20+r}, v{20+r}, v{22+r}")
        for r in range(2): s.bf16r(20+r,20+r)
        s.poll("L_ps", [ld(q) for q in range(8)], [65+2*i for i in range(16)], 9)
        sums(8, L_S)
        A.I("s_barrier")
        A.I("s_cmp_lg_u32 s3, 0\ns_cbranch_scc1 L_fin_done")
        gather(L_S)
        for r in range(2): s.bf16r(10+r,10+r)
        for r in range(2): A.I(f"v_mul_f32 v{10+r}, v{10+r}, v{20+r}")
        for r in range(2): s.bf16r(10+r,10+r)
        for r in range(2): A.I(f"v_add_f32 v{10+r}, v{10+r}, v{24+r}")
        A.I("v_cvt_pk_bf16_f32 v14, v10, v11")
        A.I("s_mov_b64 exec, 0xff")
        A.I("buffer_store_dword v14, v2, s[36:39], 0 offen")
        A.I("s_cmp_lg_u32 s2, 0\ns_cbranch_scc1 L_fin_x")
        A.I("s_mov_b64 exec, 1")
        A.I("v_mov_b32 v16, 0\nv_mov_b32 v17, s6\nbuffer_store_dword v17, v16, s[40:43], 0 offen")
        A.label("L_fin_x")
        A.I("s_mov_b64 exec, -1")
        A.label("L_fin_done")
        if not o.st2: s.stamp(7)

    def ldsgate(s, name, off, sleep=2):
        A=s.A
        A.I(f"s_mov_b32 s62, {s.o.timeout}\nv_mov_b32 v8, 0")
        A.label(name)
        A.I(f"ds_read_b32 v9, v8 offset:{off}\ns_waitcnt lgkmcnt(0)\nv_cmp_eq_u32 vcc, 0, v9")
        A.I(f"s_cbranch_vccz {name}_ok\ns_sleep {sleep}\ns_sub_u32 s62, s62, 1\ns_cmp_lg_u32 s62, 0\ns_cbranch_scc1 {name}")
        A.label(name+"_ok")
    def qpoll(s, name, quarters, gate=True):
        A=s.A
        if s.o.dbg&16: return
        if gate: s.ldsgate(name+"_g", L_F)
        nq=len(quarters); q0=quarters[0]
        A.I(f"s_lshl_b32 s55, s4, 14\ns_add_u32 s55, s55, {WS_QX+q0*1024}")
        if s.o.q2:
            A.I("v_and_b32 v8, 3, v1\nv_lshlrev_b32 v8, 12, v8\nv_lshrrev_b32 v7, 2, v1\nv_lshlrev_b32 v7, 9, v7\nv_add3_u32 v8, v8, v7, s55")
            m=(1<<(8*nq))-1
            s.poll(name+"a", [f"s_mov_b64 exec, {hex(m)}", "buffer_load_dwordx4 v[64:67], v8, s[40:43], 0 offen sc1"], [65], 9, sleep=s.o.qsleep, lanes=m)
        A.I("v_lshlrev_b32 v8, 4, v1\nv_add_u32 v8, s55, v8")
        A.I("v_add_u32 v7, 8192, v8\ns_mov_b32 s58, 4096")
        loads=[]; tags=[]
        for qi in range(nq):
            r=64+16*qi
            loads+=[f"buffer_load_dwordx4 v[{r}:{r+3}], v8, s[40:43], 0 offen offset:{1024*qi} sc1", f"buffer_load_dwordx4 v[{r+4}:{r+7}], v8, s[40:43], s58 offen offset:{1024*qi} sc1",
                    f"buffer_load_dwordx4 v[{r+8}:{r+11}], v7, s[40:43], 0 offen offset:{1024*qi} sc1", f"buffer_load_dwordx4 v[{r+12}:{r+15}], v7, s[40:43], s58 offen offset:{1024*qi} sc1"]
            tags+=[r+1+2*i for i in range(8)]
        s.poll(name, loads, tags, 9, sleep=s.o.qsleep)
        A.I("v_lshlrev_b32 v9, 2, v1")
        for qi in range(nq):
            r=64+16*qi
            A.I(f"v_add_f32 v10, v{r}, v{r+4}\nv_add_f32 v11, v{r+2}, v{r+6}\nv_add_f32 v12, v{r+8}, v{r+12}\nv_add_f32 v13, v{r+10}, v{r+14}")
            A.I(f"v_add_f32 v10, v10, v12\nv_add_f32 v11, v11, v13\nv_cvt_pk_bf16_f32 v{14+qi}, v10, v11")
            A.I(f"ds_write_b32 v9, v{14+qi} offset:{L_Q+256*(q0+qi)}")
        A.I("s_waitcnt lgkmcnt(0)")
        A.I(f"v_mov_b32 v8, 0\nv_mov_b32 v9, 1")
        for qi in range(nq): A.I(f"ds_write_b32 v8, v9 offset:{L_G+4*(q0+qi)}")
    def h0(s):
        A=s.A; o=s.o
        wf=" nt" if o.wnt else ""
        A.label("L_h0")
        if o.dbg&1:
            A.I("s_barrier"); s.stamps_out(); A.I("s_endpgm"); return
        s.srd(32,8,896); s.srd(36,14,448*8192); s.srd(40,30,WS_SIZE)
        if o.dbg&32:
            A.I("s_barrier"); A.I("s_waitcnt lgkmcnt(0)"); s.tag_from_E(); s.qpoll("L_pq0",[0]); s.stamps_out(); A.I("s_endpgm"); return
        if not o.dbg&256: A.I("v_lshlrev_b32 v2, 4, v1\nbuffer_load_dwordx4 v[4:7], v2, s[32:35], 0 offen")
        if o.dyn:
            A.I(f"s_and_b32 s54, s2, 7\ns_cmp_lg_u32 s54, 0\ns_cbranch_scc1 L_h0_noinit")
            A.I(f"s_lshl_b32 s54, s2, 5\ns_add_u32 s54, s54, {WS_CT}\nv_mov_b32 v8, s54\nv_mov_b32 v9, 0\ns_mov_b64 exec, 1\nbuffer_store_dword v9, v8, s[40:43], 0 offen sc1\ns_mov_b64 exec, -1")
            A.label("L_h0_noinit")
        A.I("s_and_b32 s54, s5, 7\ns_lshr_b32 s59, s5, 3")
        A.I(f"s_lshl_b32 s55, s4, 10\ns_lshl_b32 s56, s54, 7\ns_add_u32 s55, s55, s56\ns_mul_i32 s56, s59, {112*8192}\ns_add_u32 s55, s55, s56")
        A.I("v_lshrrev_b32 v3, 3, v1\nv_lshlrev_b32 v3, 13, v3\nv_and_b32 v8, 7, v1\nv_lshlrev_b32 v8, 4, v8\nv_add3_u32 v3, v3, v8, s55")
        for k in range(14):
            A.I(f"s_mov_b32 s57, {k*65536}\nbuffer_load_dwordx4 v[{64+4*k}:{67+4*k}], v3, s[36:39], s57 offen{wf}")
        A.I("s_barrier")
        if o.dbg&128:
            A.I("s_waitcnt vmcnt(0)"); s.stamp(1); s.stamps_out(); A.I("s_endpgm"); return
        A.I("s_waitcnt vmcnt(14)")
        s.layernorm(L_X)
        s.tag_from_E()
        A.I(f"v_mov_b32 v8, 0\nv_mov_b32 v9, 1\nds_write_b32 v8, v9 offset:{L_F+4}")
        A.I(f"s_mul_i32 s56, s59, {112*4}\nv_lshrrev_b32 v9, 3, v1\nv_lshlrev_b32 v9, 2, v9\nv_add_u32 v9, s56, v9")
        for k in range(14): A.I(f"ds_read_b32 v{32+k}, v9 offset:{L_X+32*k}")
        for i in range(8): A.I(f"v_mov_b32 v{10+i}, 0")
        A.I(f"s_lshl_b32 s55, s4, 14\ns_lshl_b32 s56, s59, 12\ns_add_u32 s55, s55, s56\ns_lshl_b32 s56, s54, 9\ns_add_u32 s55, s55, s56\ns_add_u32 s55, s55, {WS_QX}")
        s.pub8_voff(2,8,55)
        A.I("s_waitcnt lgkmcnt(0)")
        for k in range(14): A.I(f"v_lshlrev_b32 v{46+k}, 16, v{32+k}")
        for k in range(14):
            A.I(f"s_waitcnt vmcnt({13-k})")
            for d in range(4):
                A.I(f"v_dot2c_f32_bf16 v{10+2*d}, v{64+4*k+d}, v{32+k}\nv_dot2c_f32_bf16 v{11+2*d}, v{64+4*k+d}, v{46+k}")
        s.stamp(1)
        s.reduce8(10)
        if not o.dbg&64: s.pub8(10,2,40)
        A.I(f"v_mov_b32 v8, 0\nv_mov_b32 v9, 1\nds_write_b32 v8, v9 offset:{L_F}")
        s.stamp(2)
        s.qpoll("L_pq0", [0], gate=False)
        s.stamp(3)
        s.stamps_out()
        A.I("s_endpgm")

    def h1(s):
        A=s.A; o=s.o
        wf=" nt" if o.wnt else ""
        A.label("L_h1")
        A.I("s_barrier")
        s.srd(40,30,WS_SIZE)
        A.I("s_waitcnt lgkmcnt(0)")
        s.tag_from_E()
        if o.dbg&2:
            A.I("s_endpgm"); return
        A.I("s_cmp_ge_u32 s2, 224\ns_cbranch_scc1 L_end")
        s.ldsgate("L_xg", L_F+4, sleep=4)
        s.srd(36,20,448*3584); s.srd(44,22,448*3584); s.srd(48,24,1792*896)
        A.I("s_lshr_b32 s54, s2, 3\ns_and_b32 s59, s2, 7")
        A.I(f"s_lshl_b32 s55, s54, 7\ns_mul_i32 s56, s59, {56*3584}\ns_add_u32 s55, s55, s56")
        A.I("v_lshrrev_b32 v3, 3, v1\nv_mul_u32_u24 v3, 3584, v3\nv_and_b32 v8, 7, v1\nv_lshlrev_b32 v8, 4, v8\nv_add3_u32 v3, v3, v8, s55")
        for k in range(7):
            A.I(f"s_mov_b32 s57, {k*28672}")
            if o.hp1 and 2*k>=o.hp1: A.I(f"s_waitcnt vmcnt({o.hp1-1})")
            A.I(f"buffer_load_dwordx4 v[{64+4*k}:{67+4*k}], v3, s[36:39], s57 offen{wf}")
            if o.hp1 and 2*k+1>=o.hp1: A.I(f"s_waitcnt vmcnt({o.hp1-1})")
            A.I(f"buffer_load_dwordx4 v[{92+4*k}:{95+4*k}], v3, s[44:47], s57 offen{wf}")
        A.I("v_lshrrev_b32 v8, 4, v1\nv_lshlrev_b32 v8, 1, v8\ns_lshl_b32 s55, s2, 3\nv_add_u32 v8, s55, v8\nv_mul_u32_u24 v8, 896, v8\nv_and_b32 v9, 15, v1\nv_lshlrev_b32 v9, 4, v9\nv_add_u32 v8, v8, v9")
        for t in range(2):
            for cb in range(4):
                r=120+16*t+4*cb
                if o.hp1: A.I(f"s_waitcnt vmcnt({o.hp1-1})")
                if cb==3: A.I("s_mov_b32 exec_lo, 0x00ff00ff\ns_mov_b32 exec_hi, 0x00ff00ff")
                A.I(f"buffer_load_dwordx4 v[{r}:{r+3}], v8, s[48:51], 0 offen offset:{t*896+cb*256}{wf}")
                if cb==3: A.I("s_mov_b64 exec, -1")
        A.I(f"s_mul_i32 s56, s59, {56*4}\nv_lshrrev_b32 v9, 3, v1\nv_lshlrev_b32 v9, 2, v9\nv_add_u32 v9, s56, v9")
        for k in range(7): A.I(f"ds_read_b32 v{32+k}, v9 offset:{L_X+32*k}")
        for i in range(16): A.I(f"v_mov_b32 v{10+i}, 0")
        A.I(f"s_mul_i32 s55, s59, 14336\ns_lshl_b32 s56, s54, 9\ns_add_u32 s55, s55, s56\ns_add_u32 s55, s55, {WS_GX}")
        s.pub8_voff(2,8,55)
        A.I(f"v_add_u32 v3, {8*14336}, v2")
        A.I("s_waitcnt lgkmcnt(0)")
        if o.dbg&1024:
            A.I("s_waitcnt vmcnt(0)"); s.stamp(1); s.stamps_out(); A.I("s_endpgm"); return
        for k in range(7): A.I(f"v_lshlrev_b32 v{46+k}, 16, v{32+k}")
        A.I("s_waitcnt vmcnt(8)")
        for k in range(7):
            for d in range(4):
                A.I(f"v_dot2c_f32_bf16 v{10+2*d}, v{64+4*k+d}, v{32+k}\nv_dot2c_f32_bf16 v{11+2*d}, v{64+4*k+d}, v{46+k}")
                A.I(f"v_dot2c_f32_bf16 v{18+2*d}, v{92+4*k+d}, v{32+k}\nv_dot2c_f32_bf16 v{19+2*d}, v{92+4*k+d}, v{46+k}")
        s.reduce8(10); s.reduce8(18)
        s.pub8(10,2,40); s.pub8(18,3,40)
        s.stamp(1)
        A.I(f"v_lshrrev_b32 v8, 3, v1\nv_bfe_u32 v9, v1, 2, 1\nv_lshlrev_b32 v9, 3, v9\nv_add_u32 v8, v8, v9\nv_mul_u32_u24 v8, 14336, v8")
        A.I(f"s_lshl_b32 s55, s2, 6\ns_add_u32 s55, s55, {WS_GX}\nv_and_b32 v9, 3, v1\nv_lshlrev_b32 v9, 4, v9\nv_add3_u32 v8, v8, v9, s55")
        s.make_masks(28,1,4,5)
        s.pub_voff(2,4,WS_YP)
        s.matvec_prep(56,160,"s6")
        s.poll("L_pg", ["buffer_load_dwordx4 v[64:67], v8, s[40:43], 0 offen sc1"], [65,67], 9, sleep=4)
        s.stamp(2)
        A.I("v_mov_b32 v10, v64\nv_mov_b32 v11, v66")
        s.row_allreduce("v_add_f32",[10,11],(8,))
        s.cross_rows("v_add_f32",[10,11],[12,13])
        for e in range(2): s.bf16r(10+e,10+e)
        for e in range(2): A.I(f"v_mov_b32_dpp v{14+e}, v{10+e} row_ror:4 row_mask:0xf bank_mask:0xf")
        k1=-2*0.7978845608028654*1.4426950408889634
        A.I(f"v_mov_b32 v26, {hex(f2u(0.044715))}\nv_mov_b32 v27, {hex(f2u(k1))}")
        for e in range(2): A.I(f"v_mul_f32 v{18+e}, v{10+e}, v{10+e}")
        for e in range(2): A.I(f"v_fma_f32 v{18+e}, v{18+e}, v26, 1.0")
        for e in range(2): A.I(f"v_mul_f32 v{18+e}, v{18+e}, v{10+e}")
        for e in range(2): A.I(f"v_mul_f32 v{18+e}, v27, v{18+e}")
        for e in range(2): A.I(f"v_exp_f32 v{18+e}, v{18+e}")
        for e in range(2): A.I(f"v_add_f32 v{18+e}, 1.0, v{18+e}")
        for e in range(2): A.I(f"v_rcp_f32 v{18+e}, v{18+e}")
        for e in range(2): A.I(f"v_mul_f32 v{18+e}, v{18+e}, v{10+e}")
        for e in range(2): s.bf16r(18+e,18+e)
        for e in range(2): A.I(f"v_mul_f32 v{18+e}, v{18+e}, v{14+e}")
        for e in range(2): A.I(f"v_cvt_pk_bf16_f32 v{18+e}, v{18+e}, v{18+e}")
        for t in range(2): s.bcast_rows(22+t,18+t,lambda kg:kg)
        A.I("s_waitcnt vmcnt(0)")
        if o.dbg&512:
            s.stamp(3); s.stamps_out(); A.I("s_endpgm"); return
        s.matvec_publish(2,[22,23],lambda t,cb:120+16*t+4*cb,28,40,32,2,40,56,160)
        s.stamp(3)
        s.stamps_out()
        A.I("s_endpgm")

    def h2(s):
        A=s.A; o=s.o
        wf=" nt" if o.wnt else ""
        A.label("L_h2")
        A.I("s_barrier")
        s.srd(36,16,4096*896); s.srd(40,30,WS_SIZE)
        A.I("s_waitcnt lgkmcnt(0)")
        s.tag_from_E()
        if not o.dbg&1: s.qpoll("L_pq2", [1,2])
        if o.dbg&4:
            A.I("s_endpgm"); return
        if o.wodelay and o.dyn:
            A.I(f"s_mov_b32 s62, {o.timeout}\nv_mov_b32 v0, 0")
            A.label("L_wod", flush=True)
            A.I(f"ds_read_b32 v9, v0 offset:{L_P}\ns_waitcnt lgkmcnt(0)\nv_readfirstlane_b32 s54, v9")
            A.I(f"s_cmp_ge_u32 s54, {o.wodelay}\ns_cbranch_scc1 L_wod_ok\ns_sub_u32 s62, s62, 1\ns_cmp_eq_u32 s62, 0\ns_cbranch_scc1 L_wod_ok\ns_sleep 8\ns_branch L_wod")
            A.label("L_wod_ok", flush=True)
        A.I("s_lshl_b32 s54, s2, 4")
        A.I("v_lshrrev_b32 v8, 4, v1\nv_lshlrev_b32 v8, 2, v8\nv_add_u32 v8, s54, v8\nv_mul_u32_u24 v8, 896, v8\nv_and_b32 v9, 15, v1\nv_lshlrev_b32 v9, 4, v9\nv_add_u32 v8, v8, v9")
        for t in range(4):
            for cb in range(4):
                r=64+16*t+4*cb
                if o.hp2 and 4*t+cb>=o.hp2: A.I(f"s_waitcnt vmcnt({o.hp2-1})")
                if cb==3: A.I("s_mov_b32 exec_lo, 0x00ff00ff\ns_mov_b32 exec_hi, 0x00ff00ff")
                A.I(f"buffer_load_dwordx4 v[{r}:{r+3}], v8, s[36:39], 0 offen offset:{t*896+cb*256}{wf}")
                if cb==3: A.I("s_mov_b64 exec, -1")
        s.make_masks(28,1,8,9)
        A.I(f"s_lshl_b32 s54, s2, 12\ns_add_u32 s54, s54, {WS_H1}")
        if o.lin1: A.I("v_lshlrev_b32 v3, 4, v1\nv_add_u32 v3, s54, v3")
        else: s.rowsplit_voff(3,8,54)
        s.pub_voff(2,8,WS_SP)
        s.matvec_prep(56,160,"s6")
        if o.lin1:
            A.I("v_lshrrev_b32 v58, 4, v1\nv_mul_u32_u24 v58, 72, v58\nv_add_u32 v59, 4, v58")
        A.I("s_barrier")
        s.stamp(1)
        loadso=[f"buffer_load_dwordx4 v[{128+4*q}:{131+4*q}], v3, s[40:43], 0 offen offset:{1024*q} sc1" for q in range(4)]
        s.poll("L_p1", loadso, [131,135,139,143], 9, sleep=o.h1sleep)
        s.stamp(2)
        for q in range(4): A.I(f"v_mov_b32_dpp v{144+q}, v{130+4*q} quad_perm:[0,0,2,2] row_mask:0xf bank_mask:0xf")
        A.I("v_max3_f32 v10, v144, v145, v146\nv_max_f32 v10, v10, v147")
        if o.lin1:
            for q in range(4): A.I(f"v_mov_b32_dpp v{148+q}, v{130+4*q} quad_perm:[1,1,3,3] row_mask:0xf bank_mask:0xf")
            s.row_allreduce("v_max_f32",[10],(8,)); s.cross_rows("v_max_f32",[10],[11])
        else:
            for i,st_ in enumerate((2,4,8)):
                A.I(f"v_mov_b32_dpp v{148+i}, v{130+4*i} quad_perm:[1,1,3,3] row_mask:0xf bank_mask:0xf")
                if i==0: A.I(f"v_mov_b32_dpp v151, v142 quad_perm:[1,1,3,3] row_mask:0xf bank_mask:0xf")
                A.I(f"v_max_f32_dpp v10, v10, v10 row_ror:{st_} row_mask:0xf bank_mask:0xf")
        for q in range(4): A.I(f"v_sub_f32 v{12+q}, v{144+q}, v10")
        for q in range(4): A.I(f"v_exp_f32 v{12+q}, v{12+q}")
        A.I("v_mul_f32 v16, v12, v148\nv_mul_f32 v17, v12, v128\nv_mul_f32 v18, v12, v129")
        for q in range(1,4): A.I(f"v_fmac_f32 v16, v{12+q}, v{148+q}\nv_fmac_f32 v17, v{12+q}, v{128+4*q}\nv_fmac_f32 v18, v{12+q}, v{129+4*q}")
        if o.lin1:
            s.row_allreduce("v_add_f32",[16,17,18],(8,)); s.cross_rows("v_add_f32",[16,17,18],[19,20,21])
        else:
            s.row_allreduce("v_add_f32",[16,17,18],(2,4,8))
        A.I("v_rcp_f32 v16, v16")
        A.I("v_mul_f32 v17, v17, v16\nv_mul_f32 v18, v18, v16")
        A.I("v_cvt_pk_bf16_f32 v17, v17, v17\nv_cvt_pk_bf16_f32 v18, v18, v18")
        if o.lin1:
            A.I("ds_bpermute_b32 v22, v58, v17\nds_bpermute_b32 v23, v58, v18\nds_bpermute_b32 v24, v59, v17\nds_bpermute_b32 v25, v59, v18\ns_waitcnt lgkmcnt(0)")
        else:
            A.I("v_mov_b32_dpp v22, v17 quad_perm:[0,0,2,2] row_mask:0xf bank_mask:0xf\nv_mov_b32_dpp v23, v18 quad_perm:[0,0,2,2] row_mask:0xf bank_mask:0xf")
            A.I("v_mov_b32_dpp v24, v17 quad_perm:[1,1,3,3] row_mask:0xf bank_mask:0xf\nv_mov_b32_dpp v25, v18 quad_perm:[1,1,3,3] row_mask:0xf bank_mask:0xf")
        s.matvec_publish(4,[22,23,24,25],lambda t,cb:64+16*t+4*cb,28,40,32,2,40,56,160)
        s.stamp(3)
        A.I("s_barrier")
        s.stamps_out()
        A.I("s_endpgm")

    def h3(s):
        A=s.A; o=s.o
        A.label("L_h3")
        assert 8*o.dyn+4 <= 128
        A.I(f"v_lshlrev_b32 v8, 2, v1\nv_mov_b32 v9, {hex(Q_EMPTY)}\nv_mov_b32 v10, 0")
        A.I(f"s_mov_b64 exec, 0xff\nds_write_b32 v8, v10 offset:{L_F}\ns_mov_b64 exec, 1\nds_write_b32 v10, v10 offset:{L_P}\ns_mov_b64 exec, -1")
        if o.dyn: A.I(f"ds_write_b32 v8, v9 offset:{L_QU}\nds_write_b32 v8, v9 offset:{L_QU+256}")
        A.I("s_waitcnt lgkmcnt(0)")
        A.I("s_barrier")
        s.srd(40,30,WS_SIZE)
        s.tag_from_E()
        if not o.dbg&1: s.qpoll("L_pq3", [3])
        if o.dyn:
            S=32-o.dyn; NP=8*o.dyn
            A.I("s_mov_b64 exec, 1")
            A.I(f"s_lshr_b32 s54, s2, 3\ns_lshl_b32 s54, s54, 8\ns_add_u32 s54, s54, {WS_CT}\nv_mov_b32 v8, s54\nv_mov_b32 v0, 0")
            A.I("s_and_b32 s48, s5, 24")
            A.I(f"s_mov_b32 s46, 0\ns_mov_b32 s47, {S-o.lead}")
            def waitprog(nm):
                A.I(f"s_mov_b32 s62, {o.timeout}")
                A.label(nm, flush=False)
                A.I(f"ds_read_b32 v9, v0 offset:{L_P}\ns_waitcnt lgkmcnt(0)\nv_readfirstlane_b32 s54, v9")
                A.I(f"s_cmp_ge_u32 s54, s47\ns_cbranch_scc1 {nm}_ok\ns_sub_u32 s62, s62, 1\ns_cmp_eq_u32 s62, 0\ns_cbranch_scc1 L_dsp_end")
                A.I(f"s_sleep 1\ns_branch {nm}")
                A.label(nm+"_ok", flush=False)
            def grab(r):
                A.I(f"v_mov_b32 v{r}, 1\nbuffer_atomic_add v{r}, v8, s[40:43], 0 offen sc0")
                A.I("s_add_u32 s46, s46, 1\ns_add_u32 s47, s47, 1")
            def retire(r, n):
                A.I(f"s_waitcnt vmcnt({n})\nv_readfirstlane_b32 s54, v{r}")
                A.I(f"s_cmp_ge_u32 s54, {NP}\ns_cbranch_scc1 L_dsp_end")
                A.I(f"s_and_b32 s55, s54, 7\ns_add_u32 s55, s55, s48\ns_lshl_b32 s55, s55, 18\ns_lshr_b32 s54, s54, 3\ns_add_u32 s54, s54, {S}\ns_lshl_b32 s54, s54, 13\ns_add_u32 s55, s55, s54")
                A.I(f"s_lshl_b32 s54, s49, 2\nv_mov_b32 v9, s54\nv_mov_b32 v13, s55\nds_write_b32 v9, v13 offset:{L_QU}\ns_add_u32 s49, s49, 1")
            A.I("s_mov_b32 s49, 0")
            waitprog("L_w0"); grab(10)
            waitprog("L_w1"); grab(11)
            A.label("L_dsp", flush=True)
            for i,(g_,r_) in enumerate(((12,10),(10,11),(11,12))):
                waitprog(f"L_wp{i}"); grab(g_); retire(r_,2)
            A.I("s_branch L_dsp")
            A.label("L_dsp_end", flush=True)
            A.I(f"s_lshl_b32 s54, s49, 2\nv_mov_b32 v9, s54\nv_mov_b32 v13, {hex(Q_END)}\nds_write_b32 v9, v13 offset:{L_QU}\ns_waitcnt lgkmcnt(0) vmcnt(0)")
        A.I("s_endpgm")

    def build(s):
        A=s.A; o=s.o
        A.raw(HDR.rstrip())
        A.raw(f"; @launch grid=(256,1,1) block=(512,1,1) lds={LDS}")
        A.raw('.amdgcn_target "amdgcn-amd-amdhsa--gfx950"')
        A.raw(".text"); A.raw(f".globl {NAME}_kernel"); A.raw(".p2align 8"); A.raw(f".type {NAME}_kernel,@function"); A.raw(f"{NAME}_kernel:")
        A.I("s_cmp_ge_u32 s2, 256\ns_cbranch_scc1 L_end")
        s.zero_stamps()
        s.stamp(0)
        A.I("s_load_dwordx8 s[8:15], s[0:1], 0\ns_load_dwordx8 s[16:23], s[0:1], 32\ns_load_dwordx8 s[24:31], s[0:1], 64")
        A.I("v_lshrrev_b32 v2, 6, v0\nv_and_b32 v1, 63, v0\nv_readfirstlane_b32 s3, v2")
        A.I("s_lshr_b32 s4, s2, 5\ns_and_b32 s5, s2, 31")
        A.I("s_cmp_ge_u32 s3, 4\ns_cbranch_scc1 L_helpers")
        s.stream()
        A.hist=[]
        A.label("L_helpers", flush=False)
        A.I("s_waitcnt lgkmcnt(0)")
        A.I("s_load_dword s6, s[30:31], 0")
        A.I("s_cmp_eq_u32 s3, 5\ns_cbranch_scc1 L_h1\ns_cmp_eq_u32 s3, 6\ns_cbranch_scc1 L_h2\ns_cmp_eq_u32 s3, 7\ns_cbranch_scc1 L_h3")
        s.h0(); A.hist=[]
        s.h1(); A.hist=[]
        s.h2(); A.hist=[]
        s.h3(); A.hist=[]
        A.label("L_end", flush=False)
        A.I("s_endpgm")
        A.raw('.section .rodata,"a"'); A.raw(".p2align 6"); A.raw(f".amdhsa_kernel {NAME}_kernel")
        A.raw("  .amdhsa_next_free_vgpr 256\n  .amdhsa_next_free_sgpr 102\n  .amdhsa_accum_offset 256\n  .amdhsa_group_segment_fixed_size 0\n  .amdhsa_kernarg_size 96\n  .amdhsa_user_sgpr_count 2\n  .amdhsa_user_sgpr_kernarg_segment_ptr 1\n  .amdhsa_system_sgpr_workgroup_id_x 1\n  .amdhsa_float_denorm_mode_32 3\n.end_amdhsa_kernel")
        return A.text()

if __name__=="__main__":
    ap=argparse.ArgumentParser()
    ap.add_argument("-o",dest="out",default="k.s")
    ap.add_argument("--p",type=int,default=13)
    ap.add_argument("--ns",type=int,default=13)
    ap.add_argument("--d",type=int,default=8)
    ap.add_argument("--rot",type=int,default=0)
    ap.add_argument("--nt",type=int,default=1)
    ap.add_argument("--wnt",type=int,default=1)
    ap.add_argument("--thr",type=float,default=8.0)
    ap.add_argument("--timeout",type=int,default=200000)
    ap.add_argument("--stamps",type=int,default=0)
    ap.add_argument("--dbg",type=int,default=0)
    ap.add_argument("--qsleep",type=int,default=2)
    ap.add_argument("--q2",type=int,default=1)
    ap.add_argument("--dyn",type=int,default=8)
    ap.add_argument("--lin1",type=int,default=0)
    ap.add_argument("--lin2",type=int,default=1)
    ap.add_argument("--hp1",type=int,default=3)
    ap.add_argument("--hp2",type=int,default=2)
    ap.add_argument("--st2",type=int,default=0)
    ap.add_argument("--wodelay",type=int,default=0)
    ap.add_argument("--lead",type=int,default=5)
    ap.add_argument("--d0",type=int,default=4)
    ap.add_argument("--h1two",type=int,default=0)
    ap.add_argument("--h1sleep",type=int,default=1)
    o=ap.parse_args()
    open(o.out,"w").write(G(o).build())
```

```python
import sys, argparse
from asmlib import Asm
NAME="recurrent_scan__gqa_block_cached__geglu_ffn__decode"
HDR = """; Kernarg layout for this problem (96 bytes, ptrs only, base s[0:1]):
"""
WS_ML=0x8000; WS_CT=0x10000; WS_QX=0x20000; WS_GX=0x40000; WS_YP=0x80000; WS_H1=0x180000; WS_SP=0x280000; WS_ST=0x380000; WS_SIZE=0x400000
FSTR=32768
L_Q=0; L_O=2048; L_M=10240; L_F=10496; L_G=10512; L_Y=10752; L_S=11008; L_QU=11264; L_P=11776; L_X=12288; LDS=16384
Q_EMPTY=0xfffffffe; Q_END=0xffffffff
C_SCALE=0x3db8aa3b
def f2u(x):
    import struct; return struct.unpack('<I',struct.pack('<f',x))[0]

class G:
    def __init__(s, o):
        s.o=o; s.A=Asm(); s.nst=0
    def stamp(s, i):
        if s.o.stamps: s.A.I(f"s_memrealtime s[{80+2*i}:{81+2*i}]")
    def stamps_out(s):
        if not s.o.stamps: return
        A=s.A
        A.I("s_waitcnt vmcnt(0) lgkmcnt(0)")
        A.I("s_mov_b64 exec, 1")
        A.I(f"s_lshl_b32 s60, s2, 3\ns_add_u32 s60, s60, s3\ns_lshl_b32 s60, s60, 6\ns_add_u32 s60, s60, {WS_ST}")
        A.I("s_mov_b32 s72, s30\ns_mov_b32 s73, s31\ns_mov_b32 s74, %d\ns_mov_b32 s75, 0x20000"%WS_SIZE)
        A.I("v_mov_b32 v2, s60")
        for q in range(4):
            for r in range(4): A.I(f"v_mov_b32 v{4+r}, s{80+4*q+r}")
            A.I(f"buffer_store_dwordx4 v[4:7], v2, s[72:75], 0 offen offset:{16*q}")
            A.I("s_waitcnt vmcnt(0)")
        A.I("s_mov_b64 exec, -1")
    def zero_stamps(s):
        if s.o.stamps:
            for i in range(16): s.A.I(f"s_mov_b32 s{80+i}, 0")
            s.A.I("s_nop 0")
    def srd(s, r, lo, size):
        s.A.I(f"s_mov_b32 s{r}, s{lo}\ns_mov_b32 s{r+1}, s{lo+1}\ns_mov_b32 s{r+2}, {size}\ns_mov_b32 s{r+3}, 0x20000")
    def row_allreduce(s, op, regs, steps=(8,4,2,1)):
        for st in steps:
            for r in regs: s.A.I(f"{op}_dpp v{r}, v{r}, v{r} row_ror:{st} row_mask:0xf bank_mask:0xf")
    def cross_rows(s, op, regs, tmps):
        A=s.A
        for sw in ("v_permlane16_swap_b32","v_permlane32_swap_b32"):
            for r,t in zip(regs,tmps): A.I(f"v_mov_b32 v{t}, v{r}")
            for r,t in zip(regs,tmps): A.I(f"{sw} v{r}, v{t}")
            for r,t in zip(regs,tmps): A.I(f"{op} v{r}, v{r}, v{t}")
    def wave_allreduce(s, op, regs, tmps):
        s.row_allreduce(op, regs); s.cross_rows(op, regs, tmps)
    def bf16r(s, dst, src):
        s.A.I(f"v_cvt_pk_bf16_f32 v{dst}, v{src}, 0\nv_lshlrev_b32 v{dst}, 16, v{dst}")
    def make_masks(s, m0, lane, t0, t1):
        A=s.A
        A.I(f"v_and_b32 v{t0}, 1, v{lane}\nv_lshlrev_b32 v{t0}, 4, v{t0}\nv_mov_b32 v{t1}, 0xffff\nv_lshlrev_b32 v{t0}, v{t0}, v{t1}")
        A.I(f"v_bfe_u32 v{t1}, v{lane}, 1, 2")
        for r in range(4):
            A.I(f"v_cmp_eq_u32 vcc, {r}, v{t1}\nv_cndmask_b32 v{m0+r}, 0, v{t0}, vcc")
    def tag_from_E(s):
        s.A.I("s_mul_i32 s6, s6, 0x9E3779B1\ns_add_u32 s6, s6, 0x7F4A7C15")
    def poll(s, name, loads, tags, acc, pre=None, sleep=0, lanes=None):
        A=s.A
        A.I(f"s_mov_b32 s62, {s.o.timeout}")
        A.label(name)
        if pre: A.I(pre)
        for l in loads: A.I(l)
        if lanes is None: A.I("s_mov_b64 exec, -1")
        A.I("s_waitcnt vmcnt(0)")
        A.I(f"v_xor_b32 v{acc}, s6, v{tags[0]}")
        for t in tags[1:]: A.I(f"v_bitop3_b32 v{acc}, v{t}, s6, v{acc} bitop3:0xbe")
        A.I(f"v_cmp_ne_u32 vcc, 0, v{acc}")
        A.I(f"s_cbranch_vccz {name}_ok")
        if sleep: A.I(f"s_sleep {sleep}")
        A.I("s_sub_u32 s62, s62, 1\ns_cmp_lg_u32 s62, 0")
        A.I(f"s_cbranch_scc1 {name}")
        A.label(name+"_ok")
        if lanes is not None: A.I("s_mov_b64 exec, -1")
    def layernorm(s, ldsbase):
        A=s.A
        for d in range(4):
            A.I(f"v_lshlrev_b32 v{10+2*d}, 16, v{4+d}\nv_and_b32 v{11+2*d}, 0xffff0000, v{4+d}")
        A.I("v_add_f32 v18, v10, v11\nv_add_f32 v19, v12, v13\nv_add_f32 v20, v14, v15\nv_add_f32 v21, v16, v17")
        A.I("v_add_f32 v18, v18, v19\nv_add_f32 v20, v20, v21\nv_add_f32 v18, v18, v20")
        s.wave_allreduce("v_add_f32",[18],[19])
        A.I(f"v_mul_f32 v18, {hex(f2u(1/448))}, v18")
        for i in range(8): A.I(f"v_sub_f32 v{20+i}, v{10+i}, v18")
        A.I("v_mul_f32 v19, v20, v20")
        for i in range(1,8): A.I(f"v_fmac_f32 v19, v{20+i}, v{20+i}")
        A.I("v_cmp_gt_u32 vcc, 56, v1\nv_cndmask_b32 v19, 0, v19, vcc")
        s.wave_allreduce("v_add_f32",[19],[20])
        A.I(f"v_mul_f32 v19, {hex(f2u(1/448))}, v19")
        s.bf16r(18,18); s.bf16r(19,19)
        A.I("v_add_f32 v19, 0x3727c5ac, v19"); s.bf16r(19,19)
        A.I("v_sqrt_f32 v19, v19"); s.bf16r(19,19)
        A.I("v_rcp_f32 v8, v19")
        for i in range(8): A.I(f"v_sub_f32 v{20+i}, v{10+i}, v18")
        for i in range(8): A.I(f"v_cvt_pk_bf16_f32 v{20+i}, v{20+i}, 0")
        for i in range(8): A.I(f"v_lshlrev_b32 v{20+i}, 16, v{20+i}")
        for i in range(8): A.I(f"v_mul_f32 v{10+i}, v{20+i}, v8")
        for i in range(8): A.I(f"v_fma_f32 v{20+i}, -v{10+i}, v19, v{20+i}")
        for i in range(8): A.I(f"v_fmac_f32 v{10+i}, v{20+i}, v8")
        for i in range(8): A.I(f"v_cvt_pk_bf16_f32 v{20+i}, v{10+i}, 0")
        A.I(f"v_lshlrev_b32 v9, 5, v1")
        A.I(f"ds_write_b128 v9, v[20:23] offset:{ldsbase}\nds_write_b128 v9, v[24:27] offset:{ldsbase+16}")
        A.I("s_waitcnt lgkmcnt(0)")
    def matvec_prep(s, px, st, tagv):
        A=s.A
        A.I(f"v_lshrrev_b32 v{px}, 2, v1\nv_bfe_u32 v{px+1}, v1, 1, 1\nv_lshlrev_b32 v{px+1}, 4, v{px+1}\nv_add_u32 v{px}, v{px}, v{px+1}")
        A.I(f"v_and_b32 v{px+1}, 1, v1\nv_lshlrev_b32 v{px+1}, 5, v{px+1}\nv_add_u32 v{px}, v{px}, v{px+1}\nv_lshlrev_b32 v{px}, 2, v{px}")
        for cb in range(4): A.I(f"v_mov_b32 v{st+4*cb+1}, {tagv}\nv_mov_b32 v{st+4*cb+3}, {tagv}")
        A.I("s_mov_b32 s70, 0\ns_mov_b32 s71, -1")
        for cb in range(4): A.I(f"s_mov_b32 s{64+cb}, {cb*8*FSTR}")
    def matvec_publish(s, nt, avals, wregs, masks, dacc, areg, voff, srd, px, st):
        A=s.A
        for t in range(nt):
            a=areg+4*(t%2)
            for r in range(4): A.I(f"v_and_b32 v{a+r}, v{avals[t]}, v{masks+r}")
            for cb in range(4):
                c = "0" if t==0 else f"v[{dacc+4*cb}:{dacc+4*cb+3}]"
                w=wregs(t,cb)
                A.I(f"v_mfma_f32_16x16x32_bf16 v[{dacc+4*cb}:{dacc+4*cb+3}], v[{a}:{a+3}], v[{w}:{w+3}], {c}")
        for cb in range(4):
            d=dacc+4*cb
            A.I(f"v_cndmask_b32 v{d}, v{d}, v{d+2}, s[70:71]")
            A.I(f"v_cndmask_b32 v{d+1}, v{d+1}, v{d+3}, s[70:71]")
            A.I(f"ds_bpermute_b32 v{st+4*cb}, v{px}, v{d}\nds_bpermute_b32 v{st+4*cb+2}, v{px}, v{d+1}")
        for cb in range(4):
            A.I("s_waitcnt lgkmcnt(%d)"%(0 if s.o.stamps else 6-2*cb))
            if cb==3: A.I("s_mov_b32 exec_hi, 0")
            A.I(f"buffer_store_dwordx4 v[{st+4*cb}:{st+4*cb+3}], v{voff}, s[{srd}:{srd+3}], s{64+cb} offen sc1")
        A.I("s_mov_b64 exec, -1")
    def pub_voff(s, dst, t0, base):
        A=s.A
        A.I(f"v_lshrrev_b32 v{dst}, 3, v1\nv_lshlrev_b32 v{dst}, 15, v{dst}\nv_and_b32 v{t0}, 7, v1\nv_lshlrev_b32 v{t0}, 4, v{t0}")
        A.I(f"s_lshl_b32 s55, s2, 7\ns_add_u32 s55, s55, {base}\nv_add3_u32 v{dst}, v{dst}, v{t0}, s55")
    def rowsplit_voff(s, dst, t0, sbase):
        A=s.A
        A.I(f"v_bfe_u32 v{dst}, v1, 1, 3\nv_lshlrev_b32 v{dst}, 7, v{dst}\nv_lshrrev_b32 v{t0}, 4, v1\nv_lshlrev_b32 v{t0}, 5, v{t0}\nv_add_u32 v{dst}, v{dst}, v{t0}")
        A.I(f"v_and_b32 v{t0}, 1, v1\nv_lshlrev_b32 v{t0}, 4, v{t0}\nv_add3_u32 v{dst}, v{dst}, v{t0}, s{sbase}")
    def reduce8(s, a):
        A=s.A
        for e in range(4): A.I(f"v_permlane32_swap_b32 v{a+e}, v{a+4+e}")
        for e in range(4): A.I(f"v_add_f32 v{a+e}, v{a+e}, v{a+4+e}")
        for e in range(2): A.I(f"v_permlane16_swap_b32 v{a+e}, v{a+2+e}")
        for e in range(2): A.I(f"v_add_f32 v{a+e}, v{a+e}, v{a+2+e}")
        s.row_allreduce("v_add_f32",[a,a+1],(8,))
    def pub8(s, a, voff, srd):
        A=s.A
        A.I(f"v_mov_b32 v{a+2}, v{a+1}\nv_mov_b32 v{a+1}, s6\nv_mov_b32 v{a+3}, s6")
        A.I("s_mov_b32 exec_lo, 0x00ff00ff\ns_mov_b32 exec_hi, 0x00ff00ff")
        A.I(f"buffer_store_dwordx4 v[{a}:{a+3}], v{voff}, s[{srd}:{srd+3}], 0 offen sc1")
        A.I("s_mov_b64 exec, -1")
    def pub8_voff(s, dst, t0, sbase):
        A=s.A
        A.I(f"v_and_b32 v{dst}, 7, v1\nv_lshlrev_b32 v{dst}, 6, v{dst}\nv_lshrrev_b32 v{t0}, 4, v1\nv_lshlrev_b32 v{t0}, 4, v{t0}\nv_add3_u32 v{dst}, v{dst}, v{t0}, s{sbase}")
    def bcast_rows(s, dst, src, lanefn):
        for kg in range(4):
            s.A.I(f"v_mov_b32_dpp v{dst}, v{src} row_newbcast:{lanefn(kg)} row_mask:{hex(1<<kg)} bank_mask:0xf")

    def stream(s):
        A=s.A; o=s.o
        VK,VV,NEGM,LS,CS,T=2,3,4,5,6,7
        MK=8; Q0=12; Q1=16; D=20; AP=24; O0=28; O1=32; P=36; RING=40
        NS=o.ns; DD=o.d; NSETS=32-o.dyn; LAG=DD//4; RS=LAG+1
        A.c("---- stream waves")
        A.I("v_bfe_u32 v8, v1, 2, 2\nv_lshlrev_b32 v8, 9, v8")
        A.I("v_lshrrev_b32 v9, 4, v1\nv_lshlrev_b32 v10, 6, v9")
        A.I("v_and_b32 v11, 3, v1\nv_lshlrev_b32 v11, 4, v11")
        A.I(f"v_add3_u32 v{VK}, v8, v10, v11")
        A.I("v_lshlrev_b32 v9, 9, v9\nv_and_b32 v10, 15, v1\nv_lshlrev_b32 v10, 4, v10")
        A.I(f"v_add_u32 v{VV}, v9, v10")
        A.I("s_lshl_b32 s55, s3, 11")
        A.I(f"v_add_u32 v{VK}, s55, v{VK}\nv_add_u32 v{VV}, s55, v{VV}\nv_mov_b32 v0, 0")
        A.I(f"s_lshl_b32 s44, s5, 18")
        A.I("s_lshl_b32 s55, s4, 23")
        A.I("s_waitcnt lgkmcnt(0)")
        if o.st2==2: s.stamp(5)
        A.I("s_add_u32 s32, s10, s55\ns_addc_u32 s33, s11, 0\ns_mov_b32 s34, 0x800000\ns_mov_b32 s35, 0x20000")
        A.I("s_add_u32 s36, s12, s55\ns_addc_u32 s37, s13, 0\ns_mov_b32 s38, 0x800000\ns_mov_b32 s39, 0x20000")
        st={'issued':0,'landed':0,'slot':{}, 'free':list(range(NS))}
        nt=" nt" if o.nt else ""
        def issue():
            x=st['issued']; se,part=divmod(x,4)
            if part==0:
                st['slot'][se]=st['free'].pop(0)
                if se>0: A.I("s_add_u32 s44, s44, 8192")
                if o.dyn and se>=NSETS-o.lead: A.I(f"v_mov_b32 v38, {se}\nds_max_u32 v0, v38 offset:{L_P}")
                if o.st2==1 and se==16: s.stamp(5)
                if o.st2==1 and se==20: s.stamp(6)
                if o.st2==1 and se==NSETS-1: s.stamp(7)
                if o.st2==2 and se==4: s.stamp(7)
            r=RING+16*st['slot'][se]+4*part
            if part<2: A.I(f"buffer_load_dwordx4 v[{r}:{r+3}], v{VK}, s[32:35], s44 offen offset:{256*part}{nt}")
            else: A.I(f"buffer_load_dwordx4 v[{r}:{r+3}], v{VV}, s[36:39], s44 offen offset:{256*(part-2)}{nt}")
            st['issued']+=1
        def can_issue():
            x=st['issued']
            if x>=4*NSETS: return False
            return (x%4!=0) or bool(st['free'])
        def wait_landed(n):
            if st['landed']>=n: return
            A.I(f"s_waitcnt vmcnt({st['issued']-n})"); st['landed']=n
        def pace(dd=None):
            dd = dd or DD
            x=st['issued']
            if x-st['landed']>=dd: wait_landed(x-dd+1)
            issue()
        for x in range(min(o.d0,4*o.p)): issue()
        A.I("s_barrier")
        DP = o.dp or DD
        if o.d0<DP:
            wait_landed(1)
            if o.st2==2: s.stamp(6)
            while st['issued']<DP: issue()
        while st['issued']<min(4*o.p, o.setup_at): pace(DP)
        A.I("s_load_dword s6, s[30:31], 0")
        s.make_masks(MK,1,37,38)
        A.I(f"v_mov_b32 v{CS}, {hex(C_SCALE)}\nv_mov_b32 v{NEGM}, 0\nv_mov_b32 v{LS}, 0")
        for r in range(8): A.I(f"v_mov_b32 v{O0+r}, 0")
        A.I("v_lshrrev_b32 v248, 3, v1\nv_lshlrev_b32 v248, 4, v248\ns_lshl_b32 s54, s3, 2\nv_add_u32 v248, s54, v248")
        A.I("v_lshrrev_b32 v249, 5, v1\nv_lshlrev_b32 v249, 10, v249\nv_and_b32 v37, 15, v1\nv_lshlrev_b32 v37, 5, v37\nv_add_u32 v249, v249, v37")
        A.I("v_bfe_u32 v37, v1, 4, 1\nv_lshlrev_b32 v37, 4, v37\ns_lshl_b32 s54, s3, 11\nv_add3_u32 v249, v249, v37, s54")
        A.I("s_lshr_b32 s54, s3, 1\ns_and_b32 s55, s3, 1\ns_lshl_b32 s55, s55, 6\nv_add_u32 v37, s55, v1")
        A.I("s_lshl_b32 s55, s54, 10\nv_lshlrev_b32 v250, 3, v37\nv_add_u32 v250, s55, v250")
        A.I("s_lshl_b32 s55, s54, 4\nv_mov_b32 v251, s55")
        s.srd(40,30,WS_SIZE)
        A.I(f"s_lshl_b32 s55, s4, 5\ns_lshl_b32 s56, s54, 4\ns_add_u32 s55, s55, s56\ns_lshl_b32 s55, s55, 12\ns_lshl_b32 s56, s5, 7\ns_add_u32 s55, s55, s56\ns_add_u32 s55, s55, {WS_H1}")
        A.I("v_lshrrev_b32 v252, 3, v37\nv_lshlrev_b32 v252, 12, v252\nv_and_b32 v37, 7, v37\nv_lshlrev_b32 v37, 4, v37\nv_add3_u32 v252, v252, v37, s55")
        while st['issued']<4*o.p: pace(DP)
        s.stamp(1)
        A.I("s_waitcnt lgkmcnt(0)")
        s.tag_from_E()
        if not (o.dbg&1):
            A.I(f"s_mov_b32 s62, {o.timeout}\nv_mov_b32 v39, 0")
            A.label("L_qw")
            A.I(f"ds_read_b128 v[20:23], v39 offset:{L_G}\ns_waitcnt lgkmcnt(0)")
            A.I("v_and_b32 v37, v20, v21\nv_and_b32 v38, v22, v23\nv_and_b32 v37, v37, v38")
            A.I("v_cmp_eq_u32 vcc, 0, v37\ns_cbranch_vccz L_qw_ok\ns_sleep 1\ns_sub_u32 s62, s62, 1\ns_cmp_lg_u32 s62, 0\ns_cbranch_scc1 L_qw")
            A.label("L_qw_ok")
        s.stamp(2)
        A.I("v_bfe_u32 v37, v1, 3, 1\nv_lshlrev_b32 v37, 9, v37\nv_lshrrev_b32 v38, 4, v1\nv_lshlrev_b32 v38, 6, v38\nv_add_u32 v37, v37, v38\nv_and_b32 v38, 3, v1\nv_lshlrev_b32 v38, 4, v38\nv_add_u32 v37, v37, v38")
        A.I(f"ds_read_b128 v[{Q0}:{Q0+3}], v37 offset:{L_Q}\nds_read_b128 v[{Q1}:{Q1+3}], v37 offset:{L_Q+256}")
        A.I("s_waitcnt lgkmcnt(0)")
        stubs=[]
        def proc(sl, name, first=False, kwait=None, vwait=None):
            if kwait: kwait()
            A.I(f"v_mfma_f32_16x16x32_bf16 v[{D}:{D+3}], v[{sl}:{sl+3}], v[{Q0}:{Q0+3}], 0")
            A.I(f"v_mfma_f32_16x16x32_bf16 v[{D}:{D+3}], v[{sl+4}:{sl+7}], v[{Q1}:{Q1+3}], v[{D}:{D+3}]")
            A.I(f"v_mov_b32 v{T}, v{NEGM}")
            A.I(f"v_mov_b32 v37, 0")
            A.I(f"v_fmac_f32_dpp v{T}, v{D}, v{CS} quad_perm:[0,0,0,0] row_mask:0xf bank_mask:0xf")
            A.I(f"v_fmac_f32_dpp v37, v{D+1}, v{CS} quad_perm:[1,1,1,1] row_mask:0xf bank_mask:0xf")
            A.I(f"v_fmac_f32_dpp v{T}, v{D+2}, v{CS} quad_perm:[2,2,2,2] row_mask:0xf bank_mask:0xf")
            A.I(f"v_fmac_f32_dpp v37, v{D+3}, v{CS} quad_perm:[3,3,3,3] row_mask:0xf bank_mask:0xf")
            A.I(f"v_add_f32 v{T}, v{T}, v37")
            if first:
                A.I(f"v_mov_b32 v37, v{T}")
                s.cross_rows("v_max_f32",[37],[38])
                A.I(f"v_sub_f32 v{NEGM}, 0, v37\nv_sub_f32 v{T}, v{T}, v37")
            else:
                A.I(f"v_cmp_lt_f32 vcc, {hex(f2u(o.thr))}, v{T}")
                A.I(f"s_cbranch_vccnz L_stub{name}")
                A.raw(f"L_res{name}:")
                stubs.append(name)
            A.I(f"v_exp_f32 v{T}, v{T}")
            A.I(f"v_cvt_pk_bf16_f32 v{P}, v{T}, v{T}")
            A.I(f"v_add_f32 v{LS}, v{LS}, v{T}")
            for r in range(4): A.I(f"v_and_b32 v{AP+r}, v{P}, v{MK+r}")
            if vwait: vwait()
            A.I(f"v_mfma_f32_16x16x32_bf16 v[{O0}:{O0+3}], v[{AP}:{AP+3}], v[{sl+8}:{sl+11}], v[{O0}:{O0+3}]")
            A.I(f"v_mfma_f32_16x16x32_bf16 v[{O1}:{O1+3}], v[{AP}:{AP+3}], v[{sl+12}:{sl+15}], v[{O1}:{O1+3}]")
        def process(se):
            proc(RING+16*st['slot'][se], str(se), se==0, lambda: wait_landed(4*se+2), lambda: wait_landed(4*se+4))
            st['free'].append(st['slot'][se])
        sp=0
        last = NSETS-LAG if o.dyn else NSETS
        while sp<last or (o.dyn and st['issued']<4*NSETS):
            backlog = st['landed']//4 - sp
            if backlog>0 and sp<last:
                process(sp); sp+=1
                if can_issue(): pace()
            elif can_issue(): pace()
            else:
                process(sp); sp+=1
        if o.dyn:
            assert st['issued']==4*NSETS and sp==NSETS-LAG, (st['issued'], sp)
            DS={}
            for x in range(NSETS-LAG,NSETS): DS[x%RS]=st['slot'][x]
            DS[NSETS%RS]=st['free'][0]
            assert len(set(DS.values()))==RS
            A.I("s_mov_b32 s46, 0")
            A.I(f"s_mov_b32 s47, {NSETS}")
            A.I(f"v_mov_b32 v39, s46\nds_read_b32 v38, v39 offset:{L_QU}")
            order=[(NSETS+i)%RS for i in range(RS)]
            for i,ph in enumerate(order):
                A.label(f"L_dyn{ph}", flush=True)
                A.I(f"s_mov_b32 s62, {o.timeout}")
                A.label(f"L_dq{ph}", flush=False)
                A.I("s_waitcnt lgkmcnt(0)\nv_readfirstlane_b32 s44, v38")
                A.I(f"s_cmp_lt_u32 s44, {hex(Q_EMPTY)}\ns_cbranch_scc1 L_dgo{ph}")
                A.I(f"s_cmp_eq_u32 s44, {hex(Q_END)}\ns_cbranch_scc1 L_drain{ph}")
                A.I(f"s_sub_u32 s62, s62, 1\ns_cmp_eq_u32 s62, 0\ns_cbranch_scc1 L_drain{ph}")
                if o.wolate==2 and o.emptyflag: A.I(f"v_mov_b32 v38, 1\nds_write_b32 v0, v38 offset:{L_F+12}")
                A.I(f"s_sleep 1\nds_read_b32 v38, v39 offset:{L_QU}\ns_branch L_dq{ph}")
                A.label(f"L_dgo{ph}", flush=False)
                A.I(f"v_mov_b32 v38, s47\nds_max_u32 v0, v38 offset:{L_P}")
                sl=RING+16*DS[ph]
                for part in range(4):
                    A.I(f"s_waitcnt vmcnt({DD-1})")
                    r=sl+4*part
                    if part<2: A.I(f"buffer_load_dwordx4 v[{r}:{r+3}], v{VK}, s[32:35], s44 offen offset:{256*part}{nt}")
                    else: A.I(f"buffer_load_dwordx4 v[{r}:{r+3}], v{VV}, s[36:39], s44 offen offset:{256*(part-2)}{nt}")
                A.I("s_add_u32 s46, s46, 4\ns_add_u32 s47, s47, 1")
                proc(RING+16*DS[(ph-LAG)%RS], f"d{ph}")
                A.I(f"v_mov_b32 v39, s46\nds_read_b32 v38, v39 offset:{L_QU}")
                if i==RS-1: A.I(f"s_branch L_dyn{order[0]}")
            for ph in order:
                A.label(f"L_drain{ph}", flush=True)
                if o.wolate==2: A.I(f"v_mov_b32 v38, 1\nds_write_b32 v0, v38 offset:{L_F+12}")
                cnt=[4*LAG]
                for t in range(LAG,0,-1):
                    def kw(n=4*t-2): A.I(f"s_waitcnt vmcnt({n})")
                    def vw(n=4*t-4): A.I(f"s_waitcnt vmcnt({n})")
                    proc(RING+16*DS[(ph-t)%RS], f"e{ph}_{t}", False, kw, vw)
                A.I("s_branch L_sdone")
            A.label("L_sdone", flush=True)
        s.stamp(3)
        s.cross_rows("v_add_f32",[LS],[37])
        A.I(f"v_sub_f32 v38, 0, v{NEGM}")
        A.I(f"ds_write_b128 v249, v[{O0}:{O0+3}] offset:{L_O}\nds_write_b128 v249, v[{O1}:{O1+3}] offset:{L_O+512}")
        A.I("s_mov_b32 exec_lo, 0x101\ns_mov_b32 exec_hi, 0")
        A.I(f"ds_write_b32 v248, v38 offset:{L_M}\nds_write_b32 v248, v{LS} offset:{L_M+32}")
        A.I("s_mov_b64 exec, -1")
        A.I("s_waitcnt lgkmcnt(0)")
        if o.b2lds:
            A.I(f"v_mov_b32 v38, 1\ns_mov_b64 exec, 1\nds_add_u32 v0, v38 offset:{L_P+4}\ns_mov_b64 exec, -1\ns_mov_b32 s62, {o.timeout}")
            A.label("L_b2", flush=False)
            A.I(f"ds_read_b32 v38, v0 offset:{L_P+4}\ns_waitcnt lgkmcnt(0)\nv_cmp_gt_u32 vcc, 4, v38\ns_cbranch_vccz L_b2_ok\ns_sub_u32 s62, s62, 1\ns_cmp_lg_u32 s62, 0\ns_cbranch_scc1 L_b2")
            A.label("L_b2_ok", flush=False)
        else:
            A.I("s_barrier")
        s.stamp(4)
        A.I(f"ds_read_b128 v[8:11], v251 offset:{L_M}\nds_read_b128 v[12:15], v251 offset:{L_M+32}")
        for w in range(4): A.I(f"ds_read_b64 v[{16+2*w}:{17+2*w}], v250 offset:{L_O+2048*w}")
        A.I("v_mov_b32 v31, s6\ns_mov_b32 s56, 0xaaaaaaaa\ns_mov_b32 s57, 0xaaaaaaaa")
        A.I("s_waitcnt lgkmcnt(%d)"%(0 if o.stamps else 4))
        A.I("v_max3_f32 v24, v8, v9, v10\nv_max_f32 v24, v24, v11")
        for w in range(4): A.I(f"v_sub_f32 v{8+w}, v{8+w}, v24")
        for w in range(4): A.I(f"v_exp_f32 v{8+w}, v{8+w}")
        A.I("s_waitcnt lgkmcnt(0)")
        A.I("v_mul_f32 v26, v8, v12\nv_mul_f32 v28, v8, v16\nv_mul_f32 v29, v8, v17")
        for w in range(1,4):
            A.I(f"v_fmac_f32 v26, v{8+w}, v{12+w}\nv_fmac_f32 v28, v{8+w}, v{16+2*w}\nv_fmac_f32 v29, v{8+w}, v{17+2*w}")
        A.I("v_cndmask_b32 v30, v24, v26, s[56:57]")
        A.I("buffer_store_dwordx4 v[28:31], v252, s[40:43], 0 offen sc1")
        if not o.st2: s.stamp(5)
        if not (o.dbg&4):
            A.I("s_cmp_ge_u32 s2, 28\ns_cbranch_scc1 L_st_end")
            s.final()
        A.label("L_st_end")
        s.stamps_out()
        A.I("s_endpgm")
        for se in stubs:
            A.label(f"L_stub{se}", flush=False)
            A.I(f"s_call_b64 s[52:53], L_rare\ns_branch L_res{se}")
        A.hist=[]
        A.label("L_rare", flush=False)
        A.I("s_nop 7")
        A.I(f"v_mov_b32 v37, v{T}")
        s.cross_rows("v_max_f32",[37],[38])
        A.I(f"v_max_f32 v37, 0, v37")
        A.I(f"v_sub_f32 v{NEGM}, v{NEGM}, v37\nv_sub_f32 v{T}, v{T}, v37")
        A.I("v_sub_f32 v38, 0, v37\nv_exp_f32 v38, v38")
        A.I(f"v_mul_f32 v{LS}, v{LS}, v38")
        A.I("v_readlane_b32 s54, v38, 0\nv_readlane_b32 s55, v38, 8")
        A.I("v_mov_b32 v39, s54\nv_mov_b32 v37, s55\ns_mov_b32 s56, 0\ns_mov_b32 s57, -1")
        A.I("v_cndmask_b32 v39, v39, v37, s[56:57]")
        for r in range(8): A.I(f"v_mul_f32 v{O0+r}, v{O0+r}, v39")
        A.flush()
        A.I("s_setpc_b64 s[52:53]")

    def final(s):
        A=s.A; o=s.o
        s.srd(32,8,896); s.srd(36,26,896)
        A.I("s_lshl_b32 s54, s2, 5\nv_and_b32 v2, 7, v1\nv_lshlrev_b32 v7, 3, v2\nv_lshlrev_b32 v2, 2, v2\nv_add_u32 v2, s54, v2\nbuffer_load_dword v4, v2, s[32:35], 0 offen")
        A.I(f"s_lshl_b32 s54, s2, 15\ns_mul_i32 s55, s3, {56*128}\ns_add_u32 s55, s55, s54\ns_add_u32 s55, s55, {WS_YP}")
        def voff():
            if o.lin2: A.I("v_lshlrev_b32 v3, 4, v1\nv_add_u32 v3, s55, v3")
            else: s.rowsplit_voff(3,8,55)
            A.I("v_add_u32 v6, 4096, v3")
        voff()
        if o.lin2: A.I("s_lshl_b32 s54, s3, 6\nv_add_u32 v5, s54, v7")
        else:
            A.I("v_lshrrev_b32 v5, 4, v1\nv_lshlrev_b32 v5, 4, v5\nv_and_b32 v8, 1, v1\nv_lshlrev_b32 v8, 3, v8\ns_lshl_b32 s54, s3, 6\nv_add3_u32 v5, v5, v8, s54")
        def ld(q):
            r=64+4*q
            return f"buffer_load_dwordx4 v[{r}:{r+3}], v{3 if q<4 else 6}, s[40:43], 0 offen offset:{1024*(q%4)} sc1"
        def sums(n, ldsoff):
            A.I("v_add_f32 v10, v64, v68\nv_add_f32 v11, v66, v70\nv_add_f32 v12, v72, v76\nv_add_f32 v13, v74, v78")
            A.I("v_add_f32 v14, v80, v84\nv_add_f32 v15, v82, v86")
            if n==8: A.I("v_add_f32 v16, v88, v92\nv_add_f32 v17, v90, v94")
            else: A.I("v_mov_b32 v16, v88\nv_mov_b32 v17, v90")
            A.I("v_add_f32 v10, v10, v12\nv_add_f32 v11, v11, v13\nv_add_f32 v14, v14, v16\nv_add_f32 v15, v15, v17\nv_add_f32 v10, v10, v14\nv_add_f32 v11, v11, v15")
            if o.lin2:
                s.row_allreduce("v_add_f32",[10,11],(8,)); s.cross_rows("v_add_f32",[10,11],[12,13])
                A.I(f"s_mov_b64 exec, 0xff\nds_write_b64 v5, v[10:11] offset:{ldsoff}\ns_mov_b64 exec, -1\ns_waitcnt lgkmcnt(0)")
            else:
                s.row_allreduce("v_add_f32",[10,11],(2,4,8))
                A.I(f"s_mov_b32 exec_lo, 0x00030003\ns_mov_b32 exec_hi, 0x00030003\nds_write_b64 v5, v[10:11] offset:{ldsoff}\ns_mov_b64 exec, -1\ns_waitcnt lgkmcnt(0)")
        def gather(ldsoff):
            for w in range(4): A.I(f"ds_read_b64 v[{12+2*w}:{13+2*w}], v7 offset:{ldsoff+64*w}")
            A.I("s_waitcnt lgkmcnt(0)")
            A.I("v_add_f32 v10, v12, v14\nv_add_f32 v11, v13, v15\nv_add_f32 v16, v16, v18\nv_add_f32 v17, v17, v19\nv_add_f32 v10, v10, v16\nv_add_f32 v11, v11, v17")
        ylate = o.ylate and o.dyn
        if ylate: A.I("s_barrier")
        s.poll("L_py", [ld(q) for q in range(7)], [65+2*i for i in range(14)], 9, sleep=(1 if ylate else 4))
        sums(7, L_Y)
        A.I(f"s_lshl_b32 s54, s2, 15\ns_lshl_b32 s55, s3, 13\ns_add_u32 s55, s55, s54\ns_add_u32 s55, s55, {WS_SP}")
        voff()
        A.I("v_lshlrev_b32 v24, 16, v4\nv_and_b32 v25, 0xffff0000, v4")
        if not o.st2: s.stamp(6)
        A.I("s_barrier")
        gather(L_Y)
        for r in range(2): s.bf16r(20+r,10+r)
        for r in range(2): A.I(f"v_mul_f32 v{22+r}, {hex(f2u(-1.4426950408889634))}, v{20+r}")
        for r in range(2): A.I(f"v_exp_f32 v{22+r}, v{22+r}")
        for r in range(2): A.I(f"v_add_f32 v{22+r}, 1.0, v{22+r}")
        for r in range(2): A.I(f"v_rcp_f32 v{22+r}, v{22+r}")
        for r in range(2): A.I(f"v_mul_f32 v{20+r}, v{20+r}, v{22+r}")
        for r in range(2): s.bf16r(20+r,20+r)
        s.poll("L_ps", [ld(q) for q in range(8)], [65+2*i for i in range(16)], 9)
        sums(8, L_S)
        A.I("s_barrier")
        A.I("s_cmp_lg_u32 s3, 0\ns_cbranch_scc1 L_fin_done")
        gather(L_S)
        for r in range(2): s.bf16r(10+r,10+r)
        for r in range(2): A.I(f"v_mul_f32 v{10+r}, v{10+r}, v{20+r}")
        for r in range(2): s.bf16r(10+r,10+r)
        for r in range(2): A.I(f"v_add_f32 v{10+r}, v{10+r}, v{24+r}")
        A.I("v_cvt_pk_bf16_f32 v14, v10, v11")
        A.I("s_mov_b64 exec, 0xff")
        A.I("buffer_store_dword v14, v2, s[36:39], 0 offen")
        A.I("s_cmp_lg_u32 s2, 0\ns_cbranch_scc1 L_fin_x")
        A.I("s_mov_b64 exec, 1")
        A.I("v_mov_b32 v16, 0\nv_mov_b32 v17, s6\nbuffer_store_dword v17, v16, s[40:43], 0 offen")
        A.label("L_fin_x")
        A.I("s_mov_b64 exec, -1")
        A.label("L_fin_done")
        if not o.st2: s.stamp(7)

    def ldsgate(s, name, off, sleep=2):
        A=s.A
        A.I(f"s_mov_b32 s62, {s.o.timeout}\nv_mov_b32 v8, 0")
        A.label(name)
        A.I(f"ds_read_b32 v9, v8 offset:{off}\ns_waitcnt lgkmcnt(0)\nv_cmp_eq_u32 vcc, 0, v9")
        A.I(f"s_cbranch_vccz {name}_ok\ns_sleep {sleep}\ns_sub_u32 s62, s62, 1\ns_cmp_lg_u32 s62, 0\ns_cbranch_scc1 {name}")
        A.label(name+"_ok")
    def qpoll(s, name, quarters, gate=True):
        A=s.A
        if s.o.dbg&16: return
        if gate: s.ldsgate(name+"_g", L_F)
        nq=len(quarters); q0=quarters[0]
        A.I(f"s_lshl_b32 s55, s4, 14\ns_add_u32 s55, s55, {WS_QX+q0*1024}")
        if s.o.q2:
            A.I("v_and_b32 v8, 3, v1\nv_lshlrev_b32 v8, 12, v8\nv_lshrrev_b32 v7, 2, v1\nv_lshlrev_b32 v7, 9, v7\nv_add3_u32 v8, v8, v7, s55")
            m=(1<<(8*nq))-1
            s.poll(name+"a", [f"s_mov_b64 exec, {hex(m)}", "buffer_load_dwordx4 v[64:67], v8, s[40:43], 0 offen sc1"], [65], 9, sleep=s.o.qsleep, lanes=m)
        A.I("v_lshlrev_b32 v8, 4, v1\nv_add_u32 v8, s55, v8")
        A.I("v_add_u32 v7, 8192, v8\ns_mov_b32 s58, 4096")
        loads=[]; tags=[]
        for qi in range(nq):
            r=64+16*qi
            loads+=[f"buffer_load_dwordx4 v[{r}:{r+3}], v8, s[40:43], 0 offen offset:{1024*qi} sc1", f"buffer_load_dwordx4 v[{r+4}:{r+7}], v8, s[40:43], s58 offen offset:{1024*qi} sc1",
                    f"buffer_load_dwordx4 v[{r+8}:{r+11}], v7, s[40:43], 0 offen offset:{1024*qi} sc1", f"buffer_load_dwordx4 v[{r+12}:{r+15}], v7, s[40:43], s58 offen offset:{1024*qi} sc1"]
            tags+=[r+1+2*i for i in range(8)]
        s.poll(name, loads, tags, 9, sleep=s.o.qsleep)
        A.I("v_lshlrev_b32 v9, 2, v1")
        for qi in range(nq):
            r=64+16*qi
            A.I(f"v_add_f32 v10, v{r}, v{r+4}\nv_add_f32 v11, v{r+2}, v{r+6}\nv_add_f32 v12, v{r+8}, v{r+12}\nv_add_f32 v13, v{r+10}, v{r+14}")
            A.I(f"v_add_f32 v10, v10, v12\nv_add_f32 v11, v11, v13\nv_cvt_pk_bf16_f32 v{14+qi}, v10, v11")
            A.I(f"ds_write_b32 v9, v{14+qi} offset:{L_Q+256*(q0+qi)}")
        A.I("s_waitcnt lgkmcnt(0)")
        A.I(f"v_mov_b32 v8, 0\nv_mov_b32 v9, 1")
        for qi in range(nq): A.I(f"ds_write_b32 v8, v9 offset:{L_G+4*(q0+qi)}")
    def h0(s):
        A=s.A; o=s.o
        wf=" nt" if o.wnt else ""
        A.label("L_h0")
        if o.dbg&1:
            A.I("s_barrier"); s.stamps_out(); A.I("s_endpgm"); return
        s.srd(32,8,896); s.srd(36,14,448*8192); s.srd(40,30,WS_SIZE)
        if o.dbg&32:
            A.I("s_barrier"); A.I("s_waitcnt lgkmcnt(0)"); s.tag_from_E(); s.qpoll("L_pq0",[0]); s.stamps_out(); A.I("s_endpgm"); return
        if not o.dbg&256: A.I("v_lshlrev_b32 v2, 4, v1\nbuffer_load_dwordx4 v[4:7], v2, s[32:35], 0 offen")
        if o.dyn:
            A.I(f"s_and_b32 s54, s2, {o.sh-1}\ns_cmp_lg_u32 s54, 0\ns_cbranch_scc1 L_h0_noinit")
            A.I(f"s_lshl_b32 s54, s2, 5\ns_add_u32 s54, s54, {WS_CT}\nv_mov_b32 v8, s54\nv_mov_b32 v9, 0\ns_mov_b64 exec, 1\nbuffer_store_dword v9, v8, s[40:43], 0 offen sc1\ns_mov_b64 exec, -1")
            A.label("L_h0_noinit")
        A.I("s_and_b32 s54, s5, 7\ns_lshr_b32 s59, s5, 3")
        A.I(f"s_lshl_b32 s55, s4, 10\ns_lshl_b32 s56, s54, 7\ns_add_u32 s55, s55, s56\ns_mul_i32 s56, s59, {112*8192}\ns_add_u32 s55, s55, s56")
        A.I("v_lshrrev_b32 v3, 3, v1\nv_lshlrev_b32 v3, 13, v3\nv_and_b32 v8, 7, v1\nv_lshlrev_b32 v8, 4, v8\nv_add3_u32 v3, v3, v8, s55")
        for k in range(14):
            A.I(f"s_mov_b32 s57, {k*65536}\nbuffer_load_dwordx4 v[{64+4*k}:{67+4*k}], v3, s[36:39], s57 offen{wf}")
        A.I("s_barrier")
        if o.dbg&128:
            A.I("s_waitcnt vmcnt(0)"); s.stamp(1); s.stamps_out(); A.I("s_endpgm"); return
        A.I("s_waitcnt vmcnt(14)")
        s.layernorm(L_X)
        s.tag_from_E()
        A.I(f"v_mov_b32 v8, 0\nv_mov_b32 v9, 1\nds_write_b32 v8, v9 offset:{L_F+4}")
        A.I(f"s_mul_i32 s56, s59, {112*4}\nv_lshrrev_b32 v9, 3, v1\nv_lshlrev_b32 v9, 2, v9\nv_add_u32 v9, s56, v9")
        for k in range(14): A.I(f"ds_read_b32 v{32+k}, v9 offset:{L_X+32*k}")
        for i in range(8): A.I(f"v_mov_b32 v{10+i}, 0")
        A.I(f"s_lshl_b32 s55, s4, 14\ns_lshl_b32 s56, s59, 12\ns_add_u32 s55, s55, s56\ns_lshl_b32 s56, s54, 9\ns_add_u32 s55, s55, s56\ns_add_u32 s55, s55, {WS_QX}")
        s.pub8_voff(2,8,55)
        A.I("s_waitcnt lgkmcnt(0)")
        for k in range(14): A.I(f"v_lshlrev_b32 v{46+k}, 16, v{32+k}")
        for k in range(14):
            A.I(f"s_waitcnt vmcnt({13-k})")
            for d in range(4):
                A.I(f"v_dot2c_f32_bf16 v{10+2*d}, v{64+4*k+d}, v{32+k}\nv_dot2c_f32_bf16 v{11+2*d}, v{64+4*k+d}, v{46+k}")
        s.stamp(1)
        s.reduce8(10)
        if not o.dbg&64: s.pub8(10,2,40)
        A.I(f"v_mov_b32 v8, 0\nv_mov_b32 v9, 1\nds_write_b32 v8, v9 offset:{L_F}")
        s.stamp(2)
        s.qpoll("L_pq0", [0], gate=False)
        s.stamp(3)
        s.stamps_out()
        A.I("s_endpgm")

    def h1(s):
        A=s.A; o=s.o
        wf=" nt" if o.wnt else ""
        A.label("L_h1")
        A.I("s_barrier")
        s.srd(40,30,WS_SIZE)
        A.I("s_waitcnt lgkmcnt(0)")
        s.tag_from_E()
        if o.dbg&2:
            A.I("s_endpgm"); return
        if o.ffnspread:
            A.I("s_mov_b32 s61, s2\ns_lshr_b32 s54, s2, 3\ns_and_b32 s55, s2, 7\ns_and_b32 s56, s54, 7")
            A.I("s_cmp_eq_u32 s55, s56\ns_cbranch_scc1 L_end")
            A.I("s_cmp_gt_u32 s55, s56\ns_cselect_b32 s56, 1, 0\ns_sub_u32 s55, s55, s56\ns_mul_i32 s54, s54, 7\ns_add_u32 s2, s54, s55")
        else:
            A.I("s_mov_b32 s61, s2\ns_cmp_ge_u32 s2, 224\ns_cbranch_scc1 L_end")
        s.ldsgate("L_xg", (L_F+4) if not o.ffnafterq else L_G+4, sleep=4)
        s.srd(36,20,448*3584); s.srd(44,22,448*3584); s.srd(48,24,1792*896)
        A.I("s_lshr_b32 s54, s2, 3\ns_and_b32 s59, s2, 7")
        A.I(f"s_lshl_b32 s55, s54, 7\ns_mul_i32 s56, s59, {56*3584}\ns_add_u32 s55, s55, s56")
        A.I("v_lshrrev_b32 v3, 3, v1\nv_mul_u32_u24 v3, 3584, v3\nv_and_b32 v8, 7, v1\nv_lshlrev_b32 v8, 4, v8\nv_add3_u32 v3, v3, v8, s55")
        for k in range(7):
            A.I(f"s_mov_b32 s57, {k*28672}")
            if o.hp1 and 2*k>=o.hp1: A.I(f"s_waitcnt vmcnt({o.hp1-1})")
            A.I(f"buffer_load_dwordx4 v[{64+4*k}:{67+4*k}], v3, s[36:39], s57 offen{wf}")
            if o.hp1 and 2*k+1>=o.hp1: A.I(f"s_waitcnt vmcnt({o.hp1-1})")
            A.I(f"buffer_load_dwordx4 v[{92+4*k}:{95+4*k}], v3, s[44:47], s57 offen{wf}")
        A.I("v_lshrrev_b32 v60, 4, v1\nv_lshlrev_b32 v60, 1, v60\ns_lshl_b32 s55, s2, 3\nv_add_u32 v60, s55, v60\nv_mul_u32_u24 v60, 896, v60\nv_and_b32 v9, 15, v1\nv_lshlrev_b32 v9, 4, v9\nv_add_u32 v60, v60, v9")
        ylate = o.ylate and o.dyn
        def wdloads(hp):
            for t in range(2):
                for cb in range(4):
                    r=120+16*t+4*cb
                    if hp: A.I(f"s_waitcnt vmcnt({hp-1})")
                    if cb==3: A.I("s_mov_b32 exec_lo, 0x00ff00ff\ns_mov_b32 exec_hi, 0x00ff00ff")
                    A.I(f"buffer_load_dwordx4 v[{r}:{r+3}], v60, s[48:51], 0 offen offset:{t*896+cb*256}{wf}")
                    if cb==3: A.I("s_mov_b64 exec, -1")
        if not ylate: wdloads(o.hp1)
        A.I(f"s_mul_i32 s56, s59, {56*4}\nv_lshrrev_b32 v9, 3, v1\nv_lshlrev_b32 v9, 2, v9\nv_add_u32 v9, s56, v9")
        for k in range(7): A.I(f"ds_read_b32 v{32+k}, v9 offset:{L_X+32*k}")
        for i in range(16): A.I(f"v_mov_b32 v{10+i}, 0")
        A.I(f"s_mul_i32 s55, s59, 14336\ns_lshl_b32 s56, s54, 9\ns_add_u32 s55, s55, s56\ns_add_u32 s55, s55, {WS_GX}")
        s.pub8_voff(2,8,55)
        A.I(f"v_add_u32 v3, {8*14336}, v2")
        A.I("s_waitcnt lgkmcnt(0)")
        if o.dbg&1024:
            A.I("s_waitcnt vmcnt(0)"); s.stamp(1); s.stamps_out(); A.I("s_endpgm"); return
        for k in range(7): A.I(f"v_lshlrev_b32 v{46+k}, 16, v{32+k}")
        A.I("s_waitcnt vmcnt(%d)"%(0 if ylate else 8))
        for k in range(7):
            for d in range(4):
                A.I(f"v_dot2c_f32_bf16 v{10+2*d}, v{64+4*k+d}, v{32+k}\nv_dot2c_f32_bf16 v{11+2*d}, v{64+4*k+d}, v{46+k}")
                A.I(f"v_dot2c_f32_bf16 v{18+2*d}, v{92+4*k+d}, v{32+k}\nv_dot2c_f32_bf16 v{19+2*d}, v{92+4*k+d}, v{46+k}")
        s.reduce8(10); s.reduce8(18)
        s.pub8(10,2,40); s.pub8(18,3,40)
        s.stamp(1)
        A.I(f"v_lshrrev_b32 v8, 3, v1\nv_bfe_u32 v9, v1, 2, 1\nv_lshlrev_b32 v9, 3, v9\nv_add_u32 v8, v8, v9\nv_mul_u32_u24 v8, 14336, v8")
        A.I(f"s_lshl_b32 s55, s2, 6\ns_add_u32 s55, s55, {WS_GX}\nv_and_b32 v9, 3, v1\nv_lshlrev_b32 v9, 4, v9\nv_add3_u32 v8, v8, v9, s55")
        s.make_masks(28,1,4,5)
        s.pub_voff(2,4,WS_YP)
        s.matvec_prep(56,160,"s6")
        s.poll("L_pg", ["buffer_load_dwordx4 v[64:67], v8, s[40:43], 0 offen sc1"], [65,67], 9, sleep=4)
        s.stamp(2)
        A.I("v_mov_b32 v10, v64\nv_mov_b32 v11, v66")
        s.row_allreduce("v_add_f32",[10,11],(8,))
        s.cross_rows("v_add_f32",[10,11],[12,13])
        for e in range(2): s.bf16r(10+e,10+e)
        for e in range(2): A.I(f"v_mov_b32_dpp v{14+e}, v{10+e} row_ror:4 row_mask:0xf bank_mask:0xf")
        k1=-2*0.7978845608028654*1.4426950408889634
        A.I(f"v_mov_b32 v26, {hex(f2u(0.044715))}\nv_mov_b32 v27, {hex(f2u(k1))}")
        for e in range(2): A.I(f"v_mul_f32 v{18+e}, v{10+e}, v{10+e}")
        for e in range(2): A.I(f"v_fma_f32 v{18+e}, v{18+e}, v26, 1.0")
        for e in range(2): A.I(f"v_mul_f32 v{18+e}, v{18+e}, v{10+e}")
        for e in range(2): A.I(f"v_mul_f32 v{18+e}, v27, v{18+e}")
        for e in range(2): A.I(f"v_exp_f32 v{18+e}, v{18+e}")
        for e in range(2): A.I(f"v_add_f32 v{18+e}, 1.0, v{18+e}")
        for e in range(2): A.I(f"v_rcp_f32 v{18+e}, v{18+e}")
        for e in range(2): A.I(f"v_mul_f32 v{18+e}, v{18+e}, v{10+e}")
        for e in range(2): s.bf16r(18+e,18+e)
        for e in range(2): A.I(f"v_mul_f32 v{18+e}, v{18+e}, v{14+e}")
        for e in range(2): A.I(f"v_cvt_pk_bf16_f32 v{18+e}, v{18+e}, v{18+e}")
        for t in range(2): s.bcast_rows(22+t,18+t,lambda kg:kg)
        if ylate:
            s.ldsgate("L_ydr", L_F+12, sleep=o.gsleep)
            wdloads(0)
            if not o.b2lds: A.I("s_barrier")
        A.I("s_waitcnt vmcnt(0)")
        if o.dbg&512:
            s.stamp(3); s.stamps_out(); A.I("s_endpgm"); return
        s.matvec_publish(2,[22,23],lambda t,cb:120+16*t+4*cb,28,40,32,2,40,56,160)
        A.I("s_mov_b32 s2, s61")
        s.stamp(3)
        s.stamps_out()
        A.I("s_endpgm")

    def h2(s):
        A=s.A; o=s.o
        wf=" nt" if o.wnt else ""
        A.label("L_h2")
        A.I("s_barrier")
        s.srd(36,16,4096*896); s.srd(40,30,WS_SIZE)
        A.I("s_waitcnt lgkmcnt(0)")
        s.tag_from_E()
        if not o.dbg&1: s.qpoll("L_pq2", [1,2])
        if o.dbg&4:
            A.I("s_endpgm"); return
        A.I("s_lshl_b32 s54, s2, 4")
        A.I("v_lshrrev_b32 v60, 4, v1\nv_lshlrev_b32 v60, 2, v60\nv_add_u32 v60, s54, v60\nv_mul_u32_u24 v60, 896, v60\nv_and_b32 v9, 15, v1\nv_lshlrev_b32 v9, 4, v9\nv_add_u32 v60, v60, v9")
        s.make_masks(28,1,8,9)
        A.I(f"s_lshl_b32 s54, s2, 12\ns_add_u32 s54, s54, {WS_H1}")
        if o.lin1: A.I("v_lshlrev_b32 v3, 4, v1\nv_add_u32 v3, s54, v3")
        else: s.rowsplit_voff(3,8,54)
        s.pub_voff(2,8,WS_SP)
        s.matvec_prep(56,160,"s6")
        if o.lin1:
            A.I("v_lshrrev_b32 v58, 4, v1\nv_mul_u32_u24 v58, 72, v58\nv_add_u32 v59, 4, v58")
        if o.wolate and o.dyn:
            s.ldsgate("L_woe", L_F+(8 if o.wolate==1 else 12), sleep=o.gsleep)
        for t in range(4):
            for cb in range(4):
                r=64+16*t+4*cb
                if o.hp2 and 4*t+cb>=o.hp2: A.I(f"s_waitcnt vmcnt({o.hp2-1})")
                if cb==3: A.I("s_mov_b32 exec_lo, 0x00ff00ff\ns_mov_b32 exec_hi, 0x00ff00ff")
                A.I(f"buffer_load_dwordx4 v[{r}:{r+3}], v60, s[36:39], 0 offen offset:{t*896+cb*256}{wf}")
                if cb==3: A.I("s_mov_b64 exec, -1")
        if not o.b2lds: A.I("s_barrier")
        else:
            A.I(f"s_mov_b32 s62, {o.timeout}\nv_mov_b32 v8, 0")
            A.label("L_h2w", flush=True)
            A.I(f"ds_read_b32 v9, v8 offset:{L_P+4}\ns_waitcnt lgkmcnt(0)\nv_cmp_gt_u32 vcc, 4, v9\ns_cbranch_vccz L_h2w_ok\ns_sleep 1\ns_sub_u32 s62, s62, 1\ns_cmp_lg_u32 s62, 0\ns_cbranch_scc1 L_h2w")
            A.label("L_h2w_ok", flush=True)
        s.stamp(1)
        if o.stamps and o.wostamp:
            A.I("s_waitcnt vmcnt(0)"); s.stamp(4)
        loadso=[f"buffer_load_dwordx4 v[{128+4*q}:{131+4*q}], v3, s[40:43], 0 offen offset:{1024*q} sc1" for q in range(4)]
        s.poll("L_p1", loadso, [131,135,139,143], 9, sleep=o.h1sleep)
        s.stamp(2)
        for q in range(4): A.I(f"v_mov_b32_dpp v{144+q}, v{130+4*q} quad_perm:[0,0,2,2] row_mask:0xf bank_mask:0xf")
        A.I("v_max3_f32 v10, v144, v145, v146\nv_max_f32 v10, v10, v147")
        if o.lin1:
            for q in range(4): A.I(f"v_mov_b32_dpp v{148+q}, v{130+4*q} quad_perm:[1,1,3,3] row_mask:0xf bank_mask:0xf")
            s.row_allreduce("v_max_f32",[10],(8,)); s.cross_rows("v_max_f32",[10],[11])
        else:
            for i,st_ in enumerate((2,4,8)):
                A.I(f"v_mov_b32_dpp v{148+i}, v{130+4*i} quad_perm:[1,1,3,3] row_mask:0xf bank_mask:0xf")
                if i==0: A.I(f"v_mov_b32_dpp v151, v142 quad_perm:[1,1,3,3] row_mask:0xf bank_mask:0xf")
                A.I(f"v_max_f32_dpp v10, v10, v10 row_ror:{st_} row_mask:0xf bank_mask:0xf")
        for q in range(4): A.I(f"v_sub_f32 v{12+q}, v{144+q}, v10")
        for q in range(4): A.I(f"v_exp_f32 v{12+q}, v{12+q}")
        A.I("v_mul_f32 v16, v12, v148\nv_mul_f32 v17, v12, v128\nv_mul_f32 v18, v12, v129")
        for q in range(1,4): A.I(f"v_fmac_f32 v16, v{12+q}, v{148+q}\nv_fmac_f32 v17, v{12+q}, v{128+4*q}\nv_fmac_f32 v18, v{12+q}, v{129+4*q}")
        if o.lin1:
            s.row_allreduce("v_add_f32",[16,17,18],(8,)); s.cross_rows("v_add_f32",[16,17,18],[19,20,21])
        else:
            s.row_allreduce("v_add_f32",[16,17,18],(2,4,8))
        A.I("v_rcp_f32 v16, v16")
        A.I("v_mul_f32 v17, v17, v16\nv_mul_f32 v18, v18, v16")
        A.I("v_cvt_pk_bf16_f32 v17, v17, v17\nv_cvt_pk_bf16_f32 v18, v18, v18")
        if o.lin1:
            A.I("ds_bpermute_b32 v22, v58, v17\nds_bpermute_b32 v23, v58, v18\nds_bpermute_b32 v24, v59, v17\nds_bpermute_b32 v25, v59, v18\ns_waitcnt lgkmcnt(0)")
        else:
            A.I("v_mov_b32_dpp v22, v17 quad_perm:[0,0,2,2] row_mask:0xf bank_mask:0xf\nv_mov_b32_dpp v23, v18 quad_perm:[0,0,2,2] row_mask:0xf bank_mask:0xf")
            A.I("v_mov_b32_dpp v24, v17 quad_perm:[1,1,3,3] row_mask:0xf bank_mask:0xf\nv_mov_b32_dpp v25, v18 quad_perm:[1,1,3,3] row_mask:0xf bank_mask:0xf")
        s.matvec_publish(4,[22,23,24,25],lambda t,cb:64+16*t+4*cb,28,40,32,2,40,56,160)
        s.stamp(3)
        A.I("s_barrier")
        s.stamps_out()
        A.I("s_endpgm")

    def h3(s):
        A=s.A; o=s.o
        A.label("L_h3")
        s.srd(40,30,WS_SIZE)
        A.I("s_waitcnt lgkmcnt(0)")
        s.tag_from_E()
        if not o.dbg&1: s.qpoll("L_pq3", [3])
        if o.dyn:
            S=32-o.dyn; NP=o.sh*o.dyn; LSH=o.sh.bit_length()-1; QCAP=120
            A.I("s_mov_b64 exec, 1")
            A.I(f"s_andn2_b32 s54, s2, {o.sh-1}\ns_lshl_b32 s54, s54, 5\ns_add_u32 s54, s54, {WS_CT}\nv_mov_b32 v8, s54\nv_mov_b32 v0, 0")
            A.I(f"s_andn2_b32 s48, s5, {o.sh-1}")
            A.I(f"s_mov_b32 s46, 0\ns_mov_b32 s47, {S-o.lead}")
            def waitprog(nm):
                A.I(f"s_mov_b32 s62, {o.timeout}")
                A.label(nm, flush=False)
                A.I(f"ds_read_b32 v9, v0 offset:{L_P}\ns_waitcnt lgkmcnt(0)\nv_readfirstlane_b32 s54, v9")
                A.I(f"s_cmp_ge_u32 s54, s47\ns_cbranch_scc1 {nm}_ok\ns_sub_u32 s62, s62, 1\ns_cmp_eq_u32 s62, 0\ns_cbranch_scc1 L_dsp_end")
                A.I(f"s_sleep 1\ns_branch {nm}")
                A.label(nm+"_ok", flush=False)
            cnt=[0]
            def grab(r):
                cnt[0]+=1; n=cnt[0]
                A.I(f"s_cmp_ge_u32 s46, {QCAP}\ns_cbranch_scc1 L_cap{n}")
                A.I(f"v_mov_b32 v{r}, 1\nbuffer_atomic_add v{r}, v8, s[40:43], 0 offen sc0\ns_branch L_capx{n}")
                A.label(f"L_cap{n}", flush=True)
                A.I(f"s_waitcnt vmcnt(0)\nv_mov_b32 v{r}, {NP}")
                A.label(f"L_capx{n}", flush=True)
                A.I("s_add_u32 s46, s46, 1\ns_add_u32 s47, s47, 1")
            def retire(r, n):
                A.I(f"s_waitcnt vmcnt({n})\nv_readfirstlane_b32 s54, v{r}")
                A.I(f"s_cmp_ge_u32 s54, {NP}\ns_cbranch_scc1 L_dsp_end")
                A.I(f"s_and_b32 s55, s54, {o.sh-1}\ns_add_u32 s55, s55, s48\ns_lshl_b32 s55, s55, 18\ns_lshr_b32 s54, s54, {LSH}\ns_add_u32 s54, s54, {S}\ns_lshl_b32 s54, s54, 13\ns_add_u32 s55, s55, s54")
                A.I(f"s_lshl_b32 s54, s49, 2\nv_mov_b32 v9, s54\nv_mov_b32 v13, s55\nds_write_b32 v9, v13 offset:{L_QU}\ns_add_u32 s49, s49, 1")
            A.I("s_mov_b32 s49, 0")
            if o.satom:
                A.I(f"s_andn2_b32 s54, s2, {o.sh-1}\ns_lshl_b32 s54, s54, 5\ns_add_u32 s54, s54, {WS_CT}\ns_add_u32 s52, s30, s54\ns_addc_u32 s53, s31, 0")
                A.I(f"s_mov_b32 s63, 0\ns_mov_b32 s64, {o.sh}\ns_mov_b32 s65, {1 if o.soft else 0}")
                A.label("L_dsp", flush=True)
                if o.soft:
                    A.I("s_cmp_eq_u32 s65, 0\ns_cbranch_scc1 L_dsp_go\ns_cmp_lt_u32 s49, 2\ns_cbranch_scc1 L_dsp_go")
                    A.I(f"s_mul_i32 s54, s64, {o.soft_a}\ns_sub_u32 s54, s54, {o.soft_b*o.sh//4}\ns_sub_u32 s55, {NP}, s63\ns_cmp_lt_i32 s55, s54\ns_cbranch_scc0 L_dsp_go")
                    A.I(f"s_mov_b32 s65, 0\ns_mov_b32 s66, {o.soft_n}")
                    A.label("L_soft", flush=False)
                    if o.softflag:
                        A.I(f"ds_read_b32 v9, v0 offset:{L_P}\ns_waitcnt lgkmcnt(0)\nv_readfirstlane_b32 s54, v9\ns_add_u32 s55, s47, {o.lead-1}\ns_cmp_lt_u32 s54, s55\ns_cbranch_scc1 L_soft_nf")
                        A.I(f"v_mov_b32 v13, 1\nds_write_b32 v0, v13 offset:{L_F+12}")
                        A.label("L_soft_nf", flush=False)
                    A.I("s_mov_b32 s54, 0\ns_atomic_add s54, s[52:53], 0x0 glc\ns_waitcnt lgkmcnt(0)")
                    A.I(f"s_cmp_ge_u32 s54, {NP}\ns_cbranch_scc1 L_dsp_end")
                    A.I("s_sleep 2\ns_sub_u32 s66, s66, 1\ns_cmp_lg_u32 s66, 0\ns_cbranch_scc1 L_soft")
                    A.label("L_dsp_go", flush=False)
                waitprog("L_wp")
                A.I("s_mov_b32 s54, 1\ns_atomic_add s54, s[52:53], 0x0 glc\ns_waitcnt lgkmcnt(0)")
                A.I(f"s_cmp_ge_u32 s54, {NP}\ns_cbranch_scc1 L_dsp_end")
                if o.soft:
                    A.I("s_sub_u32 s55, s54, s63\ns_add_u32 s55, s55, s64\ns_lshr_b32 s55, s55, 1\ns_cmp_eq_u32 s49, 0\ns_cselect_b32 s64, s64, s55\ns_mov_b32 s63, s54")
                A.I(f"s_and_b32 s55, s54, {o.sh-1}\ns_add_u32 s55, s55, s48\ns_lshl_b32 s55, s55, 18\ns_lshr_b32 s54, s54, {LSH}\ns_add_u32 s54, s54, {S}\ns_lshl_b32 s54, s54, 13\ns_add_u32 s55, s55, s54")
                A.I(f"s_lshl_b32 s54, s49, 2\nv_mov_b32 v9, s54\nv_mov_b32 v13, s55\nds_write_b32 v9, v13 offset:{L_QU}\ns_add_u32 s49, s49, 1\ns_add_u32 s47, s47, 1")
                A.I(f"s_cmp_lt_u32 s49, {QCAP}\ns_cbranch_scc1 L_dsp")
            else:
                waitprog("L_w0"); grab(10)
                waitprog("L_w1"); grab(11)
                A.label("L_dsp", flush=True)
                for i,(g_,r_) in enumerate(((12,10),(10,11),(11,12))):
                    waitprog(f"L_wp{i}"); grab(g_); retire(r_,2)
                A.I("s_branch L_dsp")
            A.label("L_dsp_end", flush=True)
            A.I(f"s_lshl_b32 s54, s49, 2\nv_mov_b32 v9, s54\nv_mov_b32 v13, {hex(Q_END)}\nds_write_b32 v9, v13 offset:{L_QU}")
            A.I(f"v_mov_b32 v13, 1\nds_write_b32 v0, v13 offset:{L_F+8}\ns_waitcnt lgkmcnt(0) vmcnt(0)")
            if o.stamps:
                s.stamp(2)
                A.I("s_waitcnt lgkmcnt(0)\ns_mov_b32 s82, s49\ns_mov_b32 s83, 0\ns_mov_b64 exec, -1")
                s.stamps_out()
        A.I("s_endpgm")

    def build(s):
        A=s.A; o=s.o
        A.raw(HDR.rstrip())
        A.raw(f"; @launch grid=(256,1,1) block=(512,1,1) lds={LDS}")
        A.raw('.amdgcn_target "amdgcn-amd-amdhsa--gfx950"')
        A.raw(".text"); A.raw(f".globl {NAME}_kernel"); A.raw(".p2align 8"); A.raw(f".type {NAME}_kernel,@function"); A.raw(f"{NAME}_kernel:")
        A.I("s_cmp_ge_u32 s2, 256\ns_cbranch_scc1 L_end")
        s.zero_stamps()
        s.stamp(0)
        A.I("s_load_dwordx8 s[8:15], s[0:1], 0\ns_load_dwordx8 s[16:23], s[0:1], 32\ns_load_dwordx8 s[24:31], s[0:1], 64")
        A.I("v_lshrrev_b32 v2, 6, v0\nv_and_b32 v1, 63, v0\nv_readfirstlane_b32 s3, v2")
        A.I("s_lshr_b32 s4, s2, 5\ns_and_b32 s5, s2, 31")
        pass
        A.I("s_cmp_lg_u32 s3, 7\ns_cbranch_scc1 L_b0")
        A.I(f"v_lshlrev_b32 v8, 2, v1\nv_mov_b32 v9, {hex(Q_EMPTY)}\nv_mov_b32 v10, 0")
        A.I(f"s_mov_b64 exec, 0xff\nds_write_b32 v8, v10 offset:{L_F}\ns_mov_b64 exec, 3\nds_write_b32 v8, v10 offset:{L_P}\ns_mov_b64 exec, -1")
        if o.dyn: A.I(f"ds_write_b32 v8, v9 offset:{L_QU}\nds_write_b32 v8, v9 offset:{L_QU+256}")
        A.I("s_waitcnt lgkmcnt(0)\ns_barrier\ns_load_dword s6, s[30:31], 0\ns_branch L_h3")
        A.label("L_b0", flush=False)
        A.I("s_cmp_ge_u32 s3, 4\ns_cbranch_scc1 L_helpers")
        s.stream()
        A.hist=[]
        A.label("L_helpers", flush=False)
        A.I("s_waitcnt lgkmcnt(0)")
        A.I("s_load_dword s6, s[30:31], 0")
        A.I("s_cmp_eq_u32 s3, 5\ns_cbranch_scc1 L_h1\ns_cmp_eq_u32 s3, 6\ns_cbranch_scc1 L_h2")
        s.h0(); A.hist=[]
        s.h1(); A.hist=[]
        s.h2(); A.hist=[]
        s.h3(); A.hist=[]
        A.label("L_end", flush=False)
        A.I("s_endpgm")
        A.raw('.section .rodata,"a"'); A.raw(".p2align 6"); A.raw(f".amdhsa_kernel {NAME}_kernel")
        A.raw("  .amdhsa_next_free_vgpr 256\n  .amdhsa_next_free_sgpr 102\n  .amdhsa_accum_offset 256\n  .amdhsa_group_segment_fixed_size 0\n  .amdhsa_kernarg_size 96\n  .amdhsa_user_sgpr_count 2\n  .amdhsa_user_sgpr_kernarg_segment_ptr 1\n  .amdhsa_system_sgpr_workgroup_id_x 1\n  .amdhsa_float_denorm_mode_32 3\n.end_amdhsa_kernel")
        return A.text()

if __name__=="__main__":
    ap=argparse.ArgumentParser()
    ap.add_argument("-o",dest="out",default="k.s")
    ap.add_argument("--p",type=int,default=13)
    ap.add_argument("--ns",type=int,default=13)
    ap.add_argument("--d",type=int,default=8)
    ap.add_argument("--rot",type=int,default=0)
    ap.add_argument("--nt",type=int,default=1)
    ap.add_argument("--wnt",type=int,default=1)
    ap.add_argument("--thr",type=float,default=8.0)
    ap.add_argument("--timeout",type=int,default=200000)
    ap.add_argument("--stamps",type=int,default=0)
    ap.add_argument("--dbg",type=int,default=0)
    ap.add_argument("--qsleep",type=int,default=2)
    ap.add_argument("--q2",type=int,default=1)
    ap.add_argument("--dyn",type=int,default=8)
    ap.add_argument("--lin1",type=int,default=0)
    ap.add_argument("--lin2",type=int,default=1)
    ap.add_argument("--hp1",type=int,default=4)
    ap.add_argument("--hp2",type=int,default=0)
    ap.add_argument("--st2",type=int,default=0)
    ap.add_argument("--wodelay",type=int,default=0)
    ap.add_argument("--wolate",type=int,default=2)
    ap.add_argument("--lead",type=int,default=2)
    ap.add_argument("--sh",type=int,default=32)
    ap.add_argument("--satom",type=int,default=1)
    ap.add_argument("--gsleep",type=int,default=3)
    ap.add_argument("--b2lds",type=int,default=1)
    ap.add_argument("--ffnafterq",type=int,default=0)
    ap.add_argument("--emptyflag",type=int,default=0)
    ap.add_argument("--softflag",type=int,default=1)
    ap.add_argument("--soft",type=int,default=1)
    ap.add_argument("--soft_a",type=int,default=6)
    ap.add_argument("--soft_b",type=int,default=20)
    ap.add_argument("--soft_n",type=int,default=8)
    ap.add_argument("--wostamp",type=int,default=0)
    ap.add_argument("--ylate",type=int,default=1)
    ap.add_argument("--ffnspread",type=int,default=1)
    ap.add_argument("--d0",type=int,default=8)
    ap.add_argument("--dp",type=int,default=0)
    ap.add_argument("--setup_at",type=int,default=16)
    ap.add_argument("--h1two",type=int,default=0)
    ap.add_argument("--h1sleep",type=int,default=1)
    o=ap.parse_args()
    open(o.out,"w").write(G(o).build())
```

```python
import sys, argparse
from asmlib import Asm
NAME="recurrent_scan__gqa_block_cached__geglu_ffn__decode"
HDR = """; Kernarg layout for this problem (96 bytes, ptrs only, base s[0:1]):
"""
WS_ML=0x8000; WS_CT=0x10000; WS_HQ=0x12000; WS_HG=0x13000; WS_HH=0x14000; WS_HS=0x1C000; WS_QX=0x20000; WS_GX=0x40000; WS_YP=0x80000; WS_H1=0x180000; WS_SP=0x280000; WS_ST=0x380000; WS_SIZE=0x400000
FSTR=32768
L_Q=0; L_O=2048; L_M=10240; L_F=10496; L_G=10512; L_Y=10752; L_S=11008; L_QU=11264; L_P=11776; L_X=12288; LDS=16384
Q_EMPTY=0xfffffffe; Q_END=0xffffffff
C_SCALE=0x3db8aa3b
def f2u(x):
    import struct; return struct.unpack('<I',struct.pack('<f',x))[0]

class G:
    def __init__(s, o):
        s.o=o; s.A=Asm(); s.nst=0
    def stamp(s, i):
        if s.o.stamps: s.A.I(f"s_memrealtime s[{80+2*i}:{81+2*i}]")
    def stamps_out(s):
        if not s.o.stamps: return
        A=s.A
        A.I("s_waitcnt vmcnt(0) lgkmcnt(0)")
        A.I("s_mov_b64 exec, 1")
        A.I(f"s_lshl_b32 s60, s2, 3\ns_add_u32 s60, s60, s3\ns_lshl_b32 s60, s60, 6\ns_add_u32 s60, s60, {WS_ST}")
        A.I("s_mov_b32 s72, s30\ns_mov_b32 s73, s31\ns_mov_b32 s74, %d\ns_mov_b32 s75, 0x20000"%WS_SIZE)
        A.I("v_mov_b32 v2, s60")
        for q in range(4):
            for r in range(4): A.I(f"v_mov_b32 v{4+r}, s{80+4*q+r}")
            A.I(f"buffer_store_dwordx4 v[4:7], v2, s[72:75], 0 offen offset:{16*q}")
            A.I("s_waitcnt vmcnt(0)")
        A.I("s_mov_b64 exec, -1")
    def zero_stamps(s):
        if s.o.stamps:
            for i in range(16): s.A.I(f"s_mov_b32 s{80+i}, 0")
            s.A.I("s_nop 0")
    def srd(s, r, lo, size):
        s.A.I(f"s_mov_b32 s{r}, s{lo}\ns_mov_b32 s{r+1}, s{lo+1}\ns_mov_b32 s{r+2}, {size}\ns_mov_b32 s{r+3}, 0x20000")
    def row_allreduce(s, op, regs, steps=(8,4,2,1)):
        for st in steps:
            for r in regs: s.A.I(f"{op}_dpp v{r}, v{r}, v{r} row_ror:{st} row_mask:0xf bank_mask:0xf")
    def cross_rows(s, op, regs, tmps):
        A=s.A
        for sw in ("v_permlane16_swap_b32","v_permlane32_swap_b32"):
            for r,t in zip(regs,tmps): A.I(f"v_mov_b32 v{t}, v{r}")
            for r,t in zip(regs,tmps): A.I(f"{sw} v{r}, v{t}")
            for r,t in zip(regs,tmps): A.I(f"{op} v{r}, v{r}, v{t}")
    def wave_allreduce(s, op, regs, tmps):
        s.row_allreduce(op, regs); s.cross_rows(op, regs, tmps)
    def bf16r(s, dst, src):
        s.A.I(f"v_cvt_pk_bf16_f32 v{dst}, v{src}, 0\nv_lshlrev_b32 v{dst}, 16, v{dst}")
    def make_masks(s, m0, lane, t0, t1):
        A=s.A
        A.I(f"v_and_b32 v{t0}, 1, v{lane}\nv_lshlrev_b32 v{t0}, 4, v{t0}\nv_mov_b32 v{t1}, 0xffff\nv_lshlrev_b32 v{t0}, v{t0}, v{t1}")
        A.I(f"v_bfe_u32 v{t1}, v{lane}, 1, 2")
        for r in range(4):
            A.I(f"v_cmp_eq_u32 vcc, {r}, v{t1}\nv_cndmask_b32 v{m0+r}, 0, v{t0}, vcc")
    def tag_from_E(s):
        s.A.I("s_mul_i32 s6, s6, 0x9E3779B1\ns_add_u32 s6, s6, 0x7F4A7C15")
    def poll(s, name, loads, tags, acc, pre=None, sleep=0, lanes=None):
        A=s.A
        A.I(f"s_mov_b32 s62, {s.o.timeout}")
        A.label(name)
        if pre: A.I(pre)
        for l in loads: A.I(l)
        if lanes is None: A.I("s_mov_b64 exec, -1")
        A.I("s_waitcnt vmcnt(0)")
        A.I(f"v_xor_b32 v{acc}, s6, v{tags[0]}")
        for t in tags[1:]: A.I(f"v_bitop3_b32 v{acc}, v{t}, s6, v{acc} bitop3:0xbe")
        A.I(f"v_cmp_ne_u32 vcc, 0, v{acc}")
        A.I(f"s_cbranch_vccz {name}_ok")
        if sleep: A.I(f"s_sleep {sleep}")
        A.I("s_sub_u32 s62, s62, 1\ns_cmp_lg_u32 s62, 0")
        A.I(f"s_cbranch_scc1 {name}")
        A.label(name+"_ok")
        if lanes is not None: A.I("s_mov_b64 exec, -1")
    def layernorm(s, ldsbase):
        A=s.A
        for d in range(4):
            A.I(f"v_lshlrev_b32 v{10+2*d}, 16, v{4+d}\nv_and_b32 v{11+2*d}, 0xffff0000, v{4+d}")
        A.I("v_add_f32 v18, v10, v11\nv_add_f32 v19, v12, v13\nv_add_f32 v20, v14, v15\nv_add_f32 v21, v16, v17")
        A.I("v_add_f32 v18, v18, v19\nv_add_f32 v20, v20, v21\nv_add_f32 v18, v18, v20")
        s.wave_allreduce("v_add_f32",[18],[19])
        A.I(f"v_mul_f32 v18, {hex(f2u(1/448))}, v18")
        for i in range(8): A.I(f"v_sub_f32 v{20+i}, v{10+i}, v18")
        A.I("v_mul_f32 v19, v20, v20")
        for i in range(1,8): A.I(f"v_fmac_f32 v19, v{20+i}, v{20+i}")
        A.I("v_cmp_gt_u32 vcc, 56, v1\nv_cndmask_b32 v19, 0, v19, vcc")
        s.wave_allreduce("v_add_f32",[19],[20])
        A.I(f"v_mul_f32 v19, {hex(f2u(1/448))}, v19")
        s.bf16r(18,18); s.bf16r(19,19)
        A.I("v_add_f32 v19, 0x3727c5ac, v19"); s.bf16r(19,19)
        A.I("v_sqrt_f32 v19, v19"); s.bf16r(19,19)
        A.I("v_rcp_f32 v8, v19")
        for i in range(8): A.I(f"v_sub_f32 v{20+i}, v{10+i}, v18")
        for i in range(8): A.I(f"v_cvt_pk_bf16_f32 v{20+i}, v{20+i}, 0")
        for i in range(8): A.I(f"v_lshlrev_b32 v{20+i}, 16, v{20+i}")
        for i in range(8): A.I(f"v_mul_f32 v{10+i}, v{20+i}, v8")
        for i in range(8): A.I(f"v_fma_f32 v{20+i}, -v{10+i}, v19, v{20+i}")
        for i in range(8): A.I(f"v_fmac_f32 v{10+i}, v{20+i}, v8")
        for i in range(8): A.I(f"v_cvt_pk_bf16_f32 v{20+i}, v{10+i}, 0")
        A.I(f"v_lshlrev_b32 v9, 5, v1")
        A.I(f"ds_write_b128 v9, v[20:23] offset:{ldsbase}\nds_write_b128 v9, v[24:27] offset:{ldsbase+16}")
        A.I("s_waitcnt lgkmcnt(0)")
    def matvec_prep(s, px, st, tagv):
        A=s.A
        A.I(f"v_lshrrev_b32 v{px}, 2, v1\nv_bfe_u32 v{px+1}, v1, 1, 1\nv_lshlrev_b32 v{px+1}, 4, v{px+1}\nv_add_u32 v{px}, v{px}, v{px+1}")
        A.I(f"v_and_b32 v{px+1}, 1, v1\nv_lshlrev_b32 v{px+1}, 5, v{px+1}\nv_add_u32 v{px}, v{px}, v{px+1}\nv_lshlrev_b32 v{px}, 2, v{px}")
        for cb in range(4): A.I(f"v_mov_b32 v{st+4*cb+1}, {tagv}\nv_mov_b32 v{st+4*cb+3}, {tagv}")
        A.I("s_mov_b32 s70, 0\ns_mov_b32 s71, -1")
        for cb in range(4): A.I(f"s_mov_b32 s{64+cb}, {cb*8*FSTR}")
    def matvec_publish(s, nt, avals, wregs, masks, dacc, areg, voff, srd, px, st):
        A=s.A
        for t in range(nt):
            a=areg+4*(t%2)
            for r in range(4): A.I(f"v_and_b32 v{a+r}, v{avals[t]}, v{masks+r}")
            for cb in range(4):
                c = "0" if t==0 else f"v[{dacc+4*cb}:{dacc+4*cb+3}]"
                w=wregs(t,cb)
                A.I(f"v_mfma_f32_16x16x32_bf16 v[{dacc+4*cb}:{dacc+4*cb+3}], v[{a}:{a+3}], v[{w}:{w+3}], {c}")
        for cb in range(4):
            d=dacc+4*cb
            A.I(f"v_cndmask_b32 v{d}, v{d}, v{d+2}, s[70:71]")
            A.I(f"v_cndmask_b32 v{d+1}, v{d+1}, v{d+3}, s[70:71]")
            A.I(f"ds_bpermute_b32 v{st+4*cb}, v{px}, v{d}\nds_bpermute_b32 v{st+4*cb+2}, v{px}, v{d+1}")
        for cb in range(4):
            A.I("s_waitcnt lgkmcnt(%d)"%(0 if s.o.stamps else 6-2*cb))
            if cb==3: A.I("s_mov_b32 exec_hi, 0")
            A.I(f"buffer_store_dwordx4 v[{st+4*cb}:{st+4*cb+3}], v{voff}, s[{srd}:{srd+3}], s{64+cb} offen sc1")
        A.I("s_mov_b64 exec, -1")
    def pub_voff(s, dst, t0, base):
        A=s.A
        A.I(f"v_lshrrev_b32 v{dst}, 3, v1\nv_lshlrev_b32 v{dst}, 15, v{dst}\nv_and_b32 v{t0}, 7, v1\nv_lshlrev_b32 v{t0}, 4, v{t0}")
        A.I(f"s_lshl_b32 s55, s2, 7\ns_add_u32 s55, s55, {base}\nv_add3_u32 v{dst}, v{dst}, v{t0}, s55")
    def rowsplit_voff(s, dst, t0, sbase):
        A=s.A
        A.I(f"v_bfe_u32 v{dst}, v1, 1, 3\nv_lshlrev_b32 v{dst}, 7, v{dst}\nv_lshrrev_b32 v{t0}, 4, v1\nv_lshlrev_b32 v{t0}, 5, v{t0}\nv_add_u32 v{dst}, v{dst}, v{t0}")
        A.I(f"v_and_b32 v{t0}, 1, v1\nv_lshlrev_b32 v{t0}, 4, v{t0}\nv_add3_u32 v{dst}, v{dst}, v{t0}, s{sbase}")
    def reduce8(s, a):
        A=s.A
        for e in range(4): A.I(f"v_permlane32_swap_b32 v{a+e}, v{a+4+e}")
        for e in range(4): A.I(f"v_add_f32 v{a+e}, v{a+e}, v{a+4+e}")
        for e in range(2): A.I(f"v_permlane16_swap_b32 v{a+e}, v{a+2+e}")
        for e in range(2): A.I(f"v_add_f32 v{a+e}, v{a+e}, v{a+2+e}")
        s.row_allreduce("v_add_f32",[a,a+1],(8,))
    def pub8(s, a, voff, srd):
        A=s.A
        A.I(f"v_mov_b32 v{a+2}, v{a+1}\nv_mov_b32 v{a+1}, s6\nv_mov_b32 v{a+3}, s6")
        A.I("s_mov_b32 exec_lo, 0x00ff00ff\ns_mov_b32 exec_hi, 0x00ff00ff")
        A.I(f"buffer_store_dwordx4 v[{a}:{a+3}], v{voff}, s[{srd}:{srd+3}], 0 offen sc1")
        A.I("s_mov_b64 exec, -1")
    def pub8_voff(s, dst, t0, sbase):
        A=s.A
        A.I(f"v_and_b32 v{dst}, 7, v1\nv_lshlrev_b32 v{dst}, 6, v{dst}\nv_lshrrev_b32 v{t0}, 4, v1\nv_lshlrev_b32 v{t0}, 4, v{t0}\nv_add3_u32 v{dst}, v{dst}, v{t0}, s{sbase}")
    def bcast_rows(s, dst, src, lanefn):
        for kg in range(4):
            s.A.I(f"v_mov_b32_dpp v{dst}, v{src} row_newbcast:{lanefn(kg)} row_mask:{hex(1<<kg)} bank_mask:0xf")

    def stream(s):
        A=s.A; o=s.o
        VK,VV,NEGM,LS,CS,T=2,3,4,5,6,7
        MK=8; Q0=12; Q1=16; D=20; AP=24; O0=28; O1=32; P=36; RING=40
        NS=o.ns; DD=o.d; NSETS=32-o.dyn; LAG=DD//4; RS=LAG+1
        A.c("---- stream waves")
        if o.prio: A.I(f"s_setprio {o.prio}")
        A.I("v_bfe_u32 v8, v1, 2, 2\nv_lshlrev_b32 v8, 9, v8")
        A.I("v_lshrrev_b32 v9, 4, v1\nv_lshlrev_b32 v10, 6, v9")
        A.I("v_and_b32 v11, 3, v1\nv_lshlrev_b32 v11, 4, v11")
        A.I(f"v_add3_u32 v{VK}, v8, v10, v11")
        A.I("v_lshlrev_b32 v9, 9, v9\nv_and_b32 v10, 15, v1\nv_lshlrev_b32 v10, 4, v10")
        A.I(f"v_add_u32 v{VV}, v9, v10")
        A.I("s_lshl_b32 s55, s3, 11")
        A.I(f"v_add_u32 v{VK}, s55, v{VK}\nv_add_u32 v{VV}, s55, v{VV}\nv_mov_b32 v0, 0")
        A.I(f"s_lshl_b32 s44, s5, 18")
        A.I("s_lshl_b32 s55, s4, 23")
        A.I("s_waitcnt lgkmcnt(0)")
        if o.st2==2: s.stamp(5)
        A.I("s_add_u32 s32, s10, s55\ns_addc_u32 s33, s11, 0\ns_mov_b32 s34, 0x800000\ns_mov_b32 s35, 0x20000")
        A.I("s_add_u32 s36, s12, s55\ns_addc_u32 s37, s13, 0\ns_mov_b32 s38, 0x800000\ns_mov_b32 s39, 0x20000")
        st={'issued':0,'landed':0,'slot':{}, 'free':list(range(NS))}
        nt=" nt" if o.nt else ""
        def issue():
            x=st['issued']; se,part=divmod(x,4)
            if part==0:
                st['slot'][se]=st['free'].pop(0)
                if se>0: A.I("s_add_u32 s44, s44, 8192")
                if o.dyn and se>=NSETS-o.lead: A.I(f"v_mov_b32 v38, {se}\nds_max_u32 v0, v38 offset:{L_P}")
                if o.st2==1 and se==16: s.stamp(5)
                if o.st2==1 and se==20: s.stamp(6)
                if o.st2==1 and se==NSETS-1: s.stamp(7)
                if o.st2==2 and se==4: s.stamp(7)
            r=RING+16*st['slot'][se]+4*part
            if part<2: A.I(f"buffer_load_dwordx4 v[{r}:{r+3}], v{VK}, s[32:35], s44 offen offset:{256*part}{nt}")
            else: A.I(f"buffer_load_dwordx4 v[{r}:{r+3}], v{VV}, s[36:39], s44 offen offset:{256*(part-2)}{nt}")
            st['issued']+=1
        def can_issue():
            x=st['issued']
            if x>=4*NSETS: return False
            return (x%4!=0) or bool(st['free'])
        def wait_landed(n):
            if st['landed']>=n: return
            A.I(f"s_waitcnt vmcnt({st['issued']-n})"); st['landed']=n
        def pace(dd=None):
            dd = dd or DD
            x=st['issued']
            if x-st['landed']>=dd: wait_landed(x-dd+1)
            issue()
        for x in range(min(o.d0,4*o.p)): issue()
        A.I("s_barrier")
        DP = o.dp or DD
        if o.d0<DP:
            wait_landed(1)
            if o.st2==2: s.stamp(6)
            while st['issued']<DP: issue()
        while st['issued']<min(4*o.p, o.setup_at): pace(DP)
        A.I("s_load_dword s6, s[30:31], 0")
        s.make_masks(MK,1,37,38)
        A.I(f"v_mov_b32 v{CS}, {hex(C_SCALE)}\nv_mov_b32 v{NEGM}, 0\nv_mov_b32 v{LS}, 0")
        for r in range(8): A.I(f"v_mov_b32 v{O0+r}, 0")
        A.I("v_lshrrev_b32 v248, 3, v1\nv_lshlrev_b32 v248, 4, v248\ns_lshl_b32 s54, s3, 2\nv_add_u32 v248, s54, v248")
        A.I("v_lshrrev_b32 v249, 5, v1\nv_lshlrev_b32 v249, 10, v249\nv_and_b32 v37, 15, v1\nv_lshlrev_b32 v37, 5, v37\nv_add_u32 v249, v249, v37")
        A.I("v_bfe_u32 v37, v1, 4, 1\nv_lshlrev_b32 v37, 4, v37\ns_lshl_b32 s54, s3, 11\nv_add3_u32 v249, v249, v37, s54")
        A.I("s_lshr_b32 s54, s3, 1\ns_and_b32 s55, s3, 1\ns_lshl_b32 s55, s55, 6\nv_add_u32 v37, s55, v1")
        A.I("s_lshl_b32 s55, s54, 10\nv_lshlrev_b32 v250, 3, v37\nv_add_u32 v250, s55, v250")
        A.I("s_lshl_b32 s55, s54, 4\nv_mov_b32 v251, s55")
        s.srd(40,30,WS_SIZE)
        A.I(f"s_lshl_b32 s55, s4, 5\ns_lshl_b32 s56, s54, 4\ns_add_u32 s55, s55, s56\ns_lshl_b32 s55, s55, 12\ns_lshl_b32 s56, s5, 7\ns_add_u32 s55, s55, s56\ns_add_u32 s55, s55, {WS_H1}")
        if o.hint&4:
            A.I(f"s_lshl_b32 s56, s4, 5\ns_lshl_b32 s57, s3, 3\ns_add_u32 s56, s56, s57\ns_lshl_b32 s56, s56, 7\ns_add_u32 s56, s56, s5\ns_add_u32 s56, s56, {WS_HH}\nv_lshlrev_b32 v253, 7, v1\nv_add_u32 v253, s56, v253")
        A.I("v_lshrrev_b32 v252, 3, v37\nv_lshlrev_b32 v252, 12, v252\nv_and_b32 v37, 7, v37\nv_lshlrev_b32 v37, 4, v37\nv_add3_u32 v252, v252, v37, s55")
        while st['issued']<4*o.p: pace(DP)
        s.stamp(1)
        A.I("s_waitcnt lgkmcnt(0)")
        s.tag_from_E()
        if not (o.dbg&1):
            A.I(f"s_mov_b32 s62, {o.timeout}\nv_mov_b32 v39, 0")
            A.label("L_qw")
            A.I(f"ds_read_b128 v[20:23], v39 offset:{L_G}\ns_waitcnt lgkmcnt(0)")
            A.I("v_and_b32 v37, v20, v21\nv_and_b32 v38, v22, v23\nv_and_b32 v37, v37, v38")
            A.I("v_cmp_eq_u32 vcc, 0, v37\ns_cbranch_vccz L_qw_ok\ns_sleep 1\ns_sub_u32 s62, s62, 1\ns_cmp_lg_u32 s62, 0\ns_cbranch_scc1 L_qw")
            A.label("L_qw_ok")
        s.stamp(2)
        A.I("v_bfe_u32 v37, v1, 3, 1\nv_lshlrev_b32 v37, 9, v37\nv_lshrrev_b32 v38, 4, v1\nv_lshlrev_b32 v38, 6, v38\nv_add_u32 v37, v37, v38\nv_and_b32 v38, 3, v1\nv_lshlrev_b32 v38, 4, v38\nv_add_u32 v37, v37, v38")
        A.I(f"ds_read_b128 v[{Q0}:{Q0+3}], v37 offset:{L_Q}\nds_read_b128 v[{Q1}:{Q1+3}], v37 offset:{L_Q+256}")
        A.I("s_waitcnt lgkmcnt(0)")
        stubs=[]
        def procA(sl):
            A.I(f"v_mfma_f32_16x16x32_bf16 v[{D}:{D+3}], v[{sl}:{sl+3}], v[{Q0}:{Q0+3}], 0")
            A.I(f"v_mfma_f32_16x16x32_bf16 v[{D}:{D+3}], v[{sl+4}:{sl+7}], v[{Q1}:{Q1+3}], v[{D}:{D+3}]")
            A.I(f"v_mov_b32 v{T}, v{NEGM}")
            A.I(f"v_mov_b32 v37, 0")
        def procB(name, first=False):
            A.I(f"v_fmac_f32_dpp v{T}, v{D}, v{CS} quad_perm:[0,0,0,0] row_mask:0xf bank_mask:0xf")
            A.I(f"v_fmac_f32_dpp v37, v{D+1}, v{CS} quad_perm:[1,1,1,1] row_mask:0xf bank_mask:0xf")
            A.I(f"v_fmac_f32_dpp v{T}, v{D+2}, v{CS} quad_perm:[2,2,2,2] row_mask:0xf bank_mask:0xf")
            A.I(f"v_fmac_f32_dpp v37, v{D+3}, v{CS} quad_perm:[3,3,3,3] row_mask:0xf bank_mask:0xf")
            A.I(f"v_add_f32 v{T}, v{T}, v37")
            if first:
                A.I(f"v_mov_b32 v37, v{T}")
                s.cross_rows("v_max_f32",[37],[38])
                A.I(f"v_sub_f32 v{NEGM}, 0, v37\nv_sub_f32 v{T}, v{T}, v37")
            else:
                A.I(f"v_cmp_lt_f32 vcc, {hex(f2u(o.thr))}, v{T}")
                A.I(f"s_cbranch_vccnz L_stub{name}")
                A.raw(f"L_res{name}:")
                stubs.append(name)
            A.I(f"v_exp_f32 v{T}, v{T}")
            A.I(f"v_cvt_pk_bf16_f32 v{P}, v{T}, v{T}")
            A.I(f"v_add_f32 v{LS}, v{LS}, v{T}")
            for r in range(4): A.I(f"v_and_b32 v{AP+r}, v{P}, v{MK+r}")
        def procC(sl):
            A.I(f"v_mfma_f32_16x16x32_bf16 v[{O0}:{O0+3}], v[{AP}:{AP+3}], v[{sl+8}:{sl+11}], v[{O0}:{O0+3}]")
            A.I(f"v_mfma_f32_16x16x32_bf16 v[{O1}:{O1+3}], v[{AP}:{AP+3}], v[{sl+12}:{sl+15}], v[{O1}:{O1+3}]")
        def proc(sl, name, first=False, kwait=None, vwait=None):
            if kwait: kwait()
            procA(sl); procB(name, first)
            if vwait: vwait()
            procC(sl)
        def process(se):
            proc(RING+16*st['slot'][se], str(se), se==0, lambda: wait_landed(4*se+2), lambda: wait_landed(4*se+4))
            st['free'].append(st['slot'][se])
        sp=0
        last = NSETS-LAG if o.dyn else NSETS
        while sp<last or (o.dyn and st['issued']<4*NSETS):
            backlog = st['landed']//4 - sp
            x=st['issued']
            if o.ilv and LAG==2 and x%4==0 and x//4==sp+LAG and can_issue() and sp>0 and sp<last:
                sl=RING+16*st['slot'][sp]
                pace(); pace()
                assert st['landed']>=4*sp+2
                procA(sl)
                pace()
                procB(str(sp))
                pace()
                assert st['landed']>=4*sp+4
                procC(sl)
                st['free'].append(st['slot'][sp]); sp+=1
            elif backlog>0 and sp<last and not (o.ilv and LAG==2 and backlog==1 and x//4-sp<=LAG and x%4!=0):
                process(sp); sp+=1
                if can_issue() and (backlog>1 or not o.ilv): pace()
            elif can_issue(): pace()
            else:
                process(sp); sp+=1
        if o.dyn:
            assert st['issued']==4*NSETS and sp==NSETS-LAG, (st['issued'], sp)
            DS={}
            for x in range(NSETS-LAG,NSETS): DS[x%RS]=st['slot'][x]
            DS[NSETS%RS]=st['free'][0]
            assert len(set(DS.values()))==RS
            A.I("s_mov_b32 s46, 0")
            A.I(f"s_mov_b32 s47, {NSETS}")
            A.I(f"v_mov_b32 v39, s46\nds_read_b32 v38, v39 offset:{L_QU}")
            order=[(NSETS+i)%RS for i in range(RS)]
            for i,ph in enumerate(order):
                A.label(f"L_dyn{ph}", flush=True)
                A.I(f"s_mov_b32 s62, {o.timeout}")
                A.label(f"L_dq{ph}", flush=False)
                A.I("s_waitcnt lgkmcnt(0)\nv_readfirstlane_b32 s44, v38")
                A.I(f"s_cmp_lt_u32 s44, {hex(Q_EMPTY)}\ns_cbranch_scc1 L_dgo{ph}")
                A.I(f"s_cmp_eq_u32 s44, {hex(Q_END)}\ns_cbranch_scc1 L_drain{ph}")
                A.I(f"s_sub_u32 s62, s62, 1\ns_cmp_eq_u32 s62, 0\ns_cbranch_scc1 L_drain{ph}")
                if o.soft: A.I(f"v_mov_b32 v38, 1\nds_write_b32 v0, v38 offset:{L_P+8}")
                if o.wolate==2 and o.emptyflag: A.I(f"v_mov_b32 v38, 1\nds_write_b32 v0, v38 offset:{L_F+12}")
                A.I(f"s_sleep 1\nds_read_b32 v38, v39 offset:{L_QU}\ns_branch L_dq{ph}")
                A.label(f"L_dgo{ph}", flush=False)
                A.I(f"v_mov_b32 v38, s47\nds_max_u32 v0, v38 offset:{L_P}")
                sl=RING+16*DS[ph]
                psl=RING+16*DS[(ph-LAG)%RS]
                for part in range(4):
                    A.I(f"s_waitcnt vmcnt({DD-1})")
                    r=sl+4*part
                    if part<2: A.I(f"buffer_load_dwordx4 v[{r}:{r+3}], v{VK}, s[32:35], s44 offen offset:{256*part}{nt}")
                    else: A.I(f"buffer_load_dwordx4 v[{r}:{r+3}], v{VV}, s[36:39], s44 offen offset:{256*(part-2)}{nt}")
                    if o.ilv and LAG==2:
                        if part==1: procA(psl)
                        if part==2: procB(f"d{ph}")
                        if part==3: procC(psl)
                A.I("s_add_u32 s46, s46, 4\ns_add_u32 s47, s47, 1")
                if not (o.ilv and LAG==2): proc(psl, f"d{ph}")
                A.I(f"v_mov_b32 v39, s46\nds_read_b32 v38, v39 offset:{L_QU}")
                if i==RS-1: A.I(f"s_branch L_dyn{order[0]}")
            for ph in order:
                A.label(f"L_drain{ph}", flush=True)
                A.I(f"v_mov_b32 v38, 1\nds_write_b32 v0, v38 offset:{L_F+12}")
                cnt=[4*LAG]
                for t in range(LAG,0,-1):
                    def kw(n=4*t-2): A.I(f"s_waitcnt vmcnt({n})")
                    def vw(n=4*t-4): A.I(f"s_waitcnt vmcnt({n})")
                    proc(RING+16*DS[(ph-t)%RS], f"e{ph}_{t}", False, kw, vw)
                A.I("s_branch L_sdone")
            A.label("L_sdone", flush=True)
        s.stamp(3)
        s.cross_rows("v_add_f32",[LS],[37])
        A.I(f"v_sub_f32 v38, 0, v{NEGM}")
        A.I(f"ds_write_b128 v249, v[{O0}:{O0+3}] offset:{L_O}\nds_write_b128 v249, v[{O1}:{O1+3}] offset:{L_O+512}")
        A.I("s_mov_b32 exec_lo, 0x101\ns_mov_b32 exec_hi, 0")
        A.I(f"ds_write_b32 v248, v38 offset:{L_M}\nds_write_b32 v248, v{LS} offset:{L_M+32}")
        A.I("s_mov_b64 exec, -1")
        A.I("s_waitcnt lgkmcnt(0)")
        if o.b2lds:
            A.I(f"v_mov_b32 v38, 1\ns_mov_b64 exec, 1\nds_add_u32 v0, v38 offset:{L_P+4}\ns_mov_b64 exec, -1\ns_mov_b32 s62, {o.timeout}")
            A.label("L_b2", flush=False)
            A.I(f"ds_read_b32 v38, v0 offset:{L_P+4}\ns_waitcnt lgkmcnt(0)\nv_cmp_gt_u32 vcc, 4, v38\ns_cbranch_vccz L_b2_ok\ns_sub_u32 s62, s62, 1\ns_cmp_lg_u32 s62, 0\ns_cbranch_scc1 L_b2")
            A.label("L_b2_ok", flush=False)
        else:
            A.I("s_barrier")
        s.stamp(4)
        A.I(f"ds_read_b128 v[8:11], v251 offset:{L_M}\nds_read_b128 v[12:15], v251 offset:{L_M+32}")
        for w in range(4): A.I(f"ds_read_b64 v[{16+2*w}:{17+2*w}], v250 offset:{L_O+2048*w}")
        A.I("v_mov_b32 v31, s6\ns_mov_b32 s56, 0xaaaaaaaa\ns_mov_b32 s57, 0xaaaaaaaa")
        A.I("s_waitcnt lgkmcnt(%d)"%(0 if o.stamps else 4))
        A.I("v_max3_f32 v24, v8, v9, v10\nv_max_f32 v24, v24, v11")
        for w in range(4): A.I(f"v_sub_f32 v{8+w}, v{8+w}, v24")
        for w in range(4): A.I(f"v_exp_f32 v{8+w}, v{8+w}")
        A.I("s_waitcnt lgkmcnt(0)")
        A.I("v_mul_f32 v26, v8, v12\nv_mul_f32 v28, v8, v16\nv_mul_f32 v29, v8, v17")
        for w in range(1,4):
            A.I(f"v_fmac_f32 v26, v{8+w}, v{12+w}\nv_fmac_f32 v28, v{8+w}, v{16+2*w}\nv_fmac_f32 v29, v{8+w}, v{17+2*w}")
        A.I("v_cndmask_b32 v30, v24, v26, s[56:57]")
        A.I("buffer_store_dwordx4 v[28:31], v252, s[40:43], 0 offen sc1")
        if o.hint&4: s.hintstore(253,27,40,0xff)
        if not o.st2: s.stamp(5)
        if not (o.dbg&4):
            A.I("s_cmp_ge_u32 s2, 28\ns_cbranch_scc1 L_st_end")
            s.final()
        A.label("L_st_end")
        s.stamps_out()
        A.I("s_endpgm")
        for se in stubs:
            A.label(f"L_stub{se}", flush=False)
            A.I(f"s_call_b64 s[52:53], L_rare\ns_branch L_res{se}")
        A.hist=[]
        A.label("L_rare", flush=False)
        A.I("s_nop 7")
        A.I(f"v_mov_b32 v37, v{T}")
        s.cross_rows("v_max_f32",[37],[38])
        A.I(f"v_max_f32 v37, 0, v37")
        A.I(f"v_sub_f32 v{NEGM}, v{NEGM}, v37\nv_sub_f32 v{T}, v{T}, v37")
        A.I("v_sub_f32 v38, 0, v37\nv_exp_f32 v38, v38")
        A.I(f"v_mul_f32 v{LS}, v{LS}, v38")
        A.I("v_readlane_b32 s54, v38, 0\nv_readlane_b32 s55, v38, 8")
        A.I("v_mov_b32 v39, s54\nv_mov_b32 v37, s55\ns_mov_b32 s56, 0\ns_mov_b32 s57, -1")
        A.I("v_cndmask_b32 v39, v39, v37, s[56:57]")
        for r in range(8): A.I(f"v_mul_f32 v{O0+r}, v{O0+r}, v39")
        A.flush()
        A.I("s_setpc_b64 s[52:53]")

    def final(s):
        A=s.A; o=s.o
        s.srd(32,8,896); s.srd(36,26,896)
        A.I("s_lshl_b32 s54, s2, 5\nv_and_b32 v2, 7, v1\nv_lshlrev_b32 v7, 3, v2\nv_lshlrev_b32 v2, 2, v2\nv_add_u32 v2, s54, v2\nbuffer_load_dword v4, v2, s[32:35], 0 offen")
        A.I(f"s_lshl_b32 s54, s2, 15\ns_mul_i32 s55, s3, {56*128}\ns_add_u32 s55, s55, s54\ns_add_u32 s55, s55, {WS_YP}")
        def voff():
            if o.lin2: A.I("v_lshlrev_b32 v3, 4, v1\nv_add_u32 v3, s55, v3")
            else: s.rowsplit_voff(3,8,55)
            A.I("v_add_u32 v6, 4096, v3")
        voff()
        if o.lin2: A.I("s_lshl_b32 s54, s3, 6\nv_add_u32 v5, s54, v7")
        else:
            A.I("v_lshrrev_b32 v5, 4, v1\nv_lshlrev_b32 v5, 4, v5\nv_and_b32 v8, 1, v1\nv_lshlrev_b32 v8, 3, v8\ns_lshl_b32 s54, s3, 6\nv_add3_u32 v5, v5, v8, s54")
        def ld(q):
            r=64+4*q
            return f"buffer_load_dwordx4 v[{r}:{r+3}], v{3 if q<4 else 6}, s[40:43], 0 offen offset:{1024*(q%4)} sc1"
        def sums(n, ldsoff):
            A.I("v_add_f32 v10, v64, v68\nv_add_f32 v11, v66, v70\nv_add_f32 v12, v72, v76\nv_add_f32 v13, v74, v78")
            A.I("v_add_f32 v14, v80, v84\nv_add_f32 v15, v82, v86")
            if n==8: A.I("v_add_f32 v16, v88, v92\nv_add_f32 v17, v90, v94")
            else: A.I("v_mov_b32 v16, v88\nv_mov_b32 v17, v90")
            A.I("v_add_f32 v10, v10, v12\nv_add_f32 v11, v11, v13\nv_add_f32 v14, v14, v16\nv_add_f32 v15, v15, v17\nv_add_f32 v10, v10, v14\nv_add_f32 v11, v11, v15")
            if o.lin2:
                s.row_allreduce("v_add_f32",[10,11],(8,)); s.cross_rows("v_add_f32",[10,11],[12,13])
                A.I(f"s_mov_b64 exec, 0xff\nds_write_b64 v5, v[10:11] offset:{ldsoff}\ns_mov_b64 exec, -1\ns_waitcnt lgkmcnt(0)")
            else:
                s.row_allreduce("v_add_f32",[10,11],(2,4,8))
                A.I(f"s_mov_b32 exec_lo, 0x00030003\ns_mov_b32 exec_hi, 0x00030003\nds_write_b64 v5, v[10:11] offset:{ldsoff}\ns_mov_b64 exec, -1\ns_waitcnt lgkmcnt(0)")
        def gather(ldsoff):
            for w in range(4): A.I(f"ds_read_b64 v[{12+2*w}:{13+2*w}], v7 offset:{ldsoff+64*w}")
            A.I("s_waitcnt lgkmcnt(0)")
            A.I("v_add_f32 v10, v12, v14\nv_add_f32 v11, v13, v15\nv_add_f32 v16, v16, v18\nv_add_f32 v17, v17, v19\nv_add_f32 v10, v10, v16\nv_add_f32 v11, v11, v17")
        ylate = o.ylate and o.dyn
        if ylate: A.I("s_barrier")
        s.poll("L_py", [ld(q) for q in range(7)], [65+2*i for i in range(14)], 9, sleep=(1 if ylate else 4))
        sums(7, L_Y)
        A.I(f"s_lshl_b32 s54, s2, 15\ns_lshl_b32 s55, s3, 13\ns_add_u32 s55, s55, s54\ns_add_u32 s55, s55, {WS_SP}")
        voff()
        A.I("v_lshlrev_b32 v24, 16, v4\nv_and_b32 v25, 0xffff0000, v4")
        if not o.st2: s.stamp(6)
        A.I("s_barrier")
        gather(L_Y)
        for r in range(2): s.bf16r(20+r,10+r)
        for r in range(2): A.I(f"v_mul_f32 v{22+r}, {hex(f2u(-1.4426950408889634))}, v{20+r}")
        for r in range(2): A.I(f"v_exp_f32 v{22+r}, v{22+r}")
        for r in range(2): A.I(f"v_add_f32 v{22+r}, 1.0, v{22+r}")
        for r in range(2): A.I(f"v_rcp_f32 v{22+r}, v{22+r}")
        for r in range(2): A.I(f"v_mul_f32 v{20+r}, v{20+r}, v{22+r}")
        for r in range(2): s.bf16r(20+r,20+r)
        if o.hint&8:
            s.hintprep()
            A.I(f"s_lshl_b32 s54, s2, 2\ns_add_u32 s54, s54, s3\ns_lshl_b32 s54, s54, 7\ns_add_u32 s54, s54, {WS_HS}")
            s.hintwait("L_hs", 54, 16, 8)
        s.poll("L_ps", [ld(q) for q in range(8)], [65+2*i for i in range(16)], 9, sleep=o.pssleep)
        sums(8, L_S)
        A.I("s_barrier")
        A.I("s_cmp_lg_u32 s3, 0\ns_cbranch_scc1 L_fin_done")
        gather(L_S)
        for r in range(2): s.bf16r(10+r,10+r)
        for r in range(2): A.I(f"v_mul_f32 v{10+r}, v{10+r}, v{20+r}")
        for r in range(2): s.bf16r(10+r,10+r)
        for r in range(2): A.I(f"v_add_f32 v{10+r}, v{10+r}, v{24+r}")
        A.I("v_cvt_pk_bf16_f32 v14, v10, v11")
        A.I("s_mov_b64 exec, 0xff")
        A.I("buffer_store_dword v14, v2, s[36:39], 0 offen")
        A.I("s_cmp_lg_u32 s2, 0\ns_cbranch_scc1 L_fin_x")
        A.I("s_mov_b64 exec, 1")
        A.I("v_mov_b32 v16, 0\nv_mov_b32 v17, s6\nbuffer_store_dword v17, v16, s[40:43], 0 offen")
        A.label("L_fin_x")
        A.I("s_mov_b64 exec, -1")
        A.label("L_fin_done")
        if not o.st2: s.stamp(7)

    def ldsgate(s, name, off, sleep=2):
        A=s.A
        A.I(f"s_mov_b32 s62, {s.o.timeout}\nv_mov_b32 v8, 0")
        A.label(name)
        A.I(f"ds_read_b32 v9, v8 offset:{off}\ns_waitcnt lgkmcnt(0)\nv_cmp_eq_u32 vcc, 0, v9")
        A.I(f"s_cbranch_vccz {name}_ok\ns_sleep {sleep}\ns_sub_u32 s62, s62, 1\ns_cmp_lg_u32 s62, 0\ns_cbranch_scc1 {name}")
        A.label(name+"_ok")
    def hintprep(s):
        s.A.I("s_and_b32 s68, s6, 0xff\ns_mul_i32 s68, s68, 0x01010101\ns_mov_b32 s69, s68")
    def hintwait(s, name, soff, ndw, d, sleep=0):
        A=s.A
        A.I(f"s_add_u32 s52, s30, s{soff}\ns_addc_u32 s53, s31, 0\ns_mov_b32 s62, {s.o.htimeout}")
        A.label(name, flush=True)
        A.I(f"s_load_dwordx{ndw} s[{d}:{d+ndw-1}], s[52:53], 0x0 glc\ns_waitcnt lgkmcnt(0)")
        for i in range(ndw//2):
            A.I(f"s_cmp_lg_u64 s[{d+2*i}:{d+2*i+1}], s[68:69]\ns_cbranch_scc1 {name}_r")
        A.I(f"s_branch {name}_ok")
        A.label(name+"_r", flush=False)
        if sleep: A.I(f"s_sleep {sleep}")
        A.I(f"s_sub_u32 s62, s62, 1\ns_cmp_lg_u32 s62, 0\ns_cbranch_scc1 {name}")
        A.label(name+"_ok", flush=True)
    def sprobe(s, name, soff, offs, d=72, sleep=1):
        A=s.A
        A.I(f"s_add_u32 s52, s30, s{soff}\ns_addc_u32 s53, s31, 0\ns_mov_b32 s62, {s.o.htimeout}")
        A.label(name, flush=True)
        for i,o_ in enumerate(offs): A.I(f"s_load_dword s{d+i}, s[52:53], {hex(o_)} glc")
        A.I("s_waitcnt lgkmcnt(0)")
        for i in range(len(offs)): A.I(f"s_cmp_lg_u32 s{d+i}, s6\ns_cbranch_scc1 {name}_r")
        A.I(f"s_branch {name}_ok")
        A.label(name+"_r", flush=False)
        if sleep: A.I(f"s_sleep {sleep}")
        A.I(f"s_sub_u32 s62, s62, 1\ns_cmp_lg_u32 s62, 0\ns_cbranch_scc1 {name}")
        A.label(name+"_ok", flush=True)
    def hintstore(s, vaddr, vtmp, srd, execlo):
        A=s.A
        A.I(f"v_mov_b32 v{vtmp}, s6\ns_mov_b32 exec_lo, {hex(execlo)}\ns_mov_b32 exec_hi, 0")
        A.I(f"buffer_store_byte v{vtmp}, v{vaddr}, s[{srd}:{srd+3}], 0 offen sc1\ns_mov_b64 exec, -1")
    def donegate(s, name, n=4, sleep=1):
        A=s.A
        A.I(f"s_mov_b32 s62, {s.o.timeout}\nv_mov_b32 v8, 0")
        A.label(name, flush=True)
        A.I(f"ds_read_b32 v9, v8 offset:{L_P+4}\ns_waitcnt lgkmcnt(0)\nv_cmp_gt_u32 vcc, {n}, v9\ns_cbranch_vccz {name}_ok\ns_sleep {sleep}\ns_sub_u32 s62, s62, 1\ns_cmp_lg_u32 s62, 0\ns_cbranch_scc1 {name}")
        A.label(name+"_ok", flush=True)
    def qpoll(s, name, quarters, gate=True):
        A=s.A
        if s.o.dbg&16: return
        if gate: s.ldsgate(name+"_g", L_F)
        nq=len(quarters); q0=quarters[0]
        A.I(f"s_lshl_b32 s55, s4, 14\ns_add_u32 s55, s55, {WS_QX+q0*1024}")
        if s.o.hint&16:
            for qi in range(nq):
                s.sprobe(f"{name}s{qi}", 55, [rp*4096+qi*1024+cb*512+4 for rp in range(4) for cb in range(2)], sleep=s.o.qsleep)
        elif s.o.hint&1:
            s.hintprep()
            A.I(f"s_lshl_b32 s54, s4, 7\ns_add_u32 s54, s54, {WS_HQ}")
            s.hintwait(name+"h", 54, 8, 72, sleep=1)
        elif s.o.q2:
            A.I("v_and_b32 v8, 3, v1\nv_lshlrev_b32 v8, 12, v8\nv_lshrrev_b32 v7, 2, v1\nv_lshlrev_b32 v7, 9, v7\nv_add3_u32 v8, v8, v7, s55")
            m=(1<<(8*nq))-1
            s.poll(name+"a", [f"s_mov_b64 exec, {hex(m)}", "buffer_load_dwordx4 v[64:67], v8, s[40:43], 0 offen sc1"], [65], 9, sleep=s.o.qsleep, lanes=m)
        A.I("v_lshlrev_b32 v8, 4, v1\nv_add_u32 v8, s55, v8")
        A.I("v_add_u32 v7, 8192, v8\ns_mov_b32 s58, 4096")
        loads=[]; tags=[]
        for qi in range(nq):
            r=64+16*qi
            loads+=[f"buffer_load_dwordx4 v[{r}:{r+3}], v8, s[40:43], 0 offen offset:{1024*qi} sc1", f"buffer_load_dwordx4 v[{r+4}:{r+7}], v8, s[40:43], s58 offen offset:{1024*qi} sc1",
                    f"buffer_load_dwordx4 v[{r+8}:{r+11}], v7, s[40:43], 0 offen offset:{1024*qi} sc1", f"buffer_load_dwordx4 v[{r+12}:{r+15}], v7, s[40:43], s58 offen offset:{1024*qi} sc1"]
            tags+=[r+1+2*i for i in range(8)]
        s.poll(name, loads, tags, 9, sleep=s.o.qsleep)
        A.I("v_lshlrev_b32 v9, 2, v1")
        for qi in range(nq):
            r=64+16*qi
            A.I(f"v_add_f32 v10, v{r}, v{r+4}\nv_add_f32 v11, v{r+2}, v{r+6}\nv_add_f32 v12, v{r+8}, v{r+12}\nv_add_f32 v13, v{r+10}, v{r+14}")
            A.I(f"v_add_f32 v10, v10, v12\nv_add_f32 v11, v11, v13\nv_cvt_pk_bf16_f32 v{14+qi}, v10, v11")
            A.I(f"ds_write_b32 v9, v{14+qi} offset:{L_Q+256*(q0+qi)}")
        A.I("s_waitcnt lgkmcnt(0)")
        A.I(f"v_mov_b32 v8, 0\nv_mov_b32 v9, 1")
        for qi in range(nq): A.I(f"ds_write_b32 v8, v9 offset:{L_G+4*(q0+qi)}")
    def h0(s):
        A=s.A; o=s.o
        wf=" nt" if o.wnt else ""
        A.label("L_h0")
        if o.hprio: A.I(f"s_setprio {o.hprio}")
        if o.dbg&1:
            A.I("s_barrier"); s.stamps_out(); A.I("s_endpgm"); return
        s.srd(32,8,896); s.srd(36,14,448*8192); s.srd(40,30,WS_SIZE)
        if o.dbg&32:
            A.I("s_barrier"); A.I("s_waitcnt lgkmcnt(0)"); s.tag_from_E(); s.qpoll("L_pq0",[0]); s.stamps_out(); A.I("s_endpgm"); return
        if not o.dbg&256: A.I("v_lshlrev_b32 v2, 4, v1\nbuffer_load_dwordx4 v[4:7], v2, s[32:35], 0 offen")
        if o.dyn:
            A.I(f"s_and_b32 s54, s2, {o.sh-1}\ns_cmp_lg_u32 s54, 0\ns_cbranch_scc1 L_h0_noinit")
            A.I(f"s_lshl_b32 s54, s2, 5\ns_add_u32 s54, s54, {WS_CT}\nv_mov_b32 v8, s54\nv_mov_b32 v9, 0\ns_mov_b64 exec, 1\nbuffer_store_dword v9, v8, s[40:43], 0 offen sc1\ns_mov_b64 exec, -1")
            A.label("L_h0_noinit")
        A.I("s_and_b32 s54, s5, 7\ns_lshr_b32 s59, s5, 3")
        A.I(f"s_lshl_b32 s55, s4, 10\ns_lshl_b32 s56, s54, 7\ns_add_u32 s55, s55, s56\ns_mul_i32 s56, s59, {112*8192}\ns_add_u32 s55, s55, s56")
        A.I("v_lshrrev_b32 v3, 3, v1\nv_lshlrev_b32 v3, 13, v3\nv_and_b32 v8, 7, v1\nv_lshlrev_b32 v8, 4, v8\nv_add3_u32 v3, v3, v8, s55")
        for k in range(14):
            A.I(f"s_mov_b32 s57, {k*65536}\nbuffer_load_dwordx4 v[{64+4*k}:{67+4*k}], v3, s[36:39], s57 offen{wf}")
        A.I("s_barrier")
        if o.dbg&128:
            A.I("s_waitcnt vmcnt(0)"); s.stamp(1); s.stamps_out(); A.I("s_endpgm"); return
        A.I("s_waitcnt vmcnt(14)")
        s.layernorm(L_X)
        s.tag_from_E()
        A.I(f"v_mov_b32 v8, 0\nv_mov_b32 v9, 1\nds_write_b32 v8, v9 offset:{L_F+4}")
        A.I(f"s_mul_i32 s56, s59, {112*4}\nv_lshrrev_b32 v9, 3, v1\nv_lshlrev_b32 v9, 2, v9\nv_add_u32 v9, s56, v9")
        for k in range(14): A.I(f"ds_read_b32 v{32+k}, v9 offset:{L_X+32*k}")
        for i in range(8): A.I(f"v_mov_b32 v{10+i}, 0")
        A.I(f"s_lshl_b32 s55, s4, 14\ns_lshl_b32 s56, s59, 12\ns_add_u32 s55, s55, s56\ns_lshl_b32 s56, s54, 9\ns_add_u32 s55, s55, s56\ns_add_u32 s55, s55, {WS_QX}")
        s.pub8_voff(2,8,55)
        A.I("s_waitcnt lgkmcnt(0)")
        for k in range(14): A.I(f"v_lshlrev_b32 v{46+k}, 16, v{32+k}")
        for k in range(14):
            A.I(f"s_waitcnt vmcnt({13-k})")
            for d in range(4):
                A.I(f"v_dot2c_f32_bf16 v{10+2*d}, v{64+4*k+d}, v{32+k}\nv_dot2c_f32_bf16 v{11+2*d}, v{64+4*k+d}, v{46+k}")
        s.stamp(1)
        s.reduce8(10)
        if not o.dbg&64: s.pub8(10,2,40)
        if o.hint&1:
            A.I(f"s_lshl_b32 s55, s4, 7\ns_add_u32 s55, s55, s5\ns_add_u32 s55, s55, {WS_HQ}\nv_mov_b32 v8, s55")
            s.hintstore(8,9,40,1)
        A.I(f"v_mov_b32 v8, 0\nv_mov_b32 v9, 1\nds_write_b32 v8, v9 offset:{L_F}")
        s.stamp(2)
        s.qpoll("L_pq0", [0], gate=False)
        s.stamp(3)
        s.stamps_out()
        A.I("s_endpgm")

    def h1(s):
        A=s.A; o=s.o
        wf=" nt" if o.wnt else ""
        A.label("L_h1")
        A.I("s_barrier")
        s.srd(40,30,WS_SIZE)
        A.I("s_waitcnt lgkmcnt(0)")
        s.tag_from_E()
        if o.dbg&2:
            A.I("s_endpgm"); return
        if o.ffnspread:
            A.I("s_mov_b32 s61, s2\ns_lshr_b32 s54, s2, 3\ns_and_b32 s55, s2, 7\ns_and_b32 s56, s54, 7")
            A.I("s_cmp_eq_u32 s55, s56\ns_cbranch_scc1 L_end")
            A.I("s_cmp_gt_u32 s55, s56\ns_cselect_b32 s56, 1, 0\ns_sub_u32 s55, s55, s56\ns_mul_i32 s54, s54, 7\ns_add_u32 s2, s54, s55")
        else:
            A.I("s_mov_b32 s61, s2\ns_cmp_ge_u32 s2, 224\ns_cbranch_scc1 L_end")
        s.ldsgate("L_xg", (L_F+4) if not o.ffnafterq else L_G+4, sleep=4)
        s.srd(36,20,448*3584); s.srd(44,22,448*3584); s.srd(48,24,1792*896)
        A.I("s_lshr_b32 s54, s2, 3\ns_and_b32 s59, s2, 7")
        A.I(f"s_lshl_b32 s55, s54, 7\ns_mul_i32 s56, s59, {56*3584}\ns_add_u32 s55, s55, s56")
        A.I("v_lshrrev_b32 v3, 3, v1\nv_mul_u32_u24 v3, 3584, v3\nv_and_b32 v8, 7, v1\nv_lshlrev_b32 v8, 4, v8\nv_add3_u32 v3, v3, v8, s55")
        for k in range(7):
            A.I(f"s_mov_b32 s57, {k*28672}")
            if o.hp1 and 2*k>=o.hp1: A.I(f"s_waitcnt vmcnt({o.hp1-1})")
            A.I(f"buffer_load_dwordx4 v[{64+4*k}:{67+4*k}], v3, s[36:39], s57 offen{wf}")
            if o.hp1 and 2*k+1>=o.hp1: A.I(f"s_waitcnt vmcnt({o.hp1-1})")
            A.I(f"buffer_load_dwordx4 v[{92+4*k}:{95+4*k}], v3, s[44:47], s57 offen{wf}")
        A.I("v_lshrrev_b32 v60, 4, v1\nv_lshlrev_b32 v60, 1, v60\ns_lshl_b32 s55, s2, 3\nv_add_u32 v60, s55, v60\nv_mul_u32_u24 v60, 896, v60\nv_and_b32 v9, 15, v1\nv_lshlrev_b32 v9, 4, v9\nv_add_u32 v60, v60, v9")
        ylate = o.ylate and o.dyn
        def wdloads(hp):
            for t in range(2):
                for cb in range(4):
                    r=120+16*t+4*cb
                    if hp: A.I(f"s_waitcnt vmcnt({hp-1})")
                    if cb==3: A.I("s_mov_b32 exec_lo, 0x00ff00ff\ns_mov_b32 exec_hi, 0x00ff00ff")
                    A.I(f"buffer_load_dwordx4 v[{r}:{r+3}], v60, s[48:51], 0 offen offset:{t*896+cb*256}{wf}")
                    if cb==3: A.I("s_mov_b64 exec, -1")
        if not ylate: wdloads(o.hp1)
        A.I(f"s_mul_i32 s56, s59, {56*4}\nv_lshrrev_b32 v9, 3, v1\nv_lshlrev_b32 v9, 2, v9\nv_add_u32 v9, s56, v9")
        for k in range(7): A.I(f"ds_read_b32 v{32+k}, v9 offset:{L_X+32*k}")
        for i in range(16): A.I(f"v_mov_b32 v{10+i}, 0")
        A.I(f"s_mul_i32 s55, s59, 14336\ns_lshl_b32 s56, s54, 9\ns_add_u32 s55, s55, s56\ns_add_u32 s55, s55, {WS_GX}")
        s.pub8_voff(2,8,55)
        A.I(f"v_add_u32 v3, {8*14336}, v2")
        A.I("s_waitcnt lgkmcnt(0)")
        if o.dbg&1024:
            A.I("s_waitcnt vmcnt(0)"); s.stamp(1); s.stamps_out(); A.I("s_endpgm"); return
        for k in range(7): A.I(f"v_lshlrev_b32 v{46+k}, 16, v{32+k}")
        A.I("s_waitcnt vmcnt(%d)"%(0 if ylate else 8))
        for k in range(7):
            for d in range(4):
                A.I(f"v_dot2c_f32_bf16 v{10+2*d}, v{64+4*k+d}, v{32+k}\nv_dot2c_f32_bf16 v{11+2*d}, v{64+4*k+d}, v{46+k}")
                A.I(f"v_dot2c_f32_bf16 v{18+2*d}, v{92+4*k+d}, v{32+k}\nv_dot2c_f32_bf16 v{19+2*d}, v{92+4*k+d}, v{46+k}")
        s.reduce8(10); s.reduce8(18)
        s.pub8(10,2,40); s.pub8(18,3,40)
        if o.hint&2:
            A.I(f"s_lshl_b32 s55, s54, 7\ns_add_u32 s55, s55, s59\ns_add_u32 s55, s55, {WS_HG}\nv_mov_b32 v8, s55")
            s.hintstore(8,9,40,1)
        s.stamp(1)
        A.I(f"v_lshrrev_b32 v8, 3, v1\nv_bfe_u32 v9, v1, 2, 1\nv_lshlrev_b32 v9, 3, v9\nv_add_u32 v8, v8, v9\nv_mul_u32_u24 v8, 14336, v8")
        A.I(f"s_lshl_b32 s55, s2, 6\ns_add_u32 s55, s55, {WS_GX}\nv_and_b32 v9, 3, v1\nv_lshlrev_b32 v9, 4, v9\nv_add3_u32 v8, v8, v9, s55")
        s.make_masks(28,1,4,5)
        s.pub_voff(2,4,WS_YP)
        s.matvec_prep(56,160,"s6")
        if o.hint&32:
            A.I(f"s_lshl_b32 s55, s2, 6\ns_add_u32 s55, s55, {WS_GX+8*14336}")
            s.sprobe("L_sg", 55, [rp*14336+4 for rp in range(8)], sleep=o.gxsleep)
        elif o.hint&2:
            s.hintprep()
            A.I(f"s_lshr_b32 s55, s2, 3\ns_lshl_b32 s55, s55, 7\ns_add_u32 s55, s55, {WS_HG}")
            s.hintwait("L_hg", 55, 2, 72, sleep=4)
        s.poll("L_pg", ["buffer_load_dwordx4 v[64:67], v8, s[40:43], 0 offen sc1"], [65,67], 9, sleep=o.gxsleep)
        s.stamp(2)
        A.I("v_mov_b32 v10, v64\nv_mov_b32 v11, v66")
        s.row_allreduce("v_add_f32",[10,11],(8,))
        s.cross_rows("v_add_f32",[10,11],[12,13])
        for e in range(2): s.bf16r(10+e,10+e)
        for e in range(2): A.I(f"v_mov_b32_dpp v{14+e}, v{10+e} row_ror:4 row_mask:0xf bank_mask:0xf")
        k1=-2*0.7978845608028654*1.4426950408889634
        A.I(f"v_mov_b32 v26, {hex(f2u(0.044715))}\nv_mov_b32 v27, {hex(f2u(k1))}")
        for e in range(2): A.I(f"v_mul_f32 v{18+e}, v{10+e}, v{10+e}")
        for e in range(2): A.I(f"v_fma_f32 v{18+e}, v{18+e}, v26, 1.0")
        for e in range(2): A.I(f"v_mul_f32 v{18+e}, v{18+e}, v{10+e}")
        for e in range(2): A.I(f"v_mul_f32 v{18+e}, v27, v{18+e}")
        for e in range(2): A.I(f"v_exp_f32 v{18+e}, v{18+e}")
        for e in range(2): A.I(f"v_add_f32 v{18+e}, 1.0, v{18+e}")
        for e in range(2): A.I(f"v_rcp_f32 v{18+e}, v{18+e}")
        for e in range(2): A.I(f"v_mul_f32 v{18+e}, v{18+e}, v{10+e}")
        for e in range(2): s.bf16r(18+e,18+e)
        for e in range(2): A.I(f"v_mul_f32 v{18+e}, v{18+e}, v{14+e}")
        for e in range(2): A.I(f"v_cvt_pk_bf16_f32 v{18+e}, v{18+e}, v{18+e}")
        for t in range(2): s.bcast_rows(22+t,18+t,lambda kg:kg)
        if ylate:
            if o.ylate==2: s.donegate("L_ydr", n=o.won)
            else: s.ldsgate("L_ydr", L_F+12, sleep=o.gsleep)
            wdloads(0)
            if not o.b2lds: A.I("s_barrier")
        A.I("s_waitcnt vmcnt(0)")
        if o.dbg&512:
            s.stamp(3); s.stamps_out(); A.I("s_endpgm"); return
        s.matvec_publish(2,[22,23],lambda t,cb:120+16*t+4*cb,28,40,32,2,40,56,160)
        A.I("s_mov_b32 s2, s61")
        s.stamp(3)
        s.stamps_out()
        A.I("s_endpgm")

    def h2(s):
        A=s.A; o=s.o
        wf=" nt" if o.wnt else ""
        A.label("L_h2")
        A.I("s_barrier")
        s.srd(36,16,4096*896); s.srd(40,30,WS_SIZE)
        A.I("s_waitcnt lgkmcnt(0)")
        s.tag_from_E()
        if not o.dbg&1: s.qpoll("L_pq2", [1,2])
        if o.dbg&4:
            A.I("s_endpgm"); return
        A.I("s_lshl_b32 s54, s2, 4")
        A.I("v_lshrrev_b32 v60, 4, v1\nv_lshlrev_b32 v60, 2, v60\nv_add_u32 v60, s54, v60\nv_mul_u32_u24 v60, 896, v60\nv_and_b32 v9, 15, v1\nv_lshlrev_b32 v9, 4, v9\nv_add_u32 v60, v60, v9")
        s.make_masks(28,1,8,9)
        A.I(f"s_lshl_b32 s54, s2, 12\ns_add_u32 s54, s54, {WS_H1}")
        if o.lin1: A.I("v_lshlrev_b32 v3, 4, v1\nv_add_u32 v3, s54, v3")
        else: s.rowsplit_voff(3,8,54)
        s.pub_voff(2,8,WS_SP)
        s.matvec_prep(56,160,"s6")
        s.hintprep()
        if o.hint&8:
            A.I(f"s_lshr_b32 s54, s2, 6\ns_lshl_b32 s54, s54, 7\ns_and_b32 s55, s2, 63\ns_add_u32 s54, s54, s55\ns_add_u32 s54, s54, {WS_HS}\nv_lshlrev_b32 v61, 9, v1\nv_add_u32 v61, s54, v61")
        if o.lin1:
            A.I("v_lshrrev_b32 v58, 4, v1\nv_mul_u32_u24 v58, 72, v58\nv_add_u32 v59, 4, v58")
        if o.wolate==3 and o.dyn:
            s.donegate("L_woe", n=o.won)
        elif o.wolate and o.dyn:
            s.ldsgate("L_woe", L_F+(8 if o.wolate==1 else 12), sleep=o.gsleep)
        for t in range(4):
            for cb in range(4):
                r=64+16*t+4*cb
                if o.hp2 and 4*t+cb>=o.hp2: A.I(f"s_waitcnt vmcnt({o.hp2-1})")
                if cb==3: A.I("s_mov_b32 exec_lo, 0x00ff00ff\ns_mov_b32 exec_hi, 0x00ff00ff")
                A.I(f"buffer_load_dwordx4 v[{r}:{r+3}], v60, s[36:39], 0 offen offset:{t*896+cb*256}{wf}")
                if cb==3: A.I("s_mov_b64 exec, -1")
        if not o.b2lds: A.I("s_barrier")
        else:
            A.I(f"s_mov_b32 s62, {o.timeout}\nv_mov_b32 v8, 0")
            A.label("L_h2w", flush=True)
            A.I(f"ds_read_b32 v9, v8 offset:{L_P+4}\ns_waitcnt lgkmcnt(0)\nv_cmp_gt_u32 vcc, 4, v9\ns_cbranch_vccz L_h2w_ok\ns_sleep 1\ns_sub_u32 s62, s62, 1\ns_cmp_lg_u32 s62, 0\ns_cbranch_scc1 L_h2w")
            A.label("L_h2w_ok", flush=True)
        s.stamp(1)
        if o.stamps and o.wostamp:
            A.I("s_waitcnt vmcnt(0)"); s.stamp(4)
        if o.hint&4:
            A.I(f"s_lshl_b32 s54, s2, 7\ns_add_u32 s54, s54, {WS_HH}")
            s.hintwait("L_hh", 54, 8, 72)
        loadso=[f"buffer_load_dwordx4 v[{128+4*q}:{131+4*q}], v3, s[40:43], 0 offen offset:{1024*q} sc1" for q in range(4)]
        s.poll("L_p1", loadso, [131,135,139,143], 9, sleep=o.h1sleep)
        s.stamp(2)
        for q in range(4): A.I(f"v_mov_b32_dpp v{144+q}, v{130+4*q} quad_perm:[0,0,2,2] row_mask:0xf bank_mask:0xf")
        A.I("v_max3_f32 v10, v144, v145, v146\nv_max_f32 v10, v10, v147")
        if o.lin1:
            for q in range(4): A.I(f"v_mov_b32_dpp v{148+q}, v{130+4*q} quad_perm:[1,1,3,3] row_mask:0xf bank_mask:0xf")
            s.row_allreduce("v_max_f32",[10],(8,)); s.cross_rows("v_max_f32",[10],[11])
        else:
            for i,st_ in enumerate((2,4,8)):
                A.I(f"v_mov_b32_dpp v{148+i}, v{130+4*i} quad_perm:[1,1,3,3] row_mask:0xf bank_mask:0xf")
                if i==0: A.I(f"v_mov_b32_dpp v151, v142 quad_perm:[1,1,3,3] row_mask:0xf bank_mask:0xf")
                A.I(f"v_max_f32_dpp v10, v10, v10 row_ror:{st_} row_mask:0xf bank_mask:0xf")
        for q in range(4): A.I(f"v_sub_f32 v{12+q}, v{144+q}, v10")
        for q in range(4): A.I(f"v_exp_f32 v{12+q}, v{12+q}")
        A.I("v_mul_f32 v16, v12, v148\nv_mul_f32 v17, v12, v128\nv_mul_f32 v18, v12, v129")
        for q in range(1,4): A.I(f"v_fmac_f32 v16, v{12+q}, v{148+q}\nv_fmac_f32 v17, v{12+q}, v{128+4*q}\nv_fmac_f32 v18, v{12+q}, v{129+4*q}")
        if o.lin1:
            s.row_allreduce("v_add_f32",[16,17,18],(8,)); s.cross_rows("v_add_f32",[16,17,18],[19,20,21])
        else:
            s.row_allreduce("v_add_f32",[16,17,18],(2,4,8))
        A.I("v_rcp_f32 v16, v16")
        A.I("v_mul_f32 v17, v17, v16\nv_mul_f32 v18, v18, v16")
        A.I("v_cvt_pk_bf16_f32 v17, v17, v17\nv_cvt_pk_bf16_f32 v18, v18, v18")
        if o.lin1:
            A.I("ds_bpermute_b32 v22, v58, v17\nds_bpermute_b32 v23, v58, v18\nds_bpermute_b32 v24, v59, v17\nds_bpermute_b32 v25, v59, v18\ns_waitcnt lgkmcnt(0)")
        else:
            A.I("v_mov_b32_dpp v22, v17 quad_perm:[0,0,2,2] row_mask:0xf bank_mask:0xf\nv_mov_b32_dpp v23, v18 quad_perm:[0,0,2,2] row_mask:0xf bank_mask:0xf")
            A.I("v_mov_b32_dpp v24, v17 quad_perm:[1,1,3,3] row_mask:0xf bank_mask:0xf\nv_mov_b32_dpp v25, v18 quad_perm:[1,1,3,3] row_mask:0xf bank_mask:0xf")
        s.matvec_publish(4,[22,23,24,25],lambda t,cb:64+16*t+4*cb,28,40,32,2,40,56,160)
        if o.hint&8: s.hintstore(61,62,40,0x0fffffff)
        s.stamp(3)
        A.I("s_barrier")
        s.stamps_out()
        A.I("s_endpgm")

    def h3(s):
        A=s.A; o=s.o
        A.label("L_h3")
        s.srd(40,30,WS_SIZE)
        A.I("s_waitcnt lgkmcnt(0)")
        s.tag_from_E()
        if not o.dbg&1: s.qpoll("L_pq3", [3])
        if o.dyn:
            S=32-o.dyn; NP=o.sh*o.dyn; LSH=o.sh.bit_length()-1; QCAP=120
            A.I("s_mov_b64 exec, 1")
            A.I(f"s_andn2_b32 s54, s2, {o.sh-1}\ns_lshl_b32 s54, s54, 5\ns_add_u32 s54, s54, {WS_CT}\nv_mov_b32 v8, s54\nv_mov_b32 v0, 0")
            A.I(f"s_andn2_b32 s48, s5, {o.sh-1}")
            A.I(f"s_mov_b32 s46, 0\ns_mov_b32 s47, {S-o.lead}")
            def waitprog(nm):
                A.I(f"s_mov_b32 s62, {o.timeout}")
                A.label(nm, flush=False)
                A.I(f"ds_read_b32 v9, v0 offset:{L_P}\ns_waitcnt lgkmcnt(0)\nv_readfirstlane_b32 s54, v9")
                A.I(f"s_cmp_ge_u32 s54, s47\ns_cbranch_scc1 {nm}_ok\ns_sub_u32 s62, s62, 1\ns_cmp_eq_u32 s62, 0\ns_cbranch_scc1 L_dsp_end")
                A.I(f"s_sleep 1\ns_branch {nm}")
                A.label(nm+"_ok", flush=False)
            cnt=[0]
            def grab(r):
                cnt[0]+=1; n=cnt[0]
                A.I(f"s_cmp_ge_u32 s46, {QCAP}\ns_cbranch_scc1 L_cap{n}")
                A.I(f"v_mov_b32 v{r}, 1\nbuffer_atomic_add v{r}, v8, s[40:43], 0 offen sc0\ns_branch L_capx{n}")
                A.label(f"L_cap{n}", flush=True)
                A.I(f"s_waitcnt vmcnt(0)\nv_mov_b32 v{r}, {NP}")
                A.label(f"L_capx{n}", flush=True)
                A.I("s_add_u32 s46, s46, 1\ns_add_u32 s47, s47, 1")
            def retire(r, n):
                A.I(f"s_waitcnt vmcnt({n})\nv_readfirstlane_b32 s54, v{r}")
                A.I(f"s_cmp_ge_u32 s54, {NP}\ns_cbranch_scc1 L_dsp_end")
                A.I(f"s_and_b32 s55, s54, {o.sh-1}\ns_add_u32 s55, s55, s48\ns_lshl_b32 s55, s55, 18\ns_lshr_b32 s54, s54, {LSH}\ns_add_u32 s54, s54, {S}\ns_lshl_b32 s54, s54, 13\ns_add_u32 s55, s55, s54")
                A.I(f"s_lshl_b32 s54, s49, 2\nv_mov_b32 v9, s54\nv_mov_b32 v13, s55\nds_write_b32 v9, v13 offset:{L_QU}\ns_add_u32 s49, s49, 1")
            A.I("s_mov_b32 s49, 0")
            if o.satom:
                A.I(f"s_andn2_b32 s54, s2, {o.sh-1}\ns_lshl_b32 s54, s54, 5\ns_add_u32 s54, s54, {WS_CT}\ns_add_u32 s52, s30, s54\ns_addc_u32 s53, s31, 0")
                A.I(f"s_mov_b32 s63, 0\ns_mov_b32 s64, {o.sh}\ns_mov_b32 s65, {1 if o.soft else 0}")
                A.label("L_dsp", flush=True)
                def post(tmp="s54"):
                    A.I(f"s_and_b32 s55, s54, {o.sh-1}\ns_add_u32 s55, s55, s48\ns_lshl_b32 s55, s55, 18\ns_lshr_b32 s54, s54, {LSH}\ns_add_u32 s54, s54, {S}\ns_lshl_b32 s54, s54, 13\ns_add_u32 s55, s55, s54")
                    A.I(f"s_lshl_b32 s54, s49, 2\nv_mov_b32 v9, s54\nv_mov_b32 v13, s55\nds_write_b32 v9, v13 offset:{L_QU}\ns_add_u32 s49, s49, 1\ns_add_u32 s47, s47, 1")
                if o.soft:
                    A.I("s_cmp_lt_u32 s49, 2\ns_cbranch_scc1 L_dsp_go")
                    A.I(f"s_mul_i32 s54, s64, {o.soft_a}\ns_sub_u32 s54, s54, {o.soft_b*o.sh//4}\ns_sub_u32 s55, {NP}, s63\ns_cmp_lt_i32 s55, s54\ns_cbranch_scc0 L_dsp_go")
                    A.I(f"s_mov_b32 s66, 0\ns_mov_b32 s65, {o.timeout}\nv_mov_b32 v13, 0\nds_write_b32 v0, v13 offset:{L_P+8}")
                    A.label("L_soft", flush=False)
                    if o.softflag:
                        A.I(f"ds_read_b32 v9, v0 offset:{L_P}\ns_waitcnt lgkmcnt(0)\nv_readfirstlane_b32 s54, v9\ns_add_u32 s55, s47, {o.lead-1}\ns_cmp_lt_u32 s54, s55\ns_cbranch_scc1 L_soft_nf")
                        A.I(f"v_mov_b32 v13, 1\nds_write_b32 v0, v13 offset:{L_F+12}")
                        A.label("L_soft_nf", flush=False)
                    A.I("s_mov_b32 s54, 0\ns_atomic_add s54, s[52:53], 0x0 glc")
                    A.I(f"ds_read_b32 v9, v0 offset:{L_P+8}\ns_waitcnt lgkmcnt(0)\nv_readfirstlane_b32 s55, v9")
                    A.I(f"s_cmp_ge_u32 s54, {NP}\ns_cbranch_scc1 L_dsp_end")
                    A.I(f"s_add_u32 s66, s66, s55\ns_cmp_ge_u32 s66, {o.soft_n}\ns_cbranch_scc1 L_soft_grab")
                    A.I("s_sub_u32 s65, s65, 1\ns_cmp_eq_u32 s65, 0\ns_cbranch_scc1 L_soft_grab\ns_sleep 1\ns_branch L_soft")
                    A.label("L_soft_grab", flush=False)
                    A.I("s_mov_b32 s54, 1\ns_atomic_add s54, s[52:53], 0x0 glc\ns_waitcnt lgkmcnt(0)")
                    A.I(f"s_cmp_ge_u32 s54, {NP}\ns_cbranch_scc1 L_dsp_end")
                    post()
                    A.I(f"s_sleep 3\nv_mov_b32 v13, 0\nds_write_b32 v0, v13 offset:{L_P+8}\ns_mov_b32 s66, 0")
                    A.I(f"s_cmp_lt_u32 s49, {QCAP}\ns_cbranch_scc1 L_soft\ns_branch L_dsp_end")
                    A.label("L_dsp_go", flush=False)
                waitprog("L_wp")
                A.I("s_mov_b32 s54, 1\ns_atomic_add s54, s[52:53], 0x0 glc\ns_waitcnt lgkmcnt(0)")
                A.I(f"s_cmp_ge_u32 s54, {NP}\ns_cbranch_scc1 L_dsp_end")
                if o.soft:
                    A.I("s_sub_u32 s55, s54, s63\ns_add_u32 s55, s55, s64\ns_lshr_b32 s55, s55, 1\ns_cmp_eq_u32 s49, 0\ns_cselect_b32 s64, s64, s55\ns_mov_b32 s63, s54")
                A.I(f"s_and_b32 s55, s54, {o.sh-1}\ns_add_u32 s55, s55, s48\ns_lshl_b32 s55, s55, 18\ns_lshr_b32 s54, s54, {LSH}\ns_add_u32 s54, s54, {S}\ns_lshl_b32 s54, s54, 13\ns_add_u32 s55, s55, s54")
                A.I(f"s_lshl_b32 s54, s49, 2\nv_mov_b32 v9, s54\nv_mov_b32 v13, s55\nds_write_b32 v9, v13 offset:{L_QU}\ns_add_u32 s49, s49, 1\ns_add_u32 s47, s47, 1")
                A.I(f"s_cmp_lt_u32 s49, {QCAP}\ns_cbranch_scc1 L_dsp")
            else:
                waitprog("L_w0"); grab(10)
                waitprog("L_w1"); grab(11)
                A.label("L_dsp", flush=True)
                for i,(g_,r_) in enumerate(((12,10),(10,11),(11,12))):
                    waitprog(f"L_wp{i}"); grab(g_); retire(r_,2)
                A.I("s_branch L_dsp")
            A.label("L_dsp_end", flush=True)
            A.I(f"s_lshl_b32 s54, s49, 2\nv_mov_b32 v9, s54\nv_mov_b32 v13, {hex(Q_END)}\nds_write_b32 v9, v13 offset:{L_QU}")
            A.I(f"v_mov_b32 v13, 1\nds_write_b32 v0, v13 offset:{L_F+8}\ns_waitcnt lgkmcnt(0) vmcnt(0)")
            if o.stamps:
                s.stamp(2)
                A.I("s_waitcnt lgkmcnt(0)\ns_mov_b32 s82, s49\ns_mov_b32 s83, 0\ns_mov_b64 exec, -1")
                s.stamps_out()
        A.I("s_endpgm")

    def build(s):
        A=s.A; o=s.o
        A.raw(HDR.rstrip())
        A.raw(f"; @launch grid=(256,1,1) block=(512,1,1) lds={LDS}")
        A.raw('.amdgcn_target "amdgcn-amd-amdhsa--gfx950"')
        A.raw(".text"); A.raw(f".globl {NAME}_kernel"); A.raw(".p2align 8"); A.raw(f".type {NAME}_kernel,@function"); A.raw(f"{NAME}_kernel:")
        A.I("s_cmp_ge_u32 s2, 256\ns_cbranch_scc1 L_end")
        s.zero_stamps()
        s.stamp(0)
        A.I("s_load_dwordx8 s[8:15], s[0:1], 0\ns_load_dwordx8 s[16:23], s[0:1], 32\ns_load_dwordx8 s[24:31], s[0:1], 64")
        A.I("v_lshrrev_b32 v2, 6, v0\nv_and_b32 v1, 63, v0\nv_readfirstlane_b32 s3, v2")
        if o.gmap==0: A.I("s_lshr_b32 s4, s2, 5\ns_and_b32 s5, s2, 31")
        else:
            A.I("s_bfe_u32 s4, s2, 0x30003\ns_and_b32 s5, s2, 7\ns_lshr_b32 s7, s2, 6\ns_lshl_b32 s7, s7, 3\ns_add_u32 s5, s5, s7\ns_lshl_b32 s2, s4, 5\ns_add_u32 s2, s2, s5")
        pass
        A.I("s_cmp_lg_u32 s3, 7\ns_cbranch_scc1 L_b0")
        A.I(f"v_lshlrev_b32 v8, 2, v1\nv_mov_b32 v9, {hex(Q_EMPTY)}\nv_mov_b32 v10, 0")
        A.I(f"s_mov_b64 exec, 0xff\nds_write_b32 v8, v10 offset:{L_F}\ns_mov_b64 exec, 7\nds_write_b32 v8, v10 offset:{L_P}\ns_mov_b64 exec, -1")
        if o.dyn: A.I(f"ds_write_b32 v8, v9 offset:{L_QU}\nds_write_b32 v8, v9 offset:{L_QU+256}")
        A.I("s_waitcnt lgkmcnt(0)\ns_barrier\ns_load_dword s6, s[30:31], 0\ns_branch L_h3")
        A.label("L_b0", flush=False)
        A.I("s_cmp_ge_u32 s3, 4\ns_cbranch_scc1 L_helpers")
        s.stream()
        A.hist=[]
        A.label("L_helpers", flush=False)
        A.I("s_waitcnt lgkmcnt(0)")
        A.I("s_load_dword s6, s[30:31], 0")
        A.I("s_cmp_eq_u32 s3, 5\ns_cbranch_scc1 L_h1\ns_cmp_eq_u32 s3, 6\ns_cbranch_scc1 L_h2")
        s.h0(); A.hist=[]
        s.h1(); A.hist=[]
        s.h2(); A.hist=[]
        s.h3(); A.hist=[]
        A.label("L_end", flush=False)
        A.I("s_endpgm")
        A.raw('.section .rodata,"a"'); A.raw(".p2align 6"); A.raw(f".amdhsa_kernel {NAME}_kernel")
        A.raw("  .amdhsa_next_free_vgpr 256\n  .amdhsa_next_free_sgpr 102\n  .amdhsa_accum_offset 256\n  .amdhsa_group_segment_fixed_size 0\n  .amdhsa_kernarg_size 96\n  .amdhsa_user_sgpr_count 2\n  .amdhsa_user_sgpr_kernarg_segment_ptr 1\n  .amdhsa_system_sgpr_workgroup_id_x 1\n  .amdhsa_float_denorm_mode_32 3\n.end_amdhsa_kernel")
        return A.text()

if __name__=="__main__":
    ap=argparse.ArgumentParser()
    ap.add_argument("-o",dest="out",default="k.s")
    ap.add_argument("--p",type=int,default=13)
    ap.add_argument("--ns",type=int,default=13)
    ap.add_argument("--d",type=int,default=8)
    ap.add_argument("--rot",type=int,default=0)
    ap.add_argument("--nt",type=int,default=1)
    ap.add_argument("--wnt",type=int,default=1)
    ap.add_argument("--thr",type=float,default=8.0)
    ap.add_argument("--timeout",type=int,default=200000)
    ap.add_argument("--stamps",type=int,default=0)
    ap.add_argument("--dbg",type=int,default=0)
    ap.add_argument("--qsleep",type=int,default=2)
    ap.add_argument("--q2",type=int,default=1)
    ap.add_argument("--dyn",type=int,default=8)
    ap.add_argument("--lin1",type=int,default=0)
    ap.add_argument("--lin2",type=int,default=1)
    ap.add_argument("--hp1",type=int,default=2)
    ap.add_argument("--hp2",type=int,default=0)
    ap.add_argument("--st2",type=int,default=0)
    ap.add_argument("--wodelay",type=int,default=0)
    ap.add_argument("--wolate",type=int,default=3)
    ap.add_argument("--lead",type=int,default=2)
    ap.add_argument("--sh",type=int,default=32)
    ap.add_argument("--satom",type=int,default=1)
    ap.add_argument("--gsleep",type=int,default=3)
    ap.add_argument("--b2lds",type=int,default=1)
    ap.add_argument("--gxsleep",type=int,default=16)
    ap.add_argument("--gmap",type=int,default=0)
    ap.add_argument("--ffnafterq",type=int,default=0)
    ap.add_argument("--emptyflag",type=int,default=0)
    ap.add_argument("--softflag",type=int,default=1)
    ap.add_argument("--won",type=int,default=1)
    ap.add_argument("--hint",type=int,default=48)
    ap.add_argument("--htimeout",type=int,default=20000)
    ap.add_argument("--ilv",type=int,default=1)
    ap.add_argument("--pssleep",type=int,default=3)
    ap.add_argument("--prio",type=int,default=0)
    ap.add_argument("--hprio",type=int,default=0)
    ap.add_argument("--soft",type=int,default=0)
    ap.add_argument("--soft_a",type=int,default=6)
    ap.add_argument("--soft_b",type=int,default=20)
    ap.add_argument("--soft_n",type=int,default=2)
    ap.add_argument("--wostamp",type=int,default=0)
    ap.add_argument("--ylate",type=int,default=1)
    ap.add_argument("--ffnspread",type=int,default=1)
    ap.add_argument("--d0",type=int,default=8)
    ap.add_argument("--dp",type=int,default=0)
    ap.add_argument("--setup_at",type=int,default=16)
    ap.add_argument("--h1two",type=int,default=0)
    ap.add_argument("--h1sleep",type=int,default=1)
    o=ap.parse_args()
    open(o.out,"w").write(G(o).build())
```

```python
import sys, argparse
from asmlib import Asm
NAME="recurrent_scan__gqa_block_cached__geglu_ffn__decode"
HDR = """; Kernarg layout for this problem (96 bytes, ptrs only, base s[0:1]):
"""
WS_ML=0x8000; WS_CT=0x10000; WS_HQ=0x12000; WS_HG=0x13000; WS_HH=0x14000; WS_HS=0x1C000; WS_QX=0x20000; WS_GX=0x40000; WS_YP=0x80000; WS_H1=0x180000; WS_SP=0x280000; WS_ST=0x380000; WS_SIZE=0x400000
FSTR=32768
L_Q=0; L_O=2048; L_M=10240; L_F=10496; L_G=10512; L_Y=10752; L_S=11008; L_QU=11264; L_P=11776; L_X=12288; LDS=16384
Q_EMPTY=0xfffffffe; Q_END=0xffffffff
C_SCALE=0x3db8aa3b
def f2u(x):
    import struct; return struct.unpack('<I',struct.pack('<f',x))[0]

class G:
    def __init__(s, o):
        s.o=o; s.A=Asm(); s.nst=0
    def stamp(s, i):
        if s.o.stamps: s.A.I(f"s_memrealtime s[{80+2*i}:{81+2*i}]")
    def stamps_out(s):
        if not s.o.stamps: return
        A=s.A
        A.I("s_waitcnt vmcnt(0) lgkmcnt(0)")
        A.I("s_mov_b64 exec, 1")
        A.I(f"s_lshl_b32 s60, s2, 3\ns_add_u32 s60, s60, s3\ns_lshl_b32 s60, s60, 6\ns_add_u32 s60, s60, {WS_ST}")
        A.I("s_mov_b32 s72, s30\ns_mov_b32 s73, s31\ns_mov_b32 s74, %d\ns_mov_b32 s75, 0x20000"%WS_SIZE)
        A.I("v_mov_b32 v2, s60")
        for q in range(4):
            for r in range(4): A.I(f"v_mov_b32 v{4+r}, s{80+4*q+r}")
            A.I(f"buffer_store_dwordx4 v[4:7], v2, s[72:75], 0 offen offset:{16*q}")
            A.I("s_waitcnt vmcnt(0)")
        A.I("s_mov_b64 exec, -1")
    def zero_stamps(s):
        if s.o.stamps:
            for i in range(16): s.A.I(f"s_mov_b32 s{80+i}, 0")
            s.A.I("s_nop 0")
    def srd(s, r, lo, size):
        s.A.I(f"s_mov_b32 s{r}, s{lo}\ns_mov_b32 s{r+1}, s{lo+1}\ns_mov_b32 s{r+2}, {size}\ns_mov_b32 s{r+3}, 0x20000")
    def row_allreduce(s, op, regs, steps=(8,4,2,1)):
        for st in steps:
            for r in regs: s.A.I(f"{op}_dpp v{r}, v{r}, v{r} row_ror:{st} row_mask:0xf bank_mask:0xf")
    def cross_rows(s, op, regs, tmps):
        A=s.A
        for sw in ("v_permlane16_swap_b32","v_permlane32_swap_b32"):
            for r,t in zip(regs,tmps): A.I(f"v_mov_b32 v{t}, v{r}")
            for r,t in zip(regs,tmps): A.I(f"{sw} v{r}, v{t}")
            for r,t in zip(regs,tmps): A.I(f"{op} v{r}, v{r}, v{t}")
    def wave_allreduce(s, op, regs, tmps):
        s.row_allreduce(op, regs); s.cross_rows(op, regs, tmps)
    def bf16r(s, dst, src):
        s.A.I(f"v_cvt_pk_bf16_f32 v{dst}, v{src}, 0\nv_lshlrev_b32 v{dst}, 16, v{dst}")
    def make_masks(s, m0, lane, t0, t1):
        A=s.A
        A.I(f"v_and_b32 v{t0}, 1, v{lane}\nv_lshlrev_b32 v{t0}, 4, v{t0}\nv_mov_b32 v{t1}, 0xffff\nv_lshlrev_b32 v{t0}, v{t0}, v{t1}")
        A.I(f"v_bfe_u32 v{t1}, v{lane}, 1, 2")
        for r in range(4):
            A.I(f"v_cmp_eq_u32 vcc, {r}, v{t1}\nv_cndmask_b32 v{m0+r}, 0, v{t0}, vcc")
    def tag_from_E(s):
        s.A.I("s_mul_i32 s6, s6, 0x9E3779B1\ns_add_u32 s6, s6, 0x7F4A7C15")
    def poll(s, name, loads, tags, acc, pre=None, sleep=0, lanes=None):
        A=s.A
        A.I(f"s_mov_b32 s62, {s.o.timeout}")
        A.label(name)
        if pre: A.I(pre)
        for l in loads: A.I(l)
        if lanes is None: A.I("s_mov_b64 exec, -1")
        A.I("s_waitcnt vmcnt(0)")
        A.I(f"v_xor_b32 v{acc}, s6, v{tags[0]}")
        for t in tags[1:]: A.I(f"v_bitop3_b32 v{acc}, v{t}, s6, v{acc} bitop3:0xbe")
        A.I(f"v_cmp_ne_u32 vcc, 0, v{acc}")
        A.I(f"s_cbranch_vccz {name}_ok")
        if sleep: A.I(f"s_sleep {sleep}")
        A.I("s_sub_u32 s62, s62, 1\ns_cmp_lg_u32 s62, 0")
        A.I(f"s_cbranch_scc1 {name}")
        A.label(name+"_ok")
        if lanes is not None: A.I("s_mov_b64 exec, -1")
    def layernorm(s, ldsbase):
        A=s.A
        for d in range(4):
            A.I(f"v_lshlrev_b32 v{10+2*d}, 16, v{4+d}\nv_and_b32 v{11+2*d}, 0xffff0000, v{4+d}")
        A.I("v_add_f32 v18, v10, v11\nv_add_f32 v19, v12, v13\nv_add_f32 v20, v14, v15\nv_add_f32 v21, v16, v17")
        A.I("v_add_f32 v18, v18, v19\nv_add_f32 v20, v20, v21\nv_add_f32 v18, v18, v20")
        s.wave_allreduce("v_add_f32",[18],[19])
        A.I(f"v_mul_f32 v18, {hex(f2u(1/448))}, v18")
        for i in range(8): A.I(f"v_sub_f32 v{20+i}, v{10+i}, v18")
        A.I("v_mul_f32 v19, v20, v20")
        for i in range(1,8): A.I(f"v_fmac_f32 v19, v{20+i}, v{20+i}")
        A.I("v_cmp_gt_u32 vcc, 56, v1\nv_cndmask_b32 v19, 0, v19, vcc")
        s.wave_allreduce("v_add_f32",[19],[20])
        A.I(f"v_mul_f32 v19, {hex(f2u(1/448))}, v19")
        s.bf16r(18,18); s.bf16r(19,19)
        A.I("v_add_f32 v19, 0x3727c5ac, v19"); s.bf16r(19,19)
        A.I("v_sqrt_f32 v19, v19"); s.bf16r(19,19)
        A.I("v_rcp_f32 v8, v19")
        for i in range(8): A.I(f"v_sub_f32 v{20+i}, v{10+i}, v18")
        for i in range(8): A.I(f"v_cvt_pk_bf16_f32 v{20+i}, v{20+i}, 0")
        for i in range(8): A.I(f"v_lshlrev_b32 v{20+i}, 16, v{20+i}")
        for i in range(8): A.I(f"v_mul_f32 v{10+i}, v{20+i}, v8")
        for i in range(8): A.I(f"v_fma_f32 v{20+i}, -v{10+i}, v19, v{20+i}")
        for i in range(8): A.I(f"v_fmac_f32 v{10+i}, v{20+i}, v8")
        for i in range(8): A.I(f"v_cvt_pk_bf16_f32 v{20+i}, v{10+i}, 0")
        A.I(f"v_lshlrev_b32 v9, 5, v1")
        A.I(f"ds_write_b128 v9, v[20:23] offset:{ldsbase}\nds_write_b128 v9, v[24:27] offset:{ldsbase+16}")
        A.I("s_waitcnt lgkmcnt(0)")
    def matvec_prep(s, px, st, tagv):
        A=s.A
        A.I(f"v_lshrrev_b32 v{px}, 2, v1\nv_bfe_u32 v{px+1}, v1, 1, 1\nv_lshlrev_b32 v{px+1}, 4, v{px+1}\nv_add_u32 v{px}, v{px}, v{px+1}")
        A.I(f"v_and_b32 v{px+1}, 1, v1\nv_lshlrev_b32 v{px+1}, 5, v{px+1}\nv_add_u32 v{px}, v{px}, v{px+1}\nv_lshlrev_b32 v{px}, 2, v{px}")
        for cb in range(4): A.I(f"v_mov_b32 v{st+4*cb+1}, {tagv}\nv_mov_b32 v{st+4*cb+3}, {tagv}")
        A.I("s_mov_b32 s70, 0\ns_mov_b32 s71, -1")
        for cb in range(4): A.I(f"s_mov_b32 s{64+cb}, {cb*8*FSTR}")
    def matvec_publish(s, nt, avals, wregs, masks, dacc, areg, voff, srd, px, st):
        A=s.A
        for t in range(nt):
            a=areg+4*(t%2)
            for r in range(4): A.I(f"v_and_b32 v{a+r}, v{avals[t]}, v{masks+r}")
            for cb in range(4):
                c = "0" if t==0 else f"v[{dacc+4*cb}:{dacc+4*cb+3}]"
                w=wregs(t,cb)
                A.I(f"v_mfma_f32_16x16x32_bf16 v[{dacc+4*cb}:{dacc+4*cb+3}], v[{a}:{a+3}], v[{w}:{w+3}], {c}")
        for cb in range(4):
            d=dacc+4*cb
            A.I(f"v_cndmask_b32 v{d}, v{d}, v{d+2}, s[70:71]")
            A.I(f"v_cndmask_b32 v{d+1}, v{d+1}, v{d+3}, s[70:71]")
            A.I(f"ds_bpermute_b32 v{st+4*cb}, v{px}, v{d}\nds_bpermute_b32 v{st+4*cb+2}, v{px}, v{d+1}")
        for cb in range(4):
            A.I("s_waitcnt lgkmcnt(%d)"%(0 if s.o.stamps else 6-2*cb))
            if cb==3: A.I("s_mov_b32 exec_hi, 0")
            A.I(f"buffer_store_dwordx4 v[{st+4*cb}:{st+4*cb+3}], v{voff}, s[{srd}:{srd+3}], s{64+cb} offen sc1")
        A.I("s_mov_b64 exec, -1")
    def pub_voff(s, dst, t0, base):
        A=s.A
        A.I(f"v_lshrrev_b32 v{dst}, 3, v1\nv_lshlrev_b32 v{dst}, 15, v{dst}\nv_and_b32 v{t0}, 7, v1\nv_lshlrev_b32 v{t0}, 4, v{t0}")
        A.I(f"s_lshl_b32 s55, s2, 7\ns_add_u32 s55, s55, {base}\nv_add3_u32 v{dst}, v{dst}, v{t0}, s55")
    def rowsplit_voff(s, dst, t0, sbase):
        A=s.A
        A.I(f"v_bfe_u32 v{dst}, v1, 1, 3\nv_lshlrev_b32 v{dst}, 7, v{dst}\nv_lshrrev_b32 v{t0}, 4, v1\nv_lshlrev_b32 v{t0}, 5, v{t0}\nv_add_u32 v{dst}, v{dst}, v{t0}")
        A.I(f"v_and_b32 v{t0}, 1, v1\nv_lshlrev_b32 v{t0}, 4, v{t0}\nv_add3_u32 v{dst}, v{dst}, v{t0}, s{sbase}")
    def reduce8(s, a):
        A=s.A
        for e in range(4): A.I(f"v_permlane32_swap_b32 v{a+e}, v{a+4+e}")
        for e in range(4): A.I(f"v_add_f32 v{a+e}, v{a+e}, v{a+4+e}")
        for e in range(2): A.I(f"v_permlane16_swap_b32 v{a+e}, v{a+2+e}")
        for e in range(2): A.I(f"v_add_f32 v{a+e}, v{a+e}, v{a+2+e}")
        s.row_allreduce("v_add_f32",[a,a+1],(8,))
    def pub8(s, a, voff, srd):
        A=s.A
        A.I(f"v_mov_b32 v{a+2}, v{a+1}\nv_mov_b32 v{a+1}, s6\nv_mov_b32 v{a+3}, s6")
        A.I("s_mov_b32 exec_lo, 0x00ff00ff\ns_mov_b32 exec_hi, 0x00ff00ff")
        A.I(f"buffer_store_dwordx4 v[{a}:{a+3}], v{voff}, s[{srd}:{srd+3}], 0 offen sc1")
        A.I("s_mov_b64 exec, -1")
    def pub8_voff(s, dst, t0, sbase):
        A=s.A
        A.I(f"v_and_b32 v{dst}, 7, v1\nv_lshlrev_b32 v{dst}, 6, v{dst}\nv_lshrrev_b32 v{t0}, 4, v1\nv_lshlrev_b32 v{t0}, 4, v{t0}\nv_add3_u32 v{dst}, v{dst}, v{t0}, s{sbase}")
    def bcast_rows(s, dst, src, lanefn):
        for kg in range(4):
            s.A.I(f"v_mov_b32_dpp v{dst}, v{src} row_newbcast:{lanefn(kg)} row_mask:{hex(1<<kg)} bank_mask:0xf")

    def stream(s):
        A=s.A; o=s.o
        VK,VV,NEGM,LS,CS,T=2,3,4,5,6,7
        MK=8; Q0=12; Q1=16; D=20; AP=24; O0=28; O1=32; P=36; RING=40
        NS=o.ns; DD=o.d; NSETS=32-o.dyn; LAG=DD//4; RS=LAG+1
        A.c("---- stream waves")
        if o.prio: A.I(f"s_setprio {o.prio}")
        A.I("v_bfe_u32 v8, v1, 2, 2\nv_lshlrev_b32 v8, 9, v8")
        A.I("v_lshrrev_b32 v9, 4, v1\nv_lshlrev_b32 v10, 6, v9")
        A.I("v_and_b32 v11, 3, v1\nv_lshlrev_b32 v11, 4, v11")
        A.I(f"v_add3_u32 v{VK}, v8, v10, v11")
        A.I("v_lshlrev_b32 v9, 9, v9\nv_and_b32 v10, 15, v1\nv_lshlrev_b32 v10, 4, v10")
        A.I(f"v_add_u32 v{VV}, v9, v10")
        A.I("s_lshl_b32 s55, s3, 11")
        A.I(f"v_add_u32 v{VK}, s55, v{VK}\nv_add_u32 v{VV}, s55, v{VV}\nv_mov_b32 v0, 0")
        A.I(f"s_lshl_b32 s44, s5, 18")
        A.I("s_lshl_b32 s55, s4, 23")
        A.I("s_waitcnt lgkmcnt(0)")
        if o.st2==2: s.stamp(5)
        A.I("s_add_u32 s32, s10, s55\ns_addc_u32 s33, s11, 0\ns_mov_b32 s34, 0x800000\ns_mov_b32 s35, 0x20000")
        A.I("s_add_u32 s36, s12, s55\ns_addc_u32 s37, s13, 0\ns_mov_b32 s38, 0x800000\ns_mov_b32 s39, 0x20000")
        st={'issued':0,'landed':0,'slot':{}, 'free':list(range(NS))}
        nt=" nt" if o.nt else ""
        def issue():
            x=st['issued']; se,part=divmod(x,4)
            if part==0:
                st['slot'][se]=st['free'].pop(0)
                if se>0: A.I("s_add_u32 s44, s44, 8192")
                if o.dyn and se>=NSETS-o.lead: A.I(f"v_mov_b32 v38, {se}\ns_mov_b64 exec, 1\nds_max_u32 v0, v38 offset:{L_P}\ns_mov_b64 exec, -1")
                if o.st2==1 and se==16: s.stamp(5)
                if o.st2==1 and se==20: s.stamp(6)
                if o.st2==1 and se==NSETS-1: s.stamp(7)
                if o.st2==2 and se==4: s.stamp(7)
            r=RING+16*st['slot'][se]+4*part
            if part<2: A.I(f"buffer_load_dwordx4 v[{r}:{r+3}], v{VK}, s[32:35], s44 offen offset:{256*part}{nt}")
            else: A.I(f"buffer_load_dwordx4 v[{r}:{r+3}], v{VV}, s[36:39], s44 offen offset:{256*(part-2)}{nt}")
            st['issued']+=1
        def can_issue():
            x=st['issued']
            if x>=4*NSETS: return False
            return (x%4!=0) or bool(st['free'])
        def wait_landed(n):
            if st['landed']>=n: return
            A.I(f"s_waitcnt vmcnt({st['issued']-n})"); st['landed']=n
        def pace(dd=None):
            dd = dd or DD
            x=st['issued']
            if x-st['landed']>=dd: wait_landed(x-dd+1)
            issue()
        for x in range(min(o.d0,4*o.p)): issue()
        A.I("s_barrier")
        DP = o.dp or DD
        if o.d0<DP:
            wait_landed(1)
            if o.st2==2: s.stamp(6)
            while st['issued']<DP: issue()
        while st['issued']<min(4*o.p, o.setup_at): pace(DP)
        A.I("s_load_dword s6, s[30:31], 0")
        s.make_masks(MK,1,37,38)
        A.I(f"v_mov_b32 v{CS}, {hex(C_SCALE)}\nv_mov_b32 v{NEGM}, 0\nv_mov_b32 v{LS}, 0")
        for r in range(8): A.I(f"v_mov_b32 v{O0+r}, 0")
        A.I("v_lshrrev_b32 v248, 3, v1\nv_lshlrev_b32 v248, 4, v248\ns_lshl_b32 s54, s3, 2\nv_add_u32 v248, s54, v248")
        A.I("v_lshrrev_b32 v249, 5, v1\nv_lshlrev_b32 v249, 10, v249\nv_and_b32 v37, 15, v1\nv_lshlrev_b32 v37, 5, v37\nv_add_u32 v249, v249, v37")
        A.I("v_bfe_u32 v37, v1, 4, 1\nv_lshlrev_b32 v37, 4, v37\ns_lshl_b32 s54, s3, 11\nv_add3_u32 v249, v249, v37, s54")
        A.I("s_lshr_b32 s54, s3, 1\ns_and_b32 s55, s3, 1\ns_lshl_b32 s55, s55, 6\nv_add_u32 v37, s55, v1")
        A.I("s_lshl_b32 s55, s54, 10\nv_lshlrev_b32 v250, 3, v37\nv_add_u32 v250, s55, v250")
        A.I("s_lshl_b32 s55, s54, 4\nv_mov_b32 v251, s55")
        s.srd(40,30,WS_SIZE)
        A.I(f"s_lshl_b32 s55, s4, 5\ns_lshl_b32 s56, s54, 4\ns_add_u32 s55, s55, s56\ns_lshl_b32 s55, s55, 12\ns_lshl_b32 s56, s5, 7\ns_add_u32 s55, s55, s56\ns_add_u32 s55, s55, {WS_H1}")
        if o.hint&4:
            A.I(f"s_lshl_b32 s56, s4, 5\ns_lshl_b32 s57, s3, 3\ns_add_u32 s56, s56, s57\ns_lshl_b32 s56, s56, 7\ns_add_u32 s56, s56, s5\ns_add_u32 s56, s56, {WS_HH}\nv_lshlrev_b32 v253, 7, v1\nv_add_u32 v253, s56, v253")
        A.I("v_lshrrev_b32 v252, 3, v37\nv_lshlrev_b32 v252, 12, v252\nv_and_b32 v37, 7, v37\nv_lshlrev_b32 v37, 4, v37\nv_add3_u32 v252, v252, v37, s55")
        while st['issued']<4*o.p: pace(DP)
        s.stamp(1)
        A.I("s_waitcnt lgkmcnt(0)")
        s.tag_from_E()
        if not (o.dbg&1):
            A.I(f"s_mov_b32 s62, {o.timeout}\nv_mov_b32 v39, 0")
            A.label("L_qw")
            A.I(f"ds_read_b128 v[20:23], v39 offset:{L_G}\ns_waitcnt lgkmcnt(0)")
            A.I("v_and_b32 v37, v20, v21\nv_and_b32 v38, v22, v23\nv_and_b32 v37, v37, v38")
            A.I("v_cmp_eq_u32 vcc, 0, v37\ns_cbranch_vccz L_qw_ok\ns_sleep 1\ns_sub_u32 s62, s62, 1\ns_cmp_lg_u32 s62, 0\ns_cbranch_scc1 L_qw")
            A.label("L_qw_ok")
        s.stamp(2)
        A.I("v_bfe_u32 v37, v1, 3, 1\nv_lshlrev_b32 v37, 9, v37\nv_lshrrev_b32 v38, 4, v1\nv_lshlrev_b32 v38, 6, v38\nv_add_u32 v37, v37, v38\nv_and_b32 v38, 3, v1\nv_lshlrev_b32 v38, 4, v38\nv_add_u32 v37, v37, v38")
        A.I(f"ds_read_b128 v[{Q0}:{Q0+3}], v37 offset:{L_Q}\nds_read_b128 v[{Q1}:{Q1+3}], v37 offset:{L_Q+256}")
        A.I("s_waitcnt lgkmcnt(0)")
        stubs=[]
        def procA(sl):
            A.I(f"v_mfma_f32_16x16x32_bf16 v[{D}:{D+3}], v[{sl}:{sl+3}], v[{Q0}:{Q0+3}], 0")
            A.I(f"v_mfma_f32_16x16x32_bf16 v[{D}:{D+3}], v[{sl+4}:{sl+7}], v[{Q1}:{Q1+3}], v[{D}:{D+3}]")
            A.I(f"v_mov_b32 v{T}, v{NEGM}")
            A.I(f"v_mov_b32 v37, 0")
        def procB(name, first=False):
            A.I(f"v_fmac_f32_dpp v{T}, v{D}, v{CS} quad_perm:[0,0,0,0] row_mask:0xf bank_mask:0xf")
            A.I(f"v_fmac_f32_dpp v37, v{D+1}, v{CS} quad_perm:[1,1,1,1] row_mask:0xf bank_mask:0xf")
            A.I(f"v_fmac_f32_dpp v{T}, v{D+2}, v{CS} quad_perm:[2,2,2,2] row_mask:0xf bank_mask:0xf")
            A.I(f"v_fmac_f32_dpp v37, v{D+3}, v{CS} quad_perm:[3,3,3,3] row_mask:0xf bank_mask:0xf")
            A.I(f"v_add_f32 v{T}, v{T}, v37")
            if first:
                A.I(f"v_mov_b32 v37, v{T}")
                s.cross_rows("v_max_f32",[37],[38])
                A.I(f"v_sub_f32 v{NEGM}, 0, v37\nv_sub_f32 v{T}, v{T}, v37")
            else:
                A.I(f"v_cmp_lt_f32 vcc, {hex(f2u(o.thr))}, v{T}")
                A.I(f"s_cbranch_vccnz L_stub{name}")
                A.raw(f"L_res{name}:")
                stubs.append(name)
            A.I(f"v_exp_f32 v{T}, v{T}")
            A.I(f"v_cvt_pk_bf16_f32 v{P}, v{T}, v{T}")
            A.I(f"v_add_f32 v{LS}, v{LS}, v{T}")
            for r in range(4): A.I(f"v_and_b32 v{AP+r}, v{P}, v{MK+r}")
        def procC(sl):
            A.I(f"v_mfma_f32_16x16x32_bf16 v[{O0}:{O0+3}], v[{AP}:{AP+3}], v[{sl+8}:{sl+11}], v[{O0}:{O0+3}]")
            A.I(f"v_mfma_f32_16x16x32_bf16 v[{O1}:{O1+3}], v[{AP}:{AP+3}], v[{sl+12}:{sl+15}], v[{O1}:{O1+3}]")
        def proc(sl, name, first=False, kwait=None, vwait=None):
            if kwait: kwait()
            procA(sl); procB(name, first)
            if vwait: vwait()
            procC(sl)
        def process(se):
            proc(RING+16*st['slot'][se], str(se), se==0, lambda: wait_landed(4*se+2), lambda: wait_landed(4*se+4))
            st['free'].append(st['slot'][se])
        sp=0
        last = NSETS-LAG if o.dyn else NSETS
        while sp<last or (o.dyn and st['issued']<4*NSETS):
            backlog = st['landed']//4 - sp
            x=st['issued']
            if o.ilv and LAG==2 and x%4==0 and x//4==sp+LAG and can_issue() and sp>0 and sp<last:
                sl=RING+16*st['slot'][sp]
                pace(); pace()
                assert st['landed']>=4*sp+2
                procA(sl)
                pace()
                procB(str(sp))
                pace()
                assert st['landed']>=4*sp+4
                procC(sl)
                st['free'].append(st['slot'][sp]); sp+=1
            elif backlog>0 and sp<last and not (o.ilv and LAG==2 and backlog==1 and x//4-sp<=LAG and x%4!=0):
                process(sp); sp+=1
                if can_issue() and (backlog>1 or not o.ilv): pace()
            elif can_issue(): pace()
            else:
                process(sp); sp+=1
        if o.dyn:
            assert st['issued']==4*NSETS and sp==NSETS-LAG, (st['issued'], sp)
            DS={}
            for x in range(NSETS-LAG,NSETS): DS[x%RS]=st['slot'][x]
            DS[NSETS%RS]=st['free'][0]
            assert len(set(DS.values()))==RS
            A.I("s_mov_b32 s46, 0")
            A.I(f"s_mov_b32 s47, {NSETS}")
            A.I(f"v_mov_b32 v39, s46\nds_read_b32 v38, v39 offset:{L_QU}")
            order=[(NSETS+i)%RS for i in range(RS)]
            for i,ph in enumerate(order):
                A.label(f"L_dyn{ph}", flush=True)
                A.I(f"s_mov_b32 s62, {o.timeout}")
                A.label(f"L_dq{ph}", flush=False)
                A.I("s_waitcnt lgkmcnt(0)\nv_readfirstlane_b32 s44, v38")
                A.I(f"s_cmp_lt_u32 s44, {hex(Q_EMPTY)}\ns_cbranch_scc1 L_dgo{ph}")
                A.I(f"s_cmp_eq_u32 s44, {hex(Q_END)}\ns_cbranch_scc1 L_drain{ph}")
                A.I(f"s_sub_u32 s62, s62, 1\ns_cmp_eq_u32 s62, 0\ns_cbranch_scc1 L_drain{ph}")
                if o.soft: A.I(f"v_mov_b32 v38, 1\nds_write_b32 v0, v38 offset:{L_P+8}")
                if o.wolate==2 and o.emptyflag: A.I(f"v_mov_b32 v38, 1\nds_write_b32 v0, v38 offset:{L_F+12}")
                A.I(f"s_sleep 1\nds_read_b32 v38, v39 offset:{L_QU}\ns_branch L_dq{ph}")
                A.label(f"L_dgo{ph}", flush=False)
                A.I(f"v_mov_b32 v38, s47\ns_mov_b64 exec, 1\nds_max_u32 v0, v38 offset:{L_P}\ns_mov_b64 exec, -1")
                sl=RING+16*DS[ph]
                psl=RING+16*DS[(ph-LAG)%RS]
                for part in range(4):
                    A.I(f"s_waitcnt vmcnt({DD-1})")
                    r=sl+4*part
                    if part<2: A.I(f"buffer_load_dwordx4 v[{r}:{r+3}], v{VK}, s[32:35], s44 offen offset:{256*part}{nt}")
                    else: A.I(f"buffer_load_dwordx4 v[{r}:{r+3}], v{VV}, s[36:39], s44 offen offset:{256*(part-2)}{nt}")
                    if o.ilv and LAG==2:
                        if part==1: procA(psl)
                        if part==2: procB(f"d{ph}")
                        if part==3: procC(psl)
                A.I("s_add_u32 s46, s46, 4\ns_add_u32 s47, s47, 1")
                if not (o.ilv and LAG==2): proc(psl, f"d{ph}")
                A.I(f"v_mov_b32 v39, s46\nds_read_b32 v38, v39 offset:{L_QU}")
                if i==RS-1: A.I(f"s_branch L_dyn{order[0]}")
            for ph in order:
                A.label(f"L_drain{ph}", flush=True)
                A.I(f"v_mov_b32 v38, 1\nds_write_b32 v0, v38 offset:{L_F+12}")
                cnt=[4*LAG]
                for t in range(LAG,0,-1):
                    def kw(n=4*t-2): A.I(f"s_waitcnt vmcnt({n})")
                    def vw(n=4*t-4): A.I(f"s_waitcnt vmcnt({n})")
                    proc(RING+16*DS[(ph-t)%RS], f"e{ph}_{t}", False, kw, vw)
                A.I("s_branch L_sdone")
            A.label("L_sdone", flush=True)
        s.stamp(3)
        s.cross_rows("v_add_f32",[LS],[37])
        A.I(f"v_sub_f32 v38, 0, v{NEGM}")
        A.I(f"ds_write_b128 v249, v[{O0}:{O0+3}] offset:{L_O}\nds_write_b128 v249, v[{O1}:{O1+3}] offset:{L_O+512}")
        A.I("s_mov_b32 exec_lo, 0x101\ns_mov_b32 exec_hi, 0")
        A.I(f"ds_write_b32 v248, v38 offset:{L_M}\nds_write_b32 v248, v{LS} offset:{L_M+32}")
        A.I("s_mov_b64 exec, -1")
        A.I("s_waitcnt lgkmcnt(0)")
        if o.b2lds:
            A.I(f"v_mov_b32 v38, 1\ns_mov_b64 exec, 1\nds_add_u32 v0, v38 offset:{L_P+4}\ns_mov_b64 exec, -1\ns_mov_b32 s62, {o.timeout}")
            A.label("L_b2", flush=False)
            A.I(f"ds_read_b32 v38, v0 offset:{L_P+4}\ns_waitcnt lgkmcnt(0)\nv_cmp_gt_u32 vcc, 4, v38\ns_cbranch_vccz L_b2_ok\ns_sub_u32 s62, s62, 1\ns_cmp_lg_u32 s62, 0\ns_cbranch_scc1 L_b2")
            A.label("L_b2_ok", flush=False)
        else:
            A.I("s_barrier")
        s.stamp(4)
        A.I(f"ds_read_b128 v[8:11], v251 offset:{L_M}\nds_read_b128 v[12:15], v251 offset:{L_M+32}")
        for w in range(4): A.I(f"ds_read_b64 v[{16+2*w}:{17+2*w}], v250 offset:{L_O+2048*w}")
        A.I("v_mov_b32 v31, s6\ns_mov_b32 s56, 0xaaaaaaaa\ns_mov_b32 s57, 0xaaaaaaaa")
        A.I("s_waitcnt lgkmcnt(%d)"%(0 if o.stamps else 4))
        A.I("v_max3_f32 v24, v8, v9, v10\nv_max_f32 v24, v24, v11")
        for w in range(4): A.I(f"v_sub_f32 v{8+w}, v{8+w}, v24")
        for w in range(4): A.I(f"v_exp_f32 v{8+w}, v{8+w}")
        A.I("s_waitcnt lgkmcnt(0)")
        A.I("v_mul_f32 v26, v8, v12\nv_mul_f32 v28, v8, v16\nv_mul_f32 v29, v8, v17")
        for w in range(1,4):
            A.I(f"v_fmac_f32 v26, v{8+w}, v{12+w}\nv_fmac_f32 v28, v{8+w}, v{16+2*w}\nv_fmac_f32 v29, v{8+w}, v{17+2*w}")
        A.I("v_cndmask_b32 v30, v24, v26, s[56:57]")
        A.I("buffer_store_dwordx4 v[28:31], v252, s[40:43], 0 offen sc1")
        if o.hint&4: s.hintstore(253,27,40,0xff)
        if not o.st2: s.stamp(5)
        if not (o.dbg&4):
            A.I("s_cmp_ge_u32 s2, 28\ns_cbranch_scc1 L_st_end")
            s.final()
        A.label("L_st_end")
        s.stamps_out()
        A.I("s_endpgm")
        for se in stubs:
            A.label(f"L_stub{se}", flush=False)
            A.I(f"s_call_b64 s[52:53], L_rare\ns_branch L_res{se}")
        A.hist=[]
        A.label("L_rare", flush=False)
        A.I("s_nop 7")
        A.I(f"v_mov_b32 v37, v{T}")
        s.cross_rows("v_max_f32",[37],[38])
        A.I(f"v_max_f32 v37, 0, v37")
        A.I(f"v_sub_f32 v{NEGM}, v{NEGM}, v37\nv_sub_f32 v{T}, v{T}, v37")
        A.I("v_sub_f32 v38, 0, v37\nv_exp_f32 v38, v38")
        A.I(f"v_mul_f32 v{LS}, v{LS}, v38")
        A.I("v_readlane_b32 s54, v38, 0\nv_readlane_b32 s55, v38, 8")
        A.I("v_mov_b32 v39, s54\nv_mov_b32 v37, s55\ns_mov_b32 s56, 0\ns_mov_b32 s57, -1")
        A.I("v_cndmask_b32 v39, v39, v37, s[56:57]")
        for r in range(8): A.I(f"v_mul_f32 v{O0+r}, v{O0+r}, v39")
        A.flush()
        A.I("s_setpc_b64 s[52:53]")

    def final(s):
        A=s.A; o=s.o
        s.srd(32,8,896); s.srd(36,26,896)
        A.I("s_lshl_b32 s54, s2, 5\nv_and_b32 v2, 7, v1\nv_lshlrev_b32 v7, 3, v2\nv_lshlrev_b32 v2, 2, v2\nv_add_u32 v2, s54, v2\nbuffer_load_dword v4, v2, s[32:35], 0 offen")
        A.I(f"s_lshl_b32 s54, s2, 15\ns_mul_i32 s55, s3, {56*128}\ns_add_u32 s55, s55, s54\ns_add_u32 s55, s55, {WS_YP}")
        def voff():
            if o.lin2: A.I("v_lshlrev_b32 v3, 4, v1\nv_add_u32 v3, s55, v3")
            else: s.rowsplit_voff(3,8,55)
            A.I("v_add_u32 v6, 4096, v3")
        voff()
        if o.lin2: A.I("s_lshl_b32 s54, s3, 6\nv_add_u32 v5, s54, v7")
        else:
            A.I("v_lshrrev_b32 v5, 4, v1\nv_lshlrev_b32 v5, 4, v5\nv_and_b32 v8, 1, v1\nv_lshlrev_b32 v8, 3, v8\ns_lshl_b32 s54, s3, 6\nv_add3_u32 v5, v5, v8, s54")
        def ld(q):
            r=64+4*q
            return f"buffer_load_dwordx4 v[{r}:{r+3}], v{3 if q<4 else 6}, s[40:43], 0 offen offset:{1024*(q%4)} sc1"
        def sums(n, ldsoff):
            A.I("v_add_f32 v10, v64, v68\nv_add_f32 v11, v66, v70\nv_add_f32 v12, v72, v76\nv_add_f32 v13, v74, v78")
            A.I("v_add_f32 v14, v80, v84\nv_add_f32 v15, v82, v86")
            if n==8: A.I("v_add_f32 v16, v88, v92\nv_add_f32 v17, v90, v94")
            else: A.I("v_mov_b32 v16, v88\nv_mov_b32 v17, v90")
            A.I("v_add_f32 v10, v10, v12\nv_add_f32 v11, v11, v13\nv_add_f32 v14, v14, v16\nv_add_f32 v15, v15, v17\nv_add_f32 v10, v10, v14\nv_add_f32 v11, v11, v15")
            if o.lin2:
                s.row_allreduce("v_add_f32",[10,11],(8,)); s.cross_rows("v_add_f32",[10,11],[12,13])
                A.I(f"s_mov_b64 exec, 0xff\nds_write_b64 v5, v[10:11] offset:{ldsoff}\ns_mov_b64 exec, -1\ns_waitcnt lgkmcnt(0)")
            else:
                s.row_allreduce("v_add_f32",[10,11],(2,4,8))
                A.I(f"s_mov_b32 exec_lo, 0x00030003\ns_mov_b32 exec_hi, 0x00030003\nds_write_b64 v5, v[10:11] offset:{ldsoff}\ns_mov_b64 exec, -1\ns_waitcnt lgkmcnt(0)")
        def gather(ldsoff):
            for w in range(4): A.I(f"ds_read_b64 v[{12+2*w}:{13+2*w}], v7 offset:{ldsoff+64*w}")
            A.I("s_waitcnt lgkmcnt(0)")
            A.I("v_add_f32 v10, v12, v14\nv_add_f32 v11, v13, v15\nv_add_f32 v16, v16, v18\nv_add_f32 v17, v17, v19\nv_add_f32 v10, v10, v16\nv_add_f32 v11, v11, v17")
        ylate = o.ylate and o.dyn
        if ylate: A.I("s_barrier")
        s.poll("L_py", [ld(q) for q in range(7)], [65+2*i for i in range(14)], 9, sleep=(1 if ylate else 4))
        sums(7, L_Y)
        A.I(f"s_lshl_b32 s54, s2, 15\ns_lshl_b32 s55, s3, 13\ns_add_u32 s55, s55, s54\ns_add_u32 s55, s55, {WS_SP}")
        voff()
        A.I("v_lshlrev_b32 v24, 16, v4\nv_and_b32 v25, 0xffff0000, v4")
        if not o.st2: s.stamp(6)
        A.I("s_barrier")
        gather(L_Y)
        for r in range(2): s.bf16r(20+r,10+r)
        for r in range(2): A.I(f"v_mul_f32 v{22+r}, {hex(f2u(-1.4426950408889634))}, v{20+r}")
        for r in range(2): A.I(f"v_exp_f32 v{22+r}, v{22+r}")
        for r in range(2): A.I(f"v_add_f32 v{22+r}, 1.0, v{22+r}")
        for r in range(2): A.I(f"v_rcp_f32 v{22+r}, v{22+r}")
        for r in range(2): A.I(f"v_mul_f32 v{20+r}, v{20+r}, v{22+r}")
        for r in range(2): s.bf16r(20+r,20+r)
        if o.hint&256:
            A.I("s_cmp_lg_u32 s3, 0\ns_cbranch_scc1 L_fs_w")
            A.I(f"s_lshl_b32 s54, s2, 15\ns_add_u32 s54, s54, {WS_SP}")
            s.sprobe("L_sf", 54, [(32*g_+o.fsamp)*128+4 for g_ in range(8)], d=8, sleep=o.s2sleep)
            A.I(f"v_mov_b32 v8, 0\nv_mov_b32 v9, 1\nds_write_b32 v8, v9 offset:{L_P+12}\ns_branch L_fs_x")
            A.label("L_fs_w", flush=True)
            s.ldsgate("L_fs_g", L_P+12, sleep=1)
            A.label("L_fs_x", flush=True)
        if o.hint&64:
            A.I(f"s_lshl_b32 s54, s2, 15\ns_lshl_b32 s55, s3, 13\ns_add_u32 s54, s54, s55\ns_add_u32 s54, s54, {WS_SP}")
            n2=o.n2
            samp=[(i*64)//n2 + (64//n2)//2 for i in range(n2)]
            s.sprobe("L_ss", 54, [p_*128+4 for p_ in samp], d=8, sleep=o.s2sleep)
        if o.hint&8:
            s.hintprep()
            A.I(f"s_lshl_b32 s54, s2, 2\ns_add_u32 s54, s54, s3\ns_lshl_b32 s54, s54, 7\ns_add_u32 s54, s54, {WS_HS}")
            s.hintwait("L_hs", 54, 16, 8)
        s.poll("L_ps", [ld(q) for q in range(8)], [65+2*i for i in range(16)], 9, sleep=o.pssleep)
        sums(8, L_S)
        A.I("s_barrier")
        A.I("s_cmp_lg_u32 s3, 0\ns_cbranch_scc1 L_fin_done")
        gather(L_S)
        for r in range(2): s.bf16r(10+r,10+r)
        for r in range(2): A.I(f"v_mul_f32 v{10+r}, v{10+r}, v{20+r}")
        for r in range(2): s.bf16r(10+r,10+r)
        for r in range(2): A.I(f"v_add_f32 v{10+r}, v{10+r}, v{24+r}")
        A.I("v_cvt_pk_bf16_f32 v14, v10, v11")
        A.I("s_mov_b64 exec, 0xff")
        A.I("buffer_store_dword v14, v2, s[36:39], 0 offen")
        A.I("s_cmp_lg_u32 s2, 0\ns_cbranch_scc1 L_fin_x")
        A.I("s_mov_b64 exec, 1")
        A.I("v_mov_b32 v16, 0\nv_mov_b32 v17, s6\nbuffer_store_dword v17, v16, s[40:43], 0 offen")
        A.label("L_fin_x")
        A.I("s_mov_b64 exec, -1")
        A.label("L_fin_done")
        if not o.st2: s.stamp(7)

    def ldsgate(s, name, off, sleep=2):
        A=s.A
        A.I(f"s_mov_b32 s62, {s.o.timeout}\nv_mov_b32 v8, 0")
        A.label(name)
        A.I(f"ds_read_b32 v9, v8 offset:{off}\ns_waitcnt lgkmcnt(0)\nv_cmp_eq_u32 vcc, 0, v9")
        A.I(f"s_cbranch_vccz {name}_ok\ns_sleep {sleep}\ns_sub_u32 s62, s62, 1\ns_cmp_lg_u32 s62, 0\ns_cbranch_scc1 {name}")
        A.label(name+"_ok")
    def hintprep(s):
        s.A.I("s_and_b32 s68, s6, 0xff\ns_mul_i32 s68, s68, 0x01010101\ns_mov_b32 s69, s68")
    def hintwait(s, name, soff, ndw, d, sleep=0):
        A=s.A
        A.I(f"s_add_u32 s52, s30, s{soff}\ns_addc_u32 s53, s31, 0\ns_mov_b32 s62, {s.o.htimeout}")
        A.label(name, flush=True)
        A.I(f"s_load_dwordx{ndw} s[{d}:{d+ndw-1}], s[52:53], 0x0 glc\ns_waitcnt lgkmcnt(0)")
        for i in range(ndw//2):
            A.I(f"s_cmp_lg_u64 s[{d+2*i}:{d+2*i+1}], s[68:69]\ns_cbranch_scc1 {name}_r")
        A.I(f"s_branch {name}_ok")
        A.label(name+"_r", flush=False)
        if sleep: A.I(f"s_sleep {sleep}")
        A.I(f"s_sub_u32 s62, s62, 1\ns_cmp_lg_u32 s62, 0\ns_cbranch_scc1 {name}")
        A.label(name+"_ok", flush=True)
    def sprobe(s, name, soff, offs, d=72, sleep=1):
        A=s.A
        A.I(f"s_add_u32 s52, s30, s{soff}\ns_addc_u32 s53, s31, 0\ns_mov_b32 s62, {s.o.htimeout}")
        A.label(name, flush=True)
        for i,o_ in enumerate(offs): A.I(f"s_load_dword s{d+i}, s[52:53], {hex(o_)} glc")
        A.I("s_waitcnt lgkmcnt(0)")
        for i in range(len(offs)): A.I(f"s_cmp_lg_u32 s{d+i}, s6\ns_cbranch_scc1 {name}_r")
        A.I(f"s_branch {name}_ok")
        A.label(name+"_r", flush=False)
        if sleep: A.I(f"s_sleep {sleep}")
        A.I(f"s_sub_u32 s62, s62, 1\ns_cmp_lg_u32 s62, 0\ns_cbranch_scc1 {name}")
        A.label(name+"_ok", flush=True)
    def hintstore(s, vaddr, vtmp, srd, execlo):
        A=s.A
        A.I(f"v_mov_b32 v{vtmp}, s6\ns_mov_b32 exec_lo, {hex(execlo)}\ns_mov_b32 exec_hi, 0")
        A.I(f"buffer_store_byte v{vtmp}, v{vaddr}, s[{srd}:{srd+3}], 0 offen sc1\ns_mov_b64 exec, -1")
    def donegate(s, name, n=4, sleep=1):
        A=s.A
        A.I(f"s_mov_b32 s62, {s.o.timeout}\nv_mov_b32 v8, 0")
        A.label(name, flush=True)
        A.I(f"ds_read_b32 v9, v8 offset:{L_P+4}\ns_waitcnt lgkmcnt(0)\nv_cmp_gt_u32 vcc, {n}, v9\ns_cbranch_vccz {name}_ok\ns_sleep {sleep}\ns_sub_u32 s62, s62, 1\ns_cmp_lg_u32 s62, 0\ns_cbranch_scc1 {name}")
        A.label(name+"_ok", flush=True)
    def qpoll(s, name, quarters, gate=True):
        A=s.A
        if s.o.dbg&16: return
        if gate: s.ldsgate(name+"_g", L_F)
        nq=len(quarters); q0=quarters[0]
        A.I(f"s_lshl_b32 s55, s4, 14\ns_add_u32 s55, s55, {WS_QX+q0*1024}")
        if s.o.hint&16:
            for qi in range(nq):
                s.sprobe(f"{name}s{qi}", 55, [rp*4096+qi*1024+cb*512+4 for rp in range(4) for cb in range(2)], sleep=s.o.qsleep)
        elif s.o.hint&1:
            s.hintprep()
            A.I(f"s_lshl_b32 s54, s4, 7\ns_add_u32 s54, s54, {WS_HQ}")
            s.hintwait(name+"h", 54, 8, 72, sleep=1)
        elif s.o.q2:
            A.I("v_and_b32 v8, 3, v1\nv_lshlrev_b32 v8, 12, v8\nv_lshrrev_b32 v7, 2, v1\nv_lshlrev_b32 v7, 9, v7\nv_add3_u32 v8, v8, v7, s55")
            m=(1<<(8*nq))-1
            s.poll(name+"a", [f"s_mov_b64 exec, {hex(m)}", "buffer_load_dwordx4 v[64:67], v8, s[40:43], 0 offen sc1"], [65], 9, sleep=s.o.qsleep, lanes=m)
        A.I("v_lshlrev_b32 v8, 4, v1\nv_add_u32 v8, s55, v8")
        A.I("v_add_u32 v7, 8192, v8\ns_mov_b32 s58, 4096")
        loads=[]; tags=[]
        for qi in range(nq):
            r=64+16*qi
            loads+=[f"buffer_load_dwordx4 v[{r}:{r+3}], v8, s[40:43], 0 offen offset:{1024*qi} sc1", f"buffer_load_dwordx4 v[{r+4}:{r+7}], v8, s[40:43], s58 offen offset:{1024*qi} sc1",
                    f"buffer_load_dwordx4 v[{r+8}:{r+11}], v7, s[40:43], 0 offen offset:{1024*qi} sc1", f"buffer_load_dwordx4 v[{r+12}:{r+15}], v7, s[40:43], s58 offen offset:{1024*qi} sc1"]
            tags+=[r+1+2*i for i in range(8)]
        s.poll(name, loads, tags, 9, sleep=s.o.qsleep)
        A.I("v_lshlrev_b32 v9, 2, v1")
        for qi in range(nq):
            r=64+16*qi
            A.I(f"v_add_f32 v10, v{r}, v{r+4}\nv_add_f32 v11, v{r+2}, v{r+6}\nv_add_f32 v12, v{r+8}, v{r+12}\nv_add_f32 v13, v{r+10}, v{r+14}")
            A.I(f"v_add_f32 v10, v10, v12\nv_add_f32 v11, v11, v13\nv_cvt_pk_bf16_f32 v{14+qi}, v10, v11")
            A.I(f"ds_write_b32 v9, v{14+qi} offset:{L_Q+256*(q0+qi)}")
        A.I("s_waitcnt lgkmcnt(0)")
        A.I(f"v_mov_b32 v8, 0\nv_mov_b32 v9, 1")
        for qi in range(nq): A.I(f"ds_write_b32 v8, v9 offset:{L_G+4*(q0+qi)}")
    def h0(s):
        A=s.A; o=s.o
        wf=" nt" if o.wnt else ""
        A.label("L_h0")
        if o.hprio: A.I(f"s_setprio {o.hprio}")
        if o.dbg&1:
            A.I("s_barrier"); s.stamps_out(); A.I("s_endpgm"); return
        s.srd(32,8,896); s.srd(36,14,448*8192); s.srd(40,30,WS_SIZE)
        if o.dbg&32:
            A.I("s_barrier"); A.I("s_waitcnt lgkmcnt(0)"); s.tag_from_E(); s.qpoll("L_pq0",[0]); s.stamps_out(); A.I("s_endpgm"); return
        if not o.dbg&256: A.I("v_lshlrev_b32 v2, 4, v1\nbuffer_load_dwordx4 v[4:7], v2, s[32:35], 0 offen")
        if o.dyn:
            A.I(f"s_and_b32 s54, s2, {o.sh-1}\ns_cmp_lg_u32 s54, 0\ns_cbranch_scc1 L_h0_noinit")
            A.I(f"s_lshl_b32 s54, s2, 5\ns_add_u32 s54, s54, {WS_CT}\nv_mov_b32 v8, s54\nv_mov_b32 v9, 0\ns_mov_b64 exec, 1\nbuffer_store_dword v9, v8, s[40:43], 0 offen sc1\ns_mov_b64 exec, -1")
            A.label("L_h0_noinit")
        A.I("s_and_b32 s54, s5, 7\ns_lshr_b32 s59, s5, 3")
        A.I(f"s_lshl_b32 s55, s4, 10\ns_lshl_b32 s56, s54, 7\ns_add_u32 s55, s55, s56\ns_mul_i32 s56, s59, {112*8192}\ns_add_u32 s55, s55, s56")
        A.I("v_lshrrev_b32 v3, 3, v1\nv_lshlrev_b32 v3, 13, v3\nv_and_b32 v8, 7, v1\nv_lshlrev_b32 v8, 4, v8\nv_add3_u32 v3, v3, v8, s55")
        for k in range(14):
            A.I(f"s_mov_b32 s57, {k*65536}\nbuffer_load_dwordx4 v[{64+4*k}:{67+4*k}], v3, s[36:39], s57 offen{wf}")
        A.I("s_barrier")
        if o.dbg&128:
            A.I("s_waitcnt vmcnt(0)"); s.stamp(1); s.stamps_out(); A.I("s_endpgm"); return
        A.I("s_waitcnt vmcnt(14)")
        s.layernorm(L_X)
        s.tag_from_E()
        A.I(f"v_mov_b32 v8, 0\nv_mov_b32 v9, 1\nds_write_b32 v8, v9 offset:{L_F+4}")
        A.I(f"s_mul_i32 s56, s59, {112*4}\nv_lshrrev_b32 v9, 3, v1\nv_lshlrev_b32 v9, 2, v9\nv_add_u32 v9, s56, v9")
        for k in range(14): A.I(f"ds_read_b32 v{32+k}, v9 offset:{L_X+32*k}")
        for i in range(8): A.I(f"v_mov_b32 v{10+i}, 0")
        A.I(f"s_lshl_b32 s55, s4, 14\ns_lshl_b32 s56, s59, 12\ns_add_u32 s55, s55, s56\ns_lshl_b32 s56, s54, 9\ns_add_u32 s55, s55, s56\ns_add_u32 s55, s55, {WS_QX}")
        s.pub8_voff(2,8,55)
        A.I("s_waitcnt lgkmcnt(0)")
        for k in range(14): A.I(f"v_lshlrev_b32 v{46+k}, 16, v{32+k}")
        for k in range(14):
            A.I(f"s_waitcnt vmcnt({13-k})")
            for d in range(4):
                A.I(f"v_dot2c_f32_bf16 v{10+2*d}, v{64+4*k+d}, v{32+k}\nv_dot2c_f32_bf16 v{11+2*d}, v{64+4*k+d}, v{46+k}")
        s.stamp(1)
        s.reduce8(10)
        if not o.dbg&64: s.pub8(10,2,40)
        if o.hint&1:
            A.I(f"s_lshl_b32 s55, s4, 7\ns_add_u32 s55, s55, s5\ns_add_u32 s55, s55, {WS_HQ}\nv_mov_b32 v8, s55")
            s.hintstore(8,9,40,1)
        A.I(f"v_mov_b32 v8, 0\nv_mov_b32 v9, 1\nds_write_b32 v8, v9 offset:{L_F}")
        s.stamp(2)
        s.qpoll("L_pq0", [0], gate=False)
        s.stamp(3)
        s.stamps_out()
        A.I("s_endpgm")

    def h1(s):
        A=s.A; o=s.o
        wf=" nt" if o.wnt else ""
        A.label("L_h1")
        A.I("s_barrier")
        s.srd(40,30,WS_SIZE)
        A.I("s_waitcnt lgkmcnt(0)")
        s.tag_from_E()
        if o.dbg&2:
            A.I("s_endpgm"); return
        if o.ffnspread:
            A.I("s_mov_b32 s61, s2\ns_lshr_b32 s54, s2, 3\ns_and_b32 s55, s2, 7\ns_and_b32 s56, s54, 7")
            A.I("s_cmp_eq_u32 s55, s56\ns_cbranch_scc1 L_end")
            A.I("s_cmp_gt_u32 s55, s56\ns_cselect_b32 s56, 1, 0\ns_sub_u32 s55, s55, s56\ns_mul_i32 s54, s54, 7\ns_add_u32 s2, s54, s55")
        else:
            A.I("s_mov_b32 s61, s2\ns_cmp_ge_u32 s2, 224\ns_cbranch_scc1 L_end")
        s.ldsgate("L_xg", (L_F+4) if not o.ffnafterq else L_G+4, sleep=4)
        s.srd(36,20,448*3584); s.srd(44,22,448*3584); s.srd(48,24,1792*896)
        A.I("s_lshr_b32 s54, s2, 3\ns_and_b32 s59, s2, 7")
        A.I(f"s_lshl_b32 s55, s54, 7\ns_mul_i32 s56, s59, {56*3584}\ns_add_u32 s55, s55, s56")
        A.I("v_lshrrev_b32 v3, 3, v1\nv_mul_u32_u24 v3, 3584, v3\nv_and_b32 v8, 7, v1\nv_lshlrev_b32 v8, 4, v8\nv_add3_u32 v3, v3, v8, s55")
        for k in range(7):
            A.I(f"s_mov_b32 s57, {k*28672}")
            if o.hp1 and 2*k>=o.hp1: A.I(f"s_waitcnt vmcnt({o.hp1-1})")
            A.I(f"buffer_load_dwordx4 v[{64+4*k}:{67+4*k}], v3, s[36:39], s57 offen{wf}")
            if o.hp1 and 2*k+1>=o.hp1: A.I(f"s_waitcnt vmcnt({o.hp1-1})")
            A.I(f"buffer_load_dwordx4 v[{92+4*k}:{95+4*k}], v3, s[44:47], s57 offen{wf}")
        A.I("v_lshrrev_b32 v60, 4, v1\nv_lshlrev_b32 v60, 1, v60\ns_lshl_b32 s55, s2, 3\nv_add_u32 v60, s55, v60\nv_mul_u32_u24 v60, 896, v60\nv_and_b32 v9, 15, v1\nv_lshlrev_b32 v9, 4, v9\nv_add_u32 v60, v60, v9")
        ylate = o.ylate and o.dyn
        def wdloads(hp):
            for t in range(2):
                for cb in range(4):
                    r=120+16*t+4*cb
                    if hp: A.I(f"s_waitcnt vmcnt({hp-1})")
                    if cb==3: A.I("s_mov_b32 exec_lo, 0x00ff00ff\ns_mov_b32 exec_hi, 0x00ff00ff")
                    A.I(f"buffer_load_dwordx4 v[{r}:{r+3}], v60, s[48:51], 0 offen offset:{t*896+cb*256}{wf}")
                    if cb==3: A.I("s_mov_b64 exec, -1")
        if not ylate: wdloads(o.hp1)
        A.I(f"s_mul_i32 s56, s59, {56*4}\nv_lshrrev_b32 v9, 3, v1\nv_lshlrev_b32 v9, 2, v9\nv_add_u32 v9, s56, v9")
        for k in range(7): A.I(f"ds_read_b32 v{32+k}, v9 offset:{L_X+32*k}")
        for i in range(16): A.I(f"v_mov_b32 v{10+i}, 0")
        A.I(f"s_mul_i32 s55, s59, 14336\ns_lshl_b32 s56, s54, 9\ns_add_u32 s55, s55, s56\ns_add_u32 s55, s55, {WS_GX}")
        s.pub8_voff(2,8,55)
        A.I(f"v_add_u32 v3, {8*14336}, v2")
        A.I("s_waitcnt lgkmcnt(0)")
        if o.dbg&1024:
            A.I("s_waitcnt vmcnt(0)"); s.stamp(1); s.stamps_out(); A.I("s_endpgm"); return
        for k in range(7): A.I(f"v_lshlrev_b32 v{46+k}, 16, v{32+k}")
        A.I("s_waitcnt vmcnt(%d)"%(0 if ylate else 8))
        for k in range(7):
            for d in range(4):
                A.I(f"v_dot2c_f32_bf16 v{10+2*d}, v{64+4*k+d}, v{32+k}\nv_dot2c_f32_bf16 v{11+2*d}, v{64+4*k+d}, v{46+k}")
                A.I(f"v_dot2c_f32_bf16 v{18+2*d}, v{92+4*k+d}, v{32+k}\nv_dot2c_f32_bf16 v{19+2*d}, v{92+4*k+d}, v{46+k}")
        s.reduce8(10); s.reduce8(18)
        s.pub8(10,2,40); s.pub8(18,3,40)
        if o.hint&2:
            A.I(f"s_lshl_b32 s55, s54, 7\ns_add_u32 s55, s55, s59\ns_add_u32 s55, s55, {WS_HG}\nv_mov_b32 v8, s55")
            s.hintstore(8,9,40,1)
        s.stamp(1)
        A.I(f"v_lshrrev_b32 v8, 3, v1\nv_bfe_u32 v9, v1, 2, 1\nv_lshlrev_b32 v9, 3, v9\nv_add_u32 v8, v8, v9\nv_mul_u32_u24 v8, 14336, v8")
        A.I(f"s_lshl_b32 s55, s2, 6\ns_add_u32 s55, s55, {WS_GX}\nv_and_b32 v9, 3, v1\nv_lshlrev_b32 v9, 4, v9\nv_add3_u32 v8, v8, v9, s55")
        s.make_masks(28,1,4,5)
        s.pub_voff(2,4,WS_YP)
        s.matvec_prep(56,160,"s6")
        if o.hint&32:
            A.I(f"s_lshl_b32 s55, s2, 6\ns_add_u32 s55, s55, {WS_GX+8*14336}")
            s.sprobe("L_sg", 55, [rp*14336+4 for rp in range(8)], sleep=o.gxsleep)
        elif o.hint&2:
            s.hintprep()
            A.I(f"s_lshr_b32 s55, s2, 3\ns_lshl_b32 s55, s55, 7\ns_add_u32 s55, s55, {WS_HG}")
            s.hintwait("L_hg", 55, 2, 72, sleep=4)
        s.poll("L_pg", ["buffer_load_dwordx4 v[64:67], v8, s[40:43], 0 offen sc1"], [65,67], 9, sleep=o.gxsleep)
        s.stamp(2)
        A.I("v_mov_b32 v10, v64\nv_mov_b32 v11, v66")
        s.row_allreduce("v_add_f32",[10,11],(8,))
        s.cross_rows("v_add_f32",[10,11],[12,13])
        for e in range(2): s.bf16r(10+e,10+e)
        for e in range(2): A.I(f"v_mov_b32_dpp v{14+e}, v{10+e} row_ror:4 row_mask:0xf bank_mask:0xf")
        k1=-2*0.7978845608028654*1.4426950408889634
        A.I(f"v_mov_b32 v26, {hex(f2u(0.044715))}\nv_mov_b32 v27, {hex(f2u(k1))}")
        for e in range(2): A.I(f"v_mul_f32 v{18+e}, v{10+e}, v{10+e}")
        for e in range(2): A.I(f"v_fma_f32 v{18+e}, v{18+e}, v26, 1.0")
        for e in range(2): A.I(f"v_mul_f32 v{18+e}, v{18+e}, v{10+e}")
        for e in range(2): A.I(f"v_mul_f32 v{18+e}, v27, v{18+e}")
        for e in range(2): A.I(f"v_exp_f32 v{18+e}, v{18+e}")
        for e in range(2): A.I(f"v_add_f32 v{18+e}, 1.0, v{18+e}")
        for e in range(2): A.I(f"v_rcp_f32 v{18+e}, v{18+e}")
        for e in range(2): A.I(f"v_mul_f32 v{18+e}, v{18+e}, v{10+e}")
        for e in range(2): s.bf16r(18+e,18+e)
        for e in range(2): A.I(f"v_mul_f32 v{18+e}, v{18+e}, v{14+e}")
        for e in range(2): A.I(f"v_cvt_pk_bf16_f32 v{18+e}, v{18+e}, v{18+e}")
        for t in range(2): s.bcast_rows(22+t,18+t,lambda kg:kg)
        if ylate:
            if o.ylate==2: s.donegate("L_ydr", n=o.won)
            else: s.ldsgate("L_ydr", L_F+12, sleep=o.gsleep)
            wdloads(0)
            if not o.b2lds: A.I("s_barrier")
        A.I("s_waitcnt vmcnt(0)")
        if o.dbg&512:
            s.stamp(3); s.stamps_out(); A.I("s_endpgm"); return
        s.matvec_publish(2,[22,23],lambda t,cb:120+16*t+4*cb,28,40,32,2,40,56,160)
        A.I("s_mov_b32 s2, s61")
        s.stamp(3)
        s.stamps_out()
        A.I("s_endpgm")

    def h2(s):
        A=s.A; o=s.o
        wf=" nt" if o.wnt else ""
        A.label("L_h2")
        A.I("s_barrier")
        s.srd(36,16,4096*896); s.srd(40,30,WS_SIZE)
        A.I("s_waitcnt lgkmcnt(0)")
        s.tag_from_E()
        if not o.dbg&1: s.qpoll("L_pq2", [1,2])
        if o.dbg&4:
            A.I("s_endpgm"); return
        A.I("s_lshl_b32 s54, s2, 4")
        A.I("v_lshrrev_b32 v60, 4, v1\nv_lshlrev_b32 v60, 2, v60\nv_add_u32 v60, s54, v60\nv_mul_u32_u24 v60, 896, v60\nv_and_b32 v9, 15, v1\nv_lshlrev_b32 v9, 4, v9\nv_add_u32 v60, v60, v9")
        s.make_masks(28,1,8,9)
        A.I(f"s_lshl_b32 s54, s2, 12\ns_add_u32 s54, s54, {WS_H1}")
        if o.lin1: A.I("v_lshlrev_b32 v3, 4, v1\nv_add_u32 v3, s54, v3")
        else: s.rowsplit_voff(3,8,54)
        s.pub_voff(2,8,WS_SP)
        s.matvec_prep(56,160,"s6")
        s.hintprep()
        if o.hint&8:
            A.I(f"s_lshr_b32 s54, s2, 6\ns_lshl_b32 s54, s54, 7\ns_and_b32 s55, s2, 63\ns_add_u32 s54, s54, s55\ns_add_u32 s54, s54, {WS_HS}\nv_lshlrev_b32 v61, 9, v1\nv_add_u32 v61, s54, v61")
        if o.lin1:
            A.I("v_lshrrev_b32 v58, 4, v1\nv_mul_u32_u24 v58, 72, v58\nv_add_u32 v59, 4, v58")
        if o.wolate==3 and o.dyn:
            if o.pregate: s.ldsgate("L_wop", L_F+12, sleep=o.pregate)
            s.donegate("L_woe", n=o.won)
        elif o.wolate and o.dyn:
            s.ldsgate("L_woe", L_F+(8 if o.wolate==1 else 12), sleep=o.gsleep)
        for t in range(4):
            for cb in range(4):
                r=64+16*t+4*cb
                if o.hp2 and 4*t+cb>=o.hp2: A.I(f"s_waitcnt vmcnt({o.hp2-1})")
                if cb==3: A.I("s_mov_b32 exec_lo, 0x00ff00ff\ns_mov_b32 exec_hi, 0x00ff00ff")
                A.I(f"buffer_load_dwordx4 v[{r}:{r+3}], v60, s[36:39], 0 offen offset:{t*896+cb*256}{wf}")
                if cb==3: A.I("s_mov_b64 exec, -1")
        if not o.b2lds: A.I("s_barrier")
        else:
            A.I(f"s_mov_b32 s62, {o.timeout}\nv_mov_b32 v8, 0")
            A.label("L_h2w", flush=True)
            A.I(f"ds_read_b32 v9, v8 offset:{L_P+4}\ns_waitcnt lgkmcnt(0)\nv_cmp_gt_u32 vcc, 4, v9\ns_cbranch_vccz L_h2w_ok\ns_sleep 1\ns_sub_u32 s62, s62, 1\ns_cmp_lg_u32 s62, 0\ns_cbranch_scc1 L_h2w")
            A.label("L_h2w_ok", flush=True)
        s.stamp(1)
        if o.stamps and o.wostamp:
            A.I("s_waitcnt vmcnt(0)"); s.stamp(4)
        if o.hint&128:
            A.I(f"s_lshl_b32 s54, s2, 12\ns_add_u32 s54, s54, {WS_H1}")
            n1=o.n1
            samp=[(i*32)//n1 + (32//n1)//2 for i in range(n1)]
            s.sprobe("L_sh", 54, [p_*128+12 for p_ in samp], d=8, sleep=o.s1sleep)
        if o.hint&4:
            A.I(f"s_lshl_b32 s54, s2, 7\ns_add_u32 s54, s54, {WS_HH}")
            s.hintwait("L_hh", 54, 8, 72)
        loadso=[f"buffer_load_dwordx4 v[{128+4*q}:{131+4*q}], v3, s[40:43], 0 offen offset:{1024*q} sc1" for q in range(4)]
        s.poll("L_p1", loadso, [131,135,139,143], 9, sleep=o.h1sleep)
        s.stamp(2)
        for q in range(4): A.I(f"v_mov_b32_dpp v{144+q}, v{130+4*q} quad_perm:[0,0,2,2] row_mask:0xf bank_mask:0xf")
        A.I("v_max3_f32 v10, v144, v145, v146\nv_max_f32 v10, v10, v147")
        if o.lin1:
            for q in range(4): A.I(f"v_mov_b32_dpp v{148+q}, v{130+4*q} quad_perm:[1,1,3,3] row_mask:0xf bank_mask:0xf")
            s.row_allreduce("v_max_f32",[10],(8,)); s.cross_rows("v_max_f32",[10],[11])
        else:
            for i,st_ in enumerate((2,4,8)):
                A.I(f"v_mov_b32_dpp v{148+i}, v{130+4*i} quad_perm:[1,1,3,3] row_mask:0xf bank_mask:0xf")
                if i==0: A.I(f"v_mov_b32_dpp v151, v142 quad_perm:[1,1,3,3] row_mask:0xf bank_mask:0xf")
                A.I(f"v_max_f32_dpp v10, v10, v10 row_ror:{st_} row_mask:0xf bank_mask:0xf")
        for q in range(4): A.I(f"v_sub_f32 v{12+q}, v{144+q}, v10")
        for q in range(4): A.I(f"v_exp_f32 v{12+q}, v{12+q}")
        A.I("v_mul_f32 v16, v12, v148\nv_mul_f32 v17, v12, v128\nv_mul_f32 v18, v12, v129")
        for q in range(1,4): A.I(f"v_fmac_f32 v16, v{12+q}, v{148+q}\nv_fmac_f32 v17, v{12+q}, v{128+4*q}\nv_fmac_f32 v18, v{12+q}, v{129+4*q}")
        if o.lin1:
            s.row_allreduce("v_add_f32",[16,17,18],(8,)); s.cross_rows("v_add_f32",[16,17,18],[19,20,21])
        else:
            s.row_allreduce("v_add_f32",[16,17,18],(2,4,8))
        A.I("v_rcp_f32 v16, v16")
        A.I("v_mul_f32 v17, v17, v16\nv_mul_f32 v18, v18, v16")
        A.I("v_cvt_pk_bf16_f32 v17, v17, v17\nv_cvt_pk_bf16_f32 v18, v18, v18")
        if o.lin1:
            A.I("ds_bpermute_b32 v22, v58, v17\nds_bpermute_b32 v23, v58, v18\nds_bpermute_b32 v24, v59, v17\nds_bpermute_b32 v25, v59, v18\ns_waitcnt lgkmcnt(0)")
        else:
            A.I("v_mov_b32_dpp v22, v17 quad_perm:[0,0,2,2] row_mask:0xf bank_mask:0xf\nv_mov_b32_dpp v23, v18 quad_perm:[0,0,2,2] row_mask:0xf bank_mask:0xf")
            A.I("v_mov_b32_dpp v24, v17 quad_perm:[1,1,3,3] row_mask:0xf bank_mask:0xf\nv_mov_b32_dpp v25, v18 quad_perm:[1,1,3,3] row_mask:0xf bank_mask:0xf")
        s.matvec_publish(4,[22,23,24,25],lambda t,cb:64+16*t+4*cb,28,40,32,2,40,56,160)
        if o.hint&8: s.hintstore(61,62,40,0x0fffffff)
        s.stamp(3)
        A.I("s_barrier")
        s.stamps_out()
        A.I("s_endpgm")

    def h3(s):
        A=s.A; o=s.o
        A.label("L_h3")
        s.srd(40,30,WS_SIZE)
        A.I("s_waitcnt lgkmcnt(0)")
        s.tag_from_E()
        if not o.dbg&1: s.qpoll("L_pq3", [3])
        if o.dyn:
            S=32-o.dyn; NP=o.sh*o.dyn; LSH=o.sh.bit_length()-1; QCAP=120
            A.I("s_mov_b64 exec, 1")
            A.I(f"s_andn2_b32 s54, s2, {o.sh-1}\ns_lshl_b32 s54, s54, 5\ns_add_u32 s54, s54, {WS_CT}\nv_mov_b32 v8, s54\nv_mov_b32 v0, 0")
            A.I(f"s_andn2_b32 s48, s5, {o.sh-1}")
            A.I(f"s_mov_b32 s46, 0\ns_mov_b32 s47, {S-o.lead}")
            def waitprog(nm):
                A.I(f"s_mov_b32 s62, {o.timeout}")
                A.label(nm, flush=False)
                A.I(f"ds_read_b32 v9, v0 offset:{L_P}\ns_waitcnt lgkmcnt(0)\nv_readfirstlane_b32 s54, v9")
                A.I(f"s_cmp_ge_u32 s54, s47\ns_cbranch_scc1 {nm}_ok\ns_sub_u32 s62, s62, 1\ns_cmp_eq_u32 s62, 0\ns_cbranch_scc1 L_dsp_end")
                A.I(f"s_sleep {o.wpsleep}\ns_branch {nm}")
                A.label(nm+"_ok", flush=False)
            cnt=[0]
            def grab(r):
                cnt[0]+=1; n=cnt[0]
                A.I(f"s_cmp_ge_u32 s46, {QCAP}\ns_cbranch_scc1 L_cap{n}")
                A.I(f"v_mov_b32 v{r}, 1\nbuffer_atomic_add v{r}, v8, s[40:43], 0 offen sc0\ns_branch L_capx{n}")
                A.label(f"L_cap{n}", flush=True)
                A.I(f"s_waitcnt vmcnt(0)\nv_mov_b32 v{r}, {NP}")
                A.label(f"L_capx{n}", flush=True)
                A.I("s_add_u32 s46, s46, 1\ns_add_u32 s47, s47, 1")
            def retire(r, n):
                A.I(f"s_waitcnt vmcnt({n})\nv_readfirstlane_b32 s54, v{r}")
                A.I(f"s_cmp_ge_u32 s54, {NP}\ns_cbranch_scc1 L_dsp_end")
                A.I(f"s_and_b32 s55, s54, {o.sh-1}\ns_add_u32 s55, s55, s48\ns_lshl_b32 s55, s55, 18\ns_lshr_b32 s54, s54, {LSH}\ns_add_u32 s54, s54, {S}\ns_lshl_b32 s54, s54, 13\ns_add_u32 s55, s55, s54")
                A.I(f"s_lshl_b32 s54, s49, 2\nv_mov_b32 v9, s54\nv_mov_b32 v13, s55\nds_write_b32 v9, v13 offset:{L_QU}\ns_add_u32 s49, s49, 1")
            A.I("s_mov_b32 s49, 0")
            if o.satom:
                A.I(f"s_andn2_b32 s54, s2, {o.sh-1}\ns_lshl_b32 s54, s54, 5\ns_add_u32 s54, s54, {WS_CT}\ns_add_u32 s52, s30, s54\ns_addc_u32 s53, s31, 0")
                A.I(f"s_mov_b32 s63, 0\ns_mov_b32 s64, {o.sh}\ns_mov_b32 s65, {1 if o.soft else 0}")
                A.label("L_dsp", flush=True)
                def post(tmp="s54"):
                    A.I(f"s_and_b32 s55, s54, {o.sh-1}\ns_add_u32 s55, s55, s48\ns_lshl_b32 s55, s55, 18\ns_lshr_b32 s54, s54, {LSH}\ns_add_u32 s54, s54, {S}\ns_lshl_b32 s54, s54, 13\ns_add_u32 s55, s55, s54")
                    A.I(f"s_lshl_b32 s54, s49, 2\nv_mov_b32 v9, s54\nv_mov_b32 v13, s55\nds_write_b32 v9, v13 offset:{L_QU}\ns_add_u32 s49, s49, 1\ns_add_u32 s47, s47, 1")
                if o.soft:
                    A.I("s_cmp_lt_u32 s49, 2\ns_cbranch_scc1 L_dsp_go")
                    A.I(f"s_mul_i32 s54, s64, {o.soft_a}\ns_sub_u32 s54, s54, {o.soft_b*o.sh//4}\ns_sub_u32 s55, {NP}, s63\ns_cmp_lt_i32 s55, s54\ns_cbranch_scc0 L_dsp_go")
                    A.I(f"s_mov_b32 s66, 0\ns_mov_b32 s65, {o.timeout}\nv_mov_b32 v13, 0\nds_write_b32 v0, v13 offset:{L_P+8}")
                    A.label("L_soft", flush=False)
                    if o.softflag:
                        A.I(f"ds_read_b32 v9, v0 offset:{L_P}\ns_waitcnt lgkmcnt(0)\nv_readfirstlane_b32 s54, v9\ns_add_u32 s55, s47, {o.lead-1}\ns_cmp_lt_u32 s54, s55\ns_cbranch_scc1 L_soft_nf")
                        A.I(f"v_mov_b32 v13, 1\nds_write_b32 v0, v13 offset:{L_F+12}")
                        A.label("L_soft_nf", flush=False)
                    A.I("s_mov_b32 s54, 0\ns_atomic_add s54, s[52:53], 0x0 glc")
                    A.I(f"ds_read_b32 v9, v0 offset:{L_P+8}\ns_waitcnt lgkmcnt(0)\nv_readfirstlane_b32 s55, v9")
                    A.I(f"s_cmp_ge_u32 s54, {NP}\ns_cbranch_scc1 L_dsp_end")
                    A.I(f"s_add_u32 s66, s66, s55\ns_cmp_ge_u32 s66, {o.soft_n}\ns_cbranch_scc1 L_soft_grab")
                    A.I("s_sub_u32 s65, s65, 1\ns_cmp_eq_u32 s65, 0\ns_cbranch_scc1 L_soft_grab\ns_sleep 1\ns_branch L_soft")
                    A.label("L_soft_grab", flush=False)
                    A.I("s_mov_b32 s54, 1\ns_atomic_add s54, s[52:53], 0x0 glc\ns_waitcnt lgkmcnt(0)")
                    A.I(f"s_cmp_ge_u32 s54, {NP}\ns_cbranch_scc1 L_dsp_end")
                    post()
                    A.I(f"s_sleep 3\nv_mov_b32 v13, 0\nds_write_b32 v0, v13 offset:{L_P+8}\ns_mov_b32 s66, 0")
                    A.I(f"s_cmp_lt_u32 s49, {QCAP}\ns_cbranch_scc1 L_soft\ns_branch L_dsp_end")
                    A.label("L_dsp_go", flush=False)
                waitprog("L_wp")
                A.I("s_mov_b32 s54, 1\ns_atomic_add s54, s[52:53], 0x0 glc\ns_waitcnt lgkmcnt(0)")
                A.I(f"s_cmp_ge_u32 s54, {NP}\ns_cbranch_scc1 L_dsp_end")
                if o.soft:
                    A.I("s_sub_u32 s55, s54, s63\ns_add_u32 s55, s55, s64\ns_lshr_b32 s55, s55, 1\ns_cmp_eq_u32 s49, 0\ns_cselect_b32 s64, s64, s55\ns_mov_b32 s63, s54")
                A.I(f"s_and_b32 s55, s54, {o.sh-1}\ns_add_u32 s55, s55, s48\ns_lshl_b32 s55, s55, 18\ns_lshr_b32 s54, s54, {LSH}\ns_add_u32 s54, s54, {S}\ns_lshl_b32 s54, s54, 13\ns_add_u32 s55, s55, s54")
                A.I(f"s_lshl_b32 s54, s49, 2\nv_mov_b32 v9, s54\nv_mov_b32 v13, s55\nds_write_b32 v9, v13 offset:{L_QU}\ns_add_u32 s49, s49, 1\ns_add_u32 s47, s47, 1")
                A.I(f"s_cmp_lt_u32 s49, {QCAP}\ns_cbranch_scc1 L_dsp")
            else:
                waitprog("L_w0"); grab(10)
                waitprog("L_w1"); grab(11)
                A.label("L_dsp", flush=True)
                for i,(g_,r_) in enumerate(((12,10),(10,11),(11,12))):
                    waitprog(f"L_wp{i}"); grab(g_); retire(r_,2)
                A.I("s_branch L_dsp")
            A.label("L_dsp_end", flush=True)
            A.I(f"s_lshl_b32 s54, s49, 2\nv_mov_b32 v9, s54\nv_mov_b32 v13, {hex(Q_END)}\nds_write_b32 v9, v13 offset:{L_QU}")
            A.I(f"v_mov_b32 v13, 1\nds_write_b32 v0, v13 offset:{L_F+8}\ns_waitcnt lgkmcnt(0) vmcnt(0)")
            if o.stamps:
                s.stamp(2)
                A.I("s_waitcnt lgkmcnt(0)\ns_mov_b32 s82, s49\ns_mov_b32 s83, 0\ns_mov_b64 exec, -1")
                s.stamps_out()
        A.I("s_endpgm")

    def build(s):
        A=s.A; o=s.o
        A.raw(HDR.rstrip())
        A.raw(f"; @launch grid=(256,1,1) block=(512,1,1) lds={LDS}")
        A.raw('.amdgcn_target "amdgcn-amd-amdhsa--gfx950"')
        A.raw(".text"); A.raw(f".globl {NAME}_kernel"); A.raw(".p2align 8"); A.raw(f".type {NAME}_kernel,@function"); A.raw(f"{NAME}_kernel:")
        A.I("s_cmp_ge_u32 s2, 256\ns_cbranch_scc1 L_end")
        s.zero_stamps()
        s.stamp(0)
        A.I("s_load_dwordx8 s[8:15], s[0:1], 0\ns_load_dwordx8 s[16:23], s[0:1], 32\ns_load_dwordx8 s[24:31], s[0:1], 64")
        A.I("v_lshrrev_b32 v2, 6, v0\nv_and_b32 v1, 63, v0\nv_readfirstlane_b32 s3, v2")
        if o.gmap==0: A.I("s_lshr_b32 s4, s2, 5\ns_and_b32 s5, s2, 31")
        else:
            A.I("s_bfe_u32 s4, s2, 0x30003\ns_and_b32 s5, s2, 7\ns_lshr_b32 s7, s2, 6\ns_lshl_b32 s7, s7, 3\ns_add_u32 s5, s5, s7\ns_lshl_b32 s2, s4, 5\ns_add_u32 s2, s2, s5")
        pass
        A.I("s_cmp_lg_u32 s3, 7\ns_cbranch_scc1 L_b0")
        A.I(f"v_lshlrev_b32 v8, 2, v1\nv_mov_b32 v9, {hex(Q_EMPTY)}\nv_mov_b32 v10, 0")
        A.I(f"s_mov_b64 exec, 0xff\nds_write_b32 v8, v10 offset:{L_F}\ns_mov_b64 exec, 15\nds_write_b32 v8, v10 offset:{L_P}\ns_mov_b64 exec, -1")
        if o.dyn: A.I(f"ds_write_b32 v8, v9 offset:{L_QU}\nds_write_b32 v8, v9 offset:{L_QU+256}")
        A.I("s_waitcnt lgkmcnt(0)\ns_barrier\ns_load_dword s6, s[30:31], 0\ns_branch L_h3")
        A.label("L_b0", flush=False)
        A.I("s_cmp_ge_u32 s3, 4\ns_cbranch_scc1 L_helpers")
        s.stream()
        A.hist=[]
        A.label("L_helpers", flush=False)
        A.I("s_waitcnt lgkmcnt(0)")
        A.I("s_load_dword s6, s[30:31], 0")
        A.I("s_cmp_eq_u32 s3, 5\ns_cbranch_scc1 L_h1\ns_cmp_eq_u32 s3, 6\ns_cbranch_scc1 L_h2")
        s.h0(); A.hist=[]
        s.h1(); A.hist=[]
        s.h2(); A.hist=[]
        s.h3(); A.hist=[]
        A.label("L_end", flush=False)
        A.I("s_endpgm")
        A.raw('.section .rodata,"a"'); A.raw(".p2align 6"); A.raw(f".amdhsa_kernel {NAME}_kernel")
        A.raw("  .amdhsa_next_free_vgpr 256\n  .amdhsa_next_free_sgpr 102\n  .amdhsa_accum_offset 256\n  .amdhsa_group_segment_fixed_size 0\n  .amdhsa_kernarg_size 96\n  .amdhsa_user_sgpr_count 2\n  .amdhsa_user_sgpr_kernarg_segment_ptr 1\n  .amdhsa_system_sgpr_workgroup_id_x 1\n  .amdhsa_float_denorm_mode_32 3\n.end_amdhsa_kernel")
        return A.text()

if __name__=="__main__":
    ap=argparse.ArgumentParser()
    ap.add_argument("-o",dest="out",default="k.s")
    ap.add_argument("--p",type=int,default=13)
    ap.add_argument("--ns",type=int,default=13)
    ap.add_argument("--d",type=int,default=8)
    ap.add_argument("--rot",type=int,default=0)
    ap.add_argument("--nt",type=int,default=1)
    ap.add_argument("--wnt",type=int,default=1)
    ap.add_argument("--thr",type=float,default=8.0)
    ap.add_argument("--timeout",type=int,default=200000)
    ap.add_argument("--stamps",type=int,default=0)
    ap.add_argument("--dbg",type=int,default=0)
    ap.add_argument("--qsleep",type=int,default=2)
    ap.add_argument("--q2",type=int,default=1)
    ap.add_argument("--dyn",type=int,default=8)
    ap.add_argument("--lin1",type=int,default=0)
    ap.add_argument("--lin2",type=int,default=1)
    ap.add_argument("--hp1",type=int,default=2)
    ap.add_argument("--hp2",type=int,default=0)
    ap.add_argument("--st2",type=int,default=0)
    ap.add_argument("--wodelay",type=int,default=0)
    ap.add_argument("--wolate",type=int,default=3)
    ap.add_argument("--lead",type=int,default=2)
    ap.add_argument("--sh",type=int,default=32)
    ap.add_argument("--satom",type=int,default=1)
    ap.add_argument("--gsleep",type=int,default=3)
    ap.add_argument("--b2lds",type=int,default=1)
    ap.add_argument("--gxsleep",type=int,default=16)
    ap.add_argument("--gmap",type=int,default=0)
    ap.add_argument("--ffnafterq",type=int,default=0)
    ap.add_argument("--emptyflag",type=int,default=0)
    ap.add_argument("--softflag",type=int,default=1)
    ap.add_argument("--won",type=int,default=1)
    ap.add_argument("--n1",type=int,default=3)
    ap.add_argument("--pregate",type=int,default=8)
    ap.add_argument("--wpsleep",type=int,default=2)
    ap.add_argument("--fsamp",type=int,default=16)
    ap.add_argument("--n2",type=int,default=8)
    ap.add_argument("--s1sleep",type=int,default=0)
    ap.add_argument("--s2sleep",type=int,default=0)
    ap.add_argument("--hint",type=int,default=176)
    ap.add_argument("--htimeout",type=int,default=20000)
    ap.add_argument("--ilv",type=int,default=1)
    ap.add_argument("--pssleep",type=int,default=6)
    ap.add_argument("--prio",type=int,default=0)
    ap.add_argument("--hprio",type=int,default=0)
    ap.add_argument("--soft",type=int,default=0)
    ap.add_argument("--soft_a",type=int,default=6)
    ap.add_argument("--soft_b",type=int,default=20)
    ap.add_argument("--soft_n",type=int,default=2)
    ap.add_argument("--wostamp",type=int,default=0)
    ap.add_argument("--ylate",type=int,default=1)
    ap.add_argument("--ffnspread",type=int,default=1)
    ap.add_argument("--d0",type=int,default=8)
    ap.add_argument("--dp",type=int,default=0)
    ap.add_argument("--setup_at",type=int,default=16)
    ap.add_argument("--h1two",type=int,default=0)
    ap.add_argument("--h1sleep",type=int,default=1)
    o=ap.parse_args()
    open(o.out,"w").write(G(o).build())
```

```python
import sys, argparse
from asmlib import Asm
NAME="recurrent_scan__gqa_block_cached__geglu_ffn__decode"
HDR = """; Kernarg layout for this problem (96 bytes, ptrs only, base s[0:1]):
"""
DESC = """;
;
; Hand-offs between workgroups go through d_ws as self-validating granules {data, tag}; tag is derived from the word
"""
WS_ML=0x8000; WS_CT=0x10000; WS_HQ=0x12000; WS_HG=0x13000; WS_HH=0x14000; WS_HS=0x1C000; WS_QX=0x20000; WS_GX=0x40000; WS_YP=0x80000; WS_H1=0x180000; WS_SP=0x280000; WS_ST=0x380000; WS_SIZE=0x400000
FSTR=32768
L_Q=0; L_O=2048; L_M=10240; L_F=10496; L_G=10512; L_Y=10752; L_S=11008; L_QU=11264; L_P=11776; L_X=12288; LDS=16384
Q_EMPTY=0xfffffffe; Q_END=0xffffffff
C_SCALE=0x3db8aa3b
def f2u(x):
    import struct; return struct.unpack('<I',struct.pack('<f',x))[0]

class G:
    def __init__(s, o):
        s.o=o; s.A=Asm(); s.nst=0
    def stamp(s, i):
        if s.o.stamps: s.A.I(f"s_memrealtime s[{80+2*i}:{81+2*i}]")
    def stamps_out(s):
        if not s.o.stamps: return
        A=s.A
        A.I("s_waitcnt vmcnt(0) lgkmcnt(0)")
        A.I("s_mov_b64 exec, 1")
        A.I(f"s_lshl_b32 s60, s2, 3\ns_add_u32 s60, s60, s3\ns_lshl_b32 s60, s60, 6\ns_add_u32 s60, s60, {WS_ST}")
        A.I("s_mov_b32 s72, s30\ns_mov_b32 s73, s31\ns_mov_b32 s74, %d\ns_mov_b32 s75, 0x20000"%WS_SIZE)
        A.I("v_mov_b32 v2, s60")
        for q in range(4):
            for r in range(4): A.I(f"v_mov_b32 v{4+r}, s{80+4*q+r}")
            A.I(f"buffer_store_dwordx4 v[4:7], v2, s[72:75], 0 offen offset:{16*q}")
            A.I("s_waitcnt vmcnt(0)")
        A.I("s_mov_b64 exec, -1")
    def zero_stamps(s):
        if s.o.stamps:
            for i in range(16): s.A.I(f"s_mov_b32 s{80+i}, 0")
            s.A.I("s_nop 0")
    def srd(s, r, lo, size):
        s.A.I(f"s_mov_b32 s{r}, s{lo}\ns_mov_b32 s{r+1}, s{lo+1}\ns_mov_b32 s{r+2}, {size}\ns_mov_b32 s{r+3}, 0x20000")
    def row_allreduce(s, op, regs, steps=(8,4,2,1)):
        for st in steps:
            for r in regs: s.A.I(f"{op}_dpp v{r}, v{r}, v{r} row_ror:{st} row_mask:0xf bank_mask:0xf")
    def cross_rows(s, op, regs, tmps):
        A=s.A
        for sw in ("v_permlane16_swap_b32","v_permlane32_swap_b32"):
            for r,t in zip(regs,tmps): A.I(f"v_mov_b32 v{t}, v{r}")
            for r,t in zip(regs,tmps): A.I(f"{sw} v{r}, v{t}")
            for r,t in zip(regs,tmps): A.I(f"{op} v{r}, v{r}, v{t}")
    def wave_allreduce(s, op, regs, tmps):
        s.row_allreduce(op, regs); s.cross_rows(op, regs, tmps)
    def bf16r(s, dst, src):
        s.A.I(f"v_cvt_pk_bf16_f32 v{dst}, v{src}, 0\nv_lshlrev_b32 v{dst}, 16, v{dst}")
    def make_masks(s, m0, lane, t0, t1):
        A=s.A
        A.I(f"v_and_b32 v{t0}, 1, v{lane}\nv_lshlrev_b32 v{t0}, 4, v{t0}\nv_mov_b32 v{t1}, 0xffff\nv_lshlrev_b32 v{t0}, v{t0}, v{t1}")
        A.I(f"v_bfe_u32 v{t1}, v{lane}, 1, 2")
        for r in range(4):
            A.I(f"v_cmp_eq_u32 vcc, {r}, v{t1}\nv_cndmask_b32 v{m0+r}, 0, v{t0}, vcc")
    def tag_from_E(s):
        s.A.I("s_mul_i32 s6, s6, 0x9E3779B1\ns_add_u32 s6, s6, 0x7F4A7C15")
    def poll(s, name, loads, tags, acc, pre=None, sleep=0, lanes=None):
        A=s.A
        A.I(f"s_mov_b32 s62, {s.o.timeout}")
        A.label(name)
        if pre: A.I(pre)
        for l in loads: A.I(l)
        if lanes is None: A.I("s_mov_b64 exec, -1")
        A.I("s_waitcnt vmcnt(0)")
        A.I(f"v_xor_b32 v{acc}, s6, v{tags[0]}")
        for t in tags[1:]: A.I(f"v_bitop3_b32 v{acc}, v{t}, s6, v{acc} bitop3:0xbe")
        A.I(f"v_cmp_ne_u32 vcc, 0, v{acc}")
        A.I(f"s_cbranch_vccz {name}_ok")
        if sleep: A.I(f"s_sleep {sleep}")
        A.I("s_sub_u32 s62, s62, 1\ns_cmp_lg_u32 s62, 0")
        A.I(f"s_cbranch_scc1 {name}")
        A.label(name+"_ok")
        if lanes is not None: A.I("s_mov_b64 exec, -1")
    def layernorm(s, ldsbase):
        A=s.A
        for d in range(4):
            A.I(f"v_lshlrev_b32 v{10+2*d}, 16, v{4+d}\nv_and_b32 v{11+2*d}, 0xffff0000, v{4+d}")
        A.I("v_add_f32 v18, v10, v11\nv_add_f32 v19, v12, v13\nv_add_f32 v20, v14, v15\nv_add_f32 v21, v16, v17")
        A.I("v_add_f32 v18, v18, v19\nv_add_f32 v20, v20, v21\nv_add_f32 v18, v18, v20")
        s.wave_allreduce("v_add_f32",[18],[19])
        A.I(f"v_mul_f32 v18, {hex(f2u(1/448))}, v18")
        for i in range(8): A.I(f"v_sub_f32 v{20+i}, v{10+i}, v18")
        A.I("v_mul_f32 v19, v20, v20")
        for i in range(1,8): A.I(f"v_fmac_f32 v19, v{20+i}, v{20+i}")
        A.I("v_cmp_gt_u32 vcc, 56, v1\nv_cndmask_b32 v19, 0, v19, vcc")
        s.wave_allreduce("v_add_f32",[19],[20])
        A.I(f"v_mul_f32 v19, {hex(f2u(1/448))}, v19")
        s.bf16r(18,18); s.bf16r(19,19)
        A.I("v_add_f32 v19, 0x3727c5ac, v19"); s.bf16r(19,19)
        A.I("v_sqrt_f32 v19, v19"); s.bf16r(19,19)
        A.I("v_rcp_f32 v8, v19")
        for i in range(8): A.I(f"v_sub_f32 v{20+i}, v{10+i}, v18")
        for i in range(8): A.I(f"v_cvt_pk_bf16_f32 v{20+i}, v{20+i}, 0")
        for i in range(8): A.I(f"v_lshlrev_b32 v{20+i}, 16, v{20+i}")
        for i in range(8): A.I(f"v_mul_f32 v{10+i}, v{20+i}, v8")
        for i in range(8): A.I(f"v_fma_f32 v{20+i}, -v{10+i}, v19, v{20+i}")
        for i in range(8): A.I(f"v_fmac_f32 v{10+i}, v{20+i}, v8")
        for i in range(8): A.I(f"v_cvt_pk_bf16_f32 v{20+i}, v{10+i}, 0")
        A.I(f"v_lshlrev_b32 v9, 5, v1")
        A.I(f"ds_write_b128 v9, v[20:23] offset:{ldsbase}\nds_write_b128 v9, v[24:27] offset:{ldsbase+16}")
        A.I("s_waitcnt lgkmcnt(0)")
    def matvec_prep(s, px, st, tagv):
        A=s.A
        A.I(f"v_lshrrev_b32 v{px}, 2, v1\nv_bfe_u32 v{px+1}, v1, 1, 1\nv_lshlrev_b32 v{px+1}, 4, v{px+1}\nv_add_u32 v{px}, v{px}, v{px+1}")
        A.I(f"v_and_b32 v{px+1}, 1, v1\nv_lshlrev_b32 v{px+1}, 5, v{px+1}\nv_add_u32 v{px}, v{px}, v{px+1}\nv_lshlrev_b32 v{px}, 2, v{px}")
        for cb in range(4): A.I(f"v_mov_b32 v{st+4*cb+1}, {tagv}\nv_mov_b32 v{st+4*cb+3}, {tagv}")
        A.I("s_mov_b32 s70, 0\ns_mov_b32 s71, -1")
        for cb in range(4): A.I(f"s_mov_b32 s{64+cb}, {cb*8*FSTR}")
    def matvec_publish(s, nt, avals, wregs, masks, dacc, areg, voff, srd, px, st):
        A=s.A
        for t in range(nt):
            a=areg+4*(t%2)
            for r in range(4): A.I(f"v_and_b32 v{a+r}, v{avals[t]}, v{masks+r}")
            for cb in range(4):
                c = "0" if t==0 else f"v[{dacc+4*cb}:{dacc+4*cb+3}]"
                w=wregs(t,cb)
                A.I(f"v_mfma_f32_16x16x32_bf16 v[{dacc+4*cb}:{dacc+4*cb+3}], v[{a}:{a+3}], v[{w}:{w+3}], {c}")
        for cb in range(4):
            d=dacc+4*cb
            A.I(f"v_cndmask_b32 v{d}, v{d}, v{d+2}, s[70:71]")
            A.I(f"v_cndmask_b32 v{d+1}, v{d+1}, v{d+3}, s[70:71]")
            A.I(f"ds_bpermute_b32 v{st+4*cb}, v{px}, v{d}\nds_bpermute_b32 v{st+4*cb+2}, v{px}, v{d+1}")
        for cb in range(4):
            A.I("s_waitcnt lgkmcnt(%d)"%(0 if s.o.stamps else 6-2*cb))
            if cb==3: A.I("s_mov_b32 exec_hi, 0")
            A.I(f"buffer_store_dwordx4 v[{st+4*cb}:{st+4*cb+3}], v{voff}, s[{srd}:{srd+3}], s{64+cb} offen sc1")
        A.I("s_mov_b64 exec, -1")
    def pub_voff(s, dst, t0, base):
        A=s.A
        A.I(f"v_lshrrev_b32 v{dst}, 3, v1\nv_lshlrev_b32 v{dst}, 15, v{dst}\nv_and_b32 v{t0}, 7, v1\nv_lshlrev_b32 v{t0}, 4, v{t0}")
        A.I(f"s_lshl_b32 s55, s2, 7\ns_add_u32 s55, s55, {base}\nv_add3_u32 v{dst}, v{dst}, v{t0}, s55")
    def rowsplit_voff(s, dst, t0, sbase):
        A=s.A
        A.I(f"v_bfe_u32 v{dst}, v1, 1, 3\nv_lshlrev_b32 v{dst}, 7, v{dst}\nv_lshrrev_b32 v{t0}, 4, v1\nv_lshlrev_b32 v{t0}, 5, v{t0}\nv_add_u32 v{dst}, v{dst}, v{t0}")
        A.I(f"v_and_b32 v{t0}, 1, v1\nv_lshlrev_b32 v{t0}, 4, v{t0}\nv_add3_u32 v{dst}, v{dst}, v{t0}, s{sbase}")
    def reduce8(s, a):
        A=s.A
        for e in range(4): A.I(f"v_permlane32_swap_b32 v{a+e}, v{a+4+e}")
        for e in range(4): A.I(f"v_add_f32 v{a+e}, v{a+e}, v{a+4+e}")
        for e in range(2): A.I(f"v_permlane16_swap_b32 v{a+e}, v{a+2+e}")
        for e in range(2): A.I(f"v_add_f32 v{a+e}, v{a+e}, v{a+2+e}")
        s.row_allreduce("v_add_f32",[a,a+1],(8,))
    def pub8(s, a, voff, srd):
        A=s.A
        A.I(f"v_mov_b32 v{a+2}, v{a+1}\nv_mov_b32 v{a+1}, s6\nv_mov_b32 v{a+3}, s6")
        A.I("s_mov_b32 exec_lo, 0x00ff00ff\ns_mov_b32 exec_hi, 0x00ff00ff")
        A.I(f"buffer_store_dwordx4 v[{a}:{a+3}], v{voff}, s[{srd}:{srd+3}], 0 offen sc1")
        A.I("s_mov_b64 exec, -1")
    def pub8_voff(s, dst, t0, sbase):
        A=s.A
        A.I(f"v_and_b32 v{dst}, 7, v1\nv_lshlrev_b32 v{dst}, 6, v{dst}\nv_lshrrev_b32 v{t0}, 4, v1\nv_lshlrev_b32 v{t0}, 4, v{t0}\nv_add3_u32 v{dst}, v{dst}, v{t0}, s{sbase}")
    def bcast_rows(s, dst, src, lanefn):
        for kg in range(4):
            s.A.I(f"v_mov_b32_dpp v{dst}, v{src} row_newbcast:{lanefn(kg)} row_mask:{hex(1<<kg)} bank_mask:0xf")

    def stream(s):
        A=s.A; o=s.o
        VK,VV,NEGM,LS,CS,T=2,3,4,5,6,7
        MK=8; Q0=12; Q1=16; D=20; AP=24; O0=28; O1=32; P=36; RING=40
        NS=o.ns; DD=o.d; NSETS=32-o.dyn; LAG=DD//4; RS=LAG+1
        A.c("---- stream waves")
        if o.prio: A.I(f"s_setprio {o.prio}")
        A.I("v_bfe_u32 v8, v1, 2, 2\nv_lshlrev_b32 v8, 9, v8")
        A.I("v_lshrrev_b32 v9, 4, v1\nv_lshlrev_b32 v10, 6, v9")
        A.I("v_and_b32 v11, 3, v1\nv_lshlrev_b32 v11, 4, v11")
        A.I(f"v_add3_u32 v{VK}, v8, v10, v11")
        A.I("v_lshlrev_b32 v9, 9, v9\nv_and_b32 v10, 15, v1\nv_lshlrev_b32 v10, 4, v10")
        A.I(f"v_add_u32 v{VV}, v9, v10")
        A.I("s_lshl_b32 s55, s3, 11")
        A.I(f"v_add_u32 v{VK}, s55, v{VK}\nv_add_u32 v{VV}, s55, v{VV}\nv_mov_b32 v0, 0")
        A.I(f"s_lshl_b32 s44, s5, 18")
        A.I("s_lshl_b32 s55, s4, 23")
        A.I("s_waitcnt lgkmcnt(0)")
        if o.st2==2: s.stamp(5)
        A.I("s_add_u32 s32, s10, s55\ns_addc_u32 s33, s11, 0\ns_mov_b32 s34, 0x800000\ns_mov_b32 s35, 0x20000")
        A.I("s_add_u32 s36, s12, s55\ns_addc_u32 s37, s13, 0\ns_mov_b32 s38, 0x800000\ns_mov_b32 s39, 0x20000")
        st={'issued':0,'landed':0,'slot':{}, 'free':list(range(NS))}
        nt=" nt" if o.nt else ""
        def issue():
            x=st['issued']; se,part=divmod(x,4)
            if part==0:
                st['slot'][se]=st['free'].pop(0)
                if se>0: A.I("s_add_u32 s44, s44, 8192")
                if o.dyn and se>=NSETS-o.lead: A.I(f"v_mov_b32 v38, {se}\ns_mov_b64 exec, 1\nds_max_u32 v0, v38 offset:{L_P}\ns_mov_b64 exec, -1")
                if o.st2==1 and se==16: s.stamp(5)
                if o.st2==1 and se==20: s.stamp(6)
                if o.st2==1 and se==NSETS-1: s.stamp(7)
                if o.st2==2 and se==4: s.stamp(7)
            r=RING+16*st['slot'][se]+4*part
            if part<2: A.I(f"buffer_load_dwordx4 v[{r}:{r+3}], v{VK}, s[32:35], s44 offen offset:{256*part}{nt}")
            else: A.I(f"buffer_load_dwordx4 v[{r}:{r+3}], v{VV}, s[36:39], s44 offen offset:{256*(part-2)}{nt}")
            st['issued']+=1
        def can_issue():
            x=st['issued']
            if x>=4*NSETS: return False
            return (x%4!=0) or bool(st['free'])
        def wait_landed(n):
            if st['landed']>=n: return
            A.I(f"s_waitcnt vmcnt({st['issued']-n})"); st['landed']=n
        def pace(dd=None):
            dd = dd or DD
            x=st['issued']
            if x-st['landed']>=dd: wait_landed(x-dd+1)
            issue()
        for x in range(min(o.d0,4*o.p)): issue()
        A.I("s_barrier")
        DP = o.dp or DD
        if o.d0<DP:
            wait_landed(1)
            if o.st2==2: s.stamp(6)
            while st['issued']<DP: issue()
        while st['issued']<min(4*o.p, o.setup_at): pace(DP)
        A.I("s_load_dword s6, s[30:31], 0")
        s.make_masks(MK,1,37,38)
        A.I(f"v_mov_b32 v{CS}, {hex(C_SCALE)}\nv_mov_b32 v{NEGM}, 0\nv_mov_b32 v{LS}, 0")
        for r in range(8): A.I(f"v_mov_b32 v{O0+r}, 0")
        A.I("v_lshrrev_b32 v248, 3, v1\nv_lshlrev_b32 v248, 4, v248\ns_lshl_b32 s54, s3, 2\nv_add_u32 v248, s54, v248")
        A.I("v_lshrrev_b32 v249, 5, v1\nv_lshlrev_b32 v249, 10, v249\nv_and_b32 v37, 15, v1\nv_lshlrev_b32 v37, 5, v37\nv_add_u32 v249, v249, v37")
        A.I("v_bfe_u32 v37, v1, 4, 1\nv_lshlrev_b32 v37, 4, v37\ns_lshl_b32 s54, s3, 11\nv_add3_u32 v249, v249, v37, s54")
        A.I("s_lshr_b32 s54, s3, 1\ns_and_b32 s55, s3, 1\ns_lshl_b32 s55, s55, 6\nv_add_u32 v37, s55, v1")
        A.I("s_lshl_b32 s55, s54, 10\nv_lshlrev_b32 v250, 3, v37\nv_add_u32 v250, s55, v250")
        A.I("s_lshl_b32 s55, s54, 4\nv_mov_b32 v251, s55")
        s.srd(40,30,WS_SIZE)
        A.I(f"s_lshl_b32 s55, s4, 5\ns_lshl_b32 s56, s54, 4\ns_add_u32 s55, s55, s56\ns_lshl_b32 s55, s55, 12\ns_lshl_b32 s56, s5, 7\ns_add_u32 s55, s55, s56\ns_add_u32 s55, s55, {WS_H1}")
        if o.hint&4:
            A.I(f"s_lshl_b32 s56, s4, 5\ns_lshl_b32 s57, s3, 3\ns_add_u32 s56, s56, s57\ns_lshl_b32 s56, s56, 7\ns_add_u32 s56, s56, s5\ns_add_u32 s56, s56, {WS_HH}\nv_lshlrev_b32 v253, 7, v1\nv_add_u32 v253, s56, v253")
        A.I("v_lshrrev_b32 v252, 3, v37\nv_lshlrev_b32 v252, 12, v252\nv_and_b32 v37, 7, v37\nv_lshlrev_b32 v37, 4, v37\nv_add3_u32 v252, v252, v37, s55")
        while st['issued']<4*o.p: pace(DP)
        s.stamp(1)
        A.I("s_waitcnt lgkmcnt(0)")
        s.tag_from_E()
        if not (o.dbg&1):
            A.I(f"s_mov_b32 s62, {o.timeout}\nv_mov_b32 v39, 0")
            A.label("L_qw")
            A.I(f"ds_read_b128 v[20:23], v39 offset:{L_G}\ns_waitcnt lgkmcnt(0)")
            A.I("v_and_b32 v37, v20, v21\nv_and_b32 v38, v22, v23\nv_and_b32 v37, v37, v38")
            A.I("v_cmp_eq_u32 vcc, 0, v37\ns_cbranch_vccz L_qw_ok\ns_sleep 1\ns_sub_u32 s62, s62, 1\ns_cmp_lg_u32 s62, 0\ns_cbranch_scc1 L_qw")
            A.label("L_qw_ok")
        s.stamp(2)
        A.I("v_bfe_u32 v37, v1, 3, 1\nv_lshlrev_b32 v37, 9, v37\nv_lshrrev_b32 v38, 4, v1\nv_lshlrev_b32 v38, 6, v38\nv_add_u32 v37, v37, v38\nv_and_b32 v38, 3, v1\nv_lshlrev_b32 v38, 4, v38\nv_add_u32 v37, v37, v38")
        A.I(f"ds_read_b128 v[{Q0}:{Q0+3}], v37 offset:{L_Q}\nds_read_b128 v[{Q1}:{Q1+3}], v37 offset:{L_Q+256}")
        A.I("s_waitcnt lgkmcnt(0)")
        stubs=[]
        def procA(sl):
            A.I(f"v_mfma_f32_16x16x32_bf16 v[{D}:{D+3}], v[{sl}:{sl+3}], v[{Q0}:{Q0+3}], 0")
            A.I(f"v_mfma_f32_16x16x32_bf16 v[{D}:{D+3}], v[{sl+4}:{sl+7}], v[{Q1}:{Q1+3}], v[{D}:{D+3}]")
            A.I(f"v_mov_b32 v{T}, v{NEGM}")
            A.I(f"v_mov_b32 v37, 0")
        def procB(name, first=False):
            A.I(f"v_fmac_f32_dpp v{T}, v{D}, v{CS} quad_perm:[0,0,0,0] row_mask:0xf bank_mask:0xf")
            A.I(f"v_fmac_f32_dpp v37, v{D+1}, v{CS} quad_perm:[1,1,1,1] row_mask:0xf bank_mask:0xf")
            A.I(f"v_fmac_f32_dpp v{T}, v{D+2}, v{CS} quad_perm:[2,2,2,2] row_mask:0xf bank_mask:0xf")
            A.I(f"v_fmac_f32_dpp v37, v{D+3}, v{CS} quad_perm:[3,3,3,3] row_mask:0xf bank_mask:0xf")
            A.I(f"v_add_f32 v{T}, v{T}, v37")
            if first:
                A.I(f"v_mov_b32 v37, v{T}")
                s.cross_rows("v_max_f32",[37],[38])
                A.I(f"v_sub_f32 v{NEGM}, 0, v37\nv_sub_f32 v{T}, v{T}, v37")
            else:
                A.I(f"v_cmp_lt_f32 vcc, {hex(f2u(o.thr))}, v{T}")
                A.I(f"s_cbranch_vccnz L_stub{name}")
                A.raw(f"L_res{name}:")
                stubs.append(name)
            A.I(f"v_exp_f32 v{T}, v{T}")
            A.I(f"v_cvt_pk_bf16_f32 v{P}, v{T}, v{T}")
            A.I(f"v_add_f32 v{LS}, v{LS}, v{T}")
            for r in range(4): A.I(f"v_and_b32 v{AP+r}, v{P}, v{MK+r}")
        def procC(sl):
            A.I(f"v_mfma_f32_16x16x32_bf16 v[{O0}:{O0+3}], v[{AP}:{AP+3}], v[{sl+8}:{sl+11}], v[{O0}:{O0+3}]")
            A.I(f"v_mfma_f32_16x16x32_bf16 v[{O1}:{O1+3}], v[{AP}:{AP+3}], v[{sl+12}:{sl+15}], v[{O1}:{O1+3}]")
        def proc(sl, name, first=False, kwait=None, vwait=None):
            if kwait: kwait()
            procA(sl); procB(name, first)
            if vwait: vwait()
            procC(sl)
        def process(se):
            proc(RING+16*st['slot'][se], str(se), se==0, lambda: wait_landed(4*se+2), lambda: wait_landed(4*se+4))
            st['free'].append(st['slot'][se])
        sp=0
        last = NSETS-LAG if o.dyn else NSETS
        while sp<last or (o.dyn and st['issued']<4*NSETS):
            backlog = st['landed']//4 - sp
            x=st['issued']
            if o.ilv and LAG==2 and x%4==0 and x//4==sp+LAG and can_issue() and sp>0 and sp<last:
                sl=RING+16*st['slot'][sp]
                pace(); pace()
                assert st['landed']>=4*sp+2
                procA(sl)
                pace()
                procB(str(sp))
                pace()
                assert st['landed']>=4*sp+4
                procC(sl)
                st['free'].append(st['slot'][sp]); sp+=1
            elif backlog>0 and sp<last and not (o.ilv and LAG==2 and backlog==1 and x//4-sp<=LAG and x%4!=0):
                process(sp); sp+=1
                if can_issue() and (backlog>1 or not o.ilv): pace()
            elif can_issue(): pace()
            else:
                process(sp); sp+=1
        if o.dyn:
            assert st['issued']==4*NSETS and sp==NSETS-LAG, (st['issued'], sp)
            DS={}
            for x in range(NSETS-LAG,NSETS): DS[x%RS]=st['slot'][x]
            DS[NSETS%RS]=st['free'][0]
            assert len(set(DS.values()))==RS
            A.I("s_mov_b32 s46, 0")
            A.I(f"s_mov_b32 s47, {NSETS}")
            A.I(f"v_mov_b32 v39, s46\nds_read_b32 v38, v39 offset:{L_QU}")
            order=[(NSETS+i)%RS for i in range(RS)]
            for i,ph in enumerate(order):
                A.label(f"L_dyn{ph}", flush=True)
                A.I(f"s_mov_b32 s62, {o.timeout}")
                A.label(f"L_dq{ph}", flush=False)
                A.I("s_waitcnt lgkmcnt(0)\nv_readfirstlane_b32 s44, v38")
                A.I(f"s_cmp_lt_u32 s44, {hex(Q_EMPTY)}\ns_cbranch_scc1 L_dgo{ph}")
                A.I(f"s_cmp_eq_u32 s44, {hex(Q_END)}\ns_cbranch_scc1 L_drain{ph}")
                A.I(f"s_sub_u32 s62, s62, 1\ns_cmp_eq_u32 s62, 0\ns_cbranch_scc1 L_drain{ph}")
                if o.soft: A.I(f"v_mov_b32 v38, 1\nds_write_b32 v0, v38 offset:{L_P+8}")
                if o.wolate==2 and o.emptyflag: A.I(f"v_mov_b32 v38, 1\nds_write_b32 v0, v38 offset:{L_F+12}")
                A.I(f"s_sleep 1\nds_read_b32 v38, v39 offset:{L_QU}\ns_branch L_dq{ph}")
                A.label(f"L_dgo{ph}", flush=False)
                A.I(f"v_mov_b32 v38, s47\ns_mov_b64 exec, 1\nds_max_u32 v0, v38 offset:{L_P}\ns_mov_b64 exec, -1")
                sl=RING+16*DS[ph]
                psl=RING+16*DS[(ph-LAG)%RS]
                for part in range(4):
                    A.I(f"s_waitcnt vmcnt({DD-1})")
                    r=sl+4*part
                    if part<2: A.I(f"buffer_load_dwordx4 v[{r}:{r+3}], v{VK}, s[32:35], s44 offen offset:{256*part}{nt}")
                    else: A.I(f"buffer_load_dwordx4 v[{r}:{r+3}], v{VV}, s[36:39], s44 offen offset:{256*(part-2)}{nt}")
                    if o.ilv and LAG==2:
                        if part==1: procA(psl)
                        if part==2: procB(f"d{ph}")
                        if part==3: procC(psl)
                A.I("s_add_u32 s46, s46, 4\ns_add_u32 s47, s47, 1")
                if not (o.ilv and LAG==2): proc(psl, f"d{ph}")
                A.I(f"v_mov_b32 v39, s46\nds_read_b32 v38, v39 offset:{L_QU}")
                if i==RS-1: A.I(f"s_branch L_dyn{order[0]}")
            for ph in order:
                A.label(f"L_drain{ph}", flush=True)
                A.I(f"v_mov_b32 v38, 1\nds_write_b32 v0, v38 offset:{L_F+12}")
                cnt=[4*LAG]
                for t in range(LAG,0,-1):
                    def kw(n=4*t-2): A.I(f"s_waitcnt vmcnt({n})")
                    def vw(n=4*t-4): A.I(f"s_waitcnt vmcnt({n})")
                    proc(RING+16*DS[(ph-t)%RS], f"e{ph}_{t}", False, kw, vw)
                A.I("s_branch L_sdone")
            A.label("L_sdone", flush=True)
        s.stamp(3)
        s.cross_rows("v_add_f32",[LS],[37])
        A.I(f"v_sub_f32 v38, 0, v{NEGM}")
        A.I(f"ds_write_b128 v249, v[{O0}:{O0+3}] offset:{L_O}\nds_write_b128 v249, v[{O1}:{O1+3}] offset:{L_O+512}")
        A.I("s_mov_b32 exec_lo, 0x101\ns_mov_b32 exec_hi, 0")
        A.I(f"ds_write_b32 v248, v38 offset:{L_M}\nds_write_b32 v248, v{LS} offset:{L_M+32}")
        if o.b2lds:
            A.I(f"v_mov_b32 v37, 1\ns_mov_b64 exec, 1\nds_add_u32 v0, v37 offset:{L_P+4}\ns_mov_b64 exec, -1\ns_mov_b32 s62, {o.timeout}")
        else:
            A.I("s_mov_b64 exec, -1")
            A.I("s_waitcnt lgkmcnt(0)")
        if o.b2lds:
            A.label("L_b2", flush=False)
            A.I(f"ds_read_b32 v38, v0 offset:{L_P+4}\ns_waitcnt lgkmcnt(0)\nv_cmp_gt_u32 vcc, 4, v38\ns_cbranch_vccz L_b2_ok\ns_sub_u32 s62, s62, 1\ns_cmp_lg_u32 s62, 0\ns_cbranch_scc1 L_b2")
            A.label("L_b2_ok", flush=False)
        else:
            A.I("s_barrier")
        s.stamp(4)
        A.I(f"ds_read_b128 v[8:11], v251 offset:{L_M}\nds_read_b128 v[12:15], v251 offset:{L_M+32}")
        for w in range(4): A.I(f"ds_read_b64 v[{16+2*w}:{17+2*w}], v250 offset:{L_O+2048*w}")
        A.I("v_mov_b32 v31, s6\ns_mov_b32 s56, 0xaaaaaaaa\ns_mov_b32 s57, 0xaaaaaaaa")
        A.I("s_waitcnt lgkmcnt(%d)"%(0 if o.stamps else 4))
        A.I("v_max3_f32 v24, v8, v9, v10\nv_max_f32 v24, v24, v11")
        for w in range(4): A.I(f"v_sub_f32 v{8+w}, v{8+w}, v24")
        for w in range(4): A.I(f"v_exp_f32 v{8+w}, v{8+w}")
        A.I("s_waitcnt lgkmcnt(0)")
        A.I("v_mul_f32 v26, v8, v12\nv_mul_f32 v28, v8, v16\nv_mul_f32 v29, v8, v17")
        for w in range(1,4):
            A.I(f"v_fmac_f32 v26, v{8+w}, v{12+w}\nv_fmac_f32 v28, v{8+w}, v{16+2*w}\nv_fmac_f32 v29, v{8+w}, v{17+2*w}")
        A.I("v_cndmask_b32 v30, v24, v26, s[56:57]")
        A.I("buffer_store_dwordx4 v[28:31], v252, s[40:43], 0 offen sc1")
        if o.hint&4: s.hintstore(253,27,40,0xff)
        if not o.st2: s.stamp(5)
        if not (o.dbg&4):
            A.I("s_cmp_ge_u32 s2, 28\ns_cbranch_scc1 L_st_end")
            s.final()
        A.label("L_st_end")
        s.stamps_out()
        A.I("s_endpgm")
        for se in stubs:
            A.label(f"L_stub{se}", flush=False)
            A.I(f"s_call_b64 s[52:53], L_rare\ns_branch L_res{se}")
        A.hist=[]
        A.label("L_rare", flush=False)
        A.I("s_nop 7")
        A.I(f"v_mov_b32 v37, v{T}")
        s.cross_rows("v_max_f32",[37],[38])
        A.I(f"v_max_f32 v37, 0, v37")
        A.I(f"v_sub_f32 v{NEGM}, v{NEGM}, v37\nv_sub_f32 v{T}, v{T}, v37")
        A.I("v_sub_f32 v38, 0, v37\nv_exp_f32 v38, v38")
        A.I(f"v_mul_f32 v{LS}, v{LS}, v38")
        A.I("v_readlane_b32 s54, v38, 0\nv_readlane_b32 s55, v38, 8")
        A.I("v_mov_b32 v39, s54\nv_mov_b32 v37, s55\ns_mov_b32 s56, 0\ns_mov_b32 s57, -1")
        A.I("v_cndmask_b32 v39, v39, v37, s[56:57]")
        for r in range(8): A.I(f"v_mul_f32 v{O0+r}, v{O0+r}, v39")
        A.flush()
        A.I("s_setpc_b64 s[52:53]")

    def final(s):
        A=s.A; o=s.o
        s.srd(32,8,896); s.srd(36,26,896)
        A.I("s_lshl_b32 s54, s2, 5\nv_and_b32 v2, 7, v1\nv_lshlrev_b32 v7, 3, v2\nv_lshlrev_b32 v2, 2, v2\nv_add_u32 v2, s54, v2\nbuffer_load_dword v4, v2, s[32:35], 0 offen")
        A.I(f"s_lshl_b32 s54, s2, 15\ns_mul_i32 s55, s3, {56*128}\ns_add_u32 s55, s55, s54\ns_add_u32 s55, s55, {WS_YP}")
        def voff():
            if o.lin2: A.I("v_lshlrev_b32 v3, 4, v1\nv_add_u32 v3, s55, v3")
            else: s.rowsplit_voff(3,8,55)
            A.I("v_add_u32 v6, 4096, v3")
        voff()
        if o.lin2: A.I("s_lshl_b32 s54, s3, 6\nv_add_u32 v5, s54, v7")
        else:
            A.I("v_lshrrev_b32 v5, 4, v1\nv_lshlrev_b32 v5, 4, v5\nv_and_b32 v8, 1, v1\nv_lshlrev_b32 v8, 3, v8\ns_lshl_b32 s54, s3, 6\nv_add3_u32 v5, v5, v8, s54")
        def ld(q):
            r=64+4*q
            return f"buffer_load_dwordx4 v[{r}:{r+3}], v{3 if q<4 else 6}, s[40:43], 0 offen offset:{1024*(q%4)} sc1"
        def sums(n, ldsoff):
            A.I("v_add_f32 v10, v64, v68\nv_add_f32 v11, v66, v70\nv_add_f32 v12, v72, v76\nv_add_f32 v13, v74, v78")
            A.I("v_add_f32 v14, v80, v84\nv_add_f32 v15, v82, v86")
            if n==8: A.I("v_add_f32 v16, v88, v92\nv_add_f32 v17, v90, v94")
            else: A.I("v_mov_b32 v16, v88\nv_mov_b32 v17, v90")
            A.I("v_add_f32 v10, v10, v12\nv_add_f32 v11, v11, v13\nv_add_f32 v14, v14, v16\nv_add_f32 v15, v15, v17\nv_add_f32 v10, v10, v14\nv_add_f32 v11, v11, v15")
            if o.lin2:
                s.row_allreduce("v_add_f32",[10,11],(8,)); s.cross_rows("v_add_f32",[10,11],[12,13])
                A.I(f"s_mov_b64 exec, 0xff\nds_write_b64 v5, v[10:11] offset:{ldsoff}\ns_mov_b64 exec, -1\ns_waitcnt lgkmcnt(0)")
            else:
                s.row_allreduce("v_add_f32",[10,11],(2,4,8))
                A.I(f"s_mov_b32 exec_lo, 0x00030003\ns_mov_b32 exec_hi, 0x00030003\nds_write_b64 v5, v[10:11] offset:{ldsoff}\ns_mov_b64 exec, -1\ns_waitcnt lgkmcnt(0)")
        def gather(ldsoff):
            for w in range(4): A.I(f"ds_read_b64 v[{12+2*w}:{13+2*w}], v7 offset:{ldsoff+64*w}")
            A.I("s_waitcnt lgkmcnt(0)")
            A.I("v_add_f32 v10, v12, v14\nv_add_f32 v11, v13, v15\nv_add_f32 v16, v16, v18\nv_add_f32 v17, v17, v19\nv_add_f32 v10, v10, v16\nv_add_f32 v11, v11, v17")
        ylate = o.ylate and o.dyn
        if ylate: A.I("s_barrier")
        s.poll("L_py", [ld(q) for q in range(7)], [65+2*i for i in range(14)], 9, sleep=(1 if ylate else 4))
        sums(7, L_Y)
        A.I(f"s_lshl_b32 s54, s2, 15\ns_lshl_b32 s55, s3, 13\ns_add_u32 s55, s55, s54\ns_add_u32 s55, s55, {WS_SP}")
        voff()
        A.I("v_lshlrev_b32 v24, 16, v4\nv_and_b32 v25, 0xffff0000, v4")
        if not o.st2: s.stamp(6)
        A.I("s_barrier")
        gather(L_Y)
        for r in range(2): s.bf16r(20+r,10+r)
        for r in range(2): A.I(f"v_mul_f32 v{22+r}, {hex(f2u(-1.4426950408889634))}, v{20+r}")
        for r in range(2): A.I(f"v_exp_f32 v{22+r}, v{22+r}")
        for r in range(2): A.I(f"v_add_f32 v{22+r}, 1.0, v{22+r}")
        for r in range(2): A.I(f"v_rcp_f32 v{22+r}, v{22+r}")
        for r in range(2): A.I(f"v_mul_f32 v{20+r}, v{20+r}, v{22+r}")
        for r in range(2): s.bf16r(20+r,20+r)
        if o.hint&256:
            A.I("s_cmp_lg_u32 s3, 0\ns_cbranch_scc1 L_fs_w")
            A.I(f"s_lshl_b32 s54, s2, 15\ns_add_u32 s54, s54, {WS_SP}")
            s.sprobe("L_sf", 54, [(32*g_+o.fsamp)*128+4 for g_ in range(8)], d=8, sleep=o.s2sleep)
            A.I(f"v_mov_b32 v8, 0\nv_mov_b32 v9, 1\nds_write_b32 v8, v9 offset:{L_P+12}\ns_branch L_fs_x")
            A.label("L_fs_w", flush=True)
            s.ldsgate("L_fs_g", L_P+12, sleep=1)
            A.label("L_fs_x", flush=True)
        if o.hint&64:
            A.I(f"s_lshl_b32 s54, s2, 15\ns_lshl_b32 s55, s3, 13\ns_add_u32 s54, s54, s55\ns_add_u32 s54, s54, {WS_SP}")
            n2=o.n2
            samp=[(i*64)//n2 + (64//n2)//2 for i in range(n2)]
            s.sprobe("L_ss", 54, [p_*128+4 for p_ in samp], d=8, sleep=o.s2sleep)
        if o.hint&8:
            s.hintprep()
            A.I(f"s_lshl_b32 s54, s2, 2\ns_add_u32 s54, s54, s3\ns_lshl_b32 s54, s54, 7\ns_add_u32 s54, s54, {WS_HS}")
            s.hintwait("L_hs", 54, 16, 8)
        if o.hint&512:
            qs=[int(c) for c in o.vps]
            s.poll("L_pa", [ld(q) for q in qs], [65+4*q for q in qs], 9, sleep=o.pssleep)
        s.poll("L_ps", [ld(q) for q in range(8)], [65+2*i for i in range(16)], 9, sleep=(o.ps2sleep if o.hint&512 else o.pssleep))
        sums(8, L_S)
        A.I("s_barrier")
        A.I("s_cmp_lg_u32 s3, 0\ns_cbranch_scc1 L_fin_done")
        gather(L_S)
        for r in range(2): s.bf16r(10+r,10+r)
        for r in range(2): A.I(f"v_mul_f32 v{10+r}, v{10+r}, v{20+r}")
        for r in range(2): s.bf16r(10+r,10+r)
        for r in range(2): A.I(f"v_add_f32 v{10+r}, v{10+r}, v{24+r}")
        A.I("v_cvt_pk_bf16_f32 v14, v10, v11")
        A.I("s_mov_b64 exec, 0xff")
        A.I("buffer_store_dword v14, v2, s[36:39], 0 offen")
        A.I("s_cmp_lg_u32 s2, 0\ns_cbranch_scc1 L_fin_x")
        A.I("s_mov_b64 exec, 1")
        A.I("v_mov_b32 v16, 0\nv_mov_b32 v17, s6\nbuffer_store_dword v17, v16, s[40:43], 0 offen")
        A.label("L_fin_x")
        A.I("s_mov_b64 exec, -1")
        A.label("L_fin_done")
        if not o.st2: s.stamp(7)

    def ldsgate(s, name, off, sleep=2):
        A=s.A
        A.I(f"s_mov_b32 s62, {s.o.timeout}\nv_mov_b32 v8, 0")
        A.label(name)
        A.I(f"ds_read_b32 v9, v8 offset:{off}\ns_waitcnt lgkmcnt(0)\nv_cmp_eq_u32 vcc, 0, v9")
        A.I(f"s_cbranch_vccz {name}_ok\ns_sleep {sleep}\ns_sub_u32 s62, s62, 1\ns_cmp_lg_u32 s62, 0\ns_cbranch_scc1 {name}")
        A.label(name+"_ok")
    def hintprep(s):
        s.A.I("s_and_b32 s68, s6, 0xff\ns_mul_i32 s68, s68, 0x01010101\ns_mov_b32 s69, s68")
    def hintwait(s, name, soff, ndw, d, sleep=0):
        A=s.A
        A.I(f"s_add_u32 s52, s30, s{soff}\ns_addc_u32 s53, s31, 0\ns_mov_b32 s62, {s.o.htimeout}")
        A.label(name, flush=True)
        A.I(f"s_load_dwordx{ndw} s[{d}:{d+ndw-1}], s[52:53], 0x0 glc\ns_waitcnt lgkmcnt(0)")
        for i in range(ndw//2):
            A.I(f"s_cmp_lg_u64 s[{d+2*i}:{d+2*i+1}], s[68:69]\ns_cbranch_scc1 {name}_r")
        A.I(f"s_branch {name}_ok")
        A.label(name+"_r", flush=False)
        if sleep: A.I(f"s_sleep {sleep}")
        A.I(f"s_sub_u32 s62, s62, 1\ns_cmp_lg_u32 s62, 0\ns_cbranch_scc1 {name}")
        A.label(name+"_ok", flush=True)
    def sprobe(s, name, soff, offs, d=72, sleep=1):
        A=s.A
        A.I(f"s_add_u32 s52, s30, s{soff}\ns_addc_u32 s53, s31, 0\ns_mov_b32 s62, {s.o.htimeout}")
        A.label(name, flush=True)
        for i,o_ in enumerate(offs): A.I(f"s_load_dword s{d+i}, s[52:53], {hex(o_)} glc")
        A.I("s_waitcnt lgkmcnt(0)")
        for i in range(len(offs)): A.I(f"s_cmp_lg_u32 s{d+i}, s6\ns_cbranch_scc1 {name}_r")
        A.I(f"s_branch {name}_ok")
        A.label(name+"_r", flush=False)
        if sleep: A.I(f"s_sleep {sleep}")
        A.I(f"s_sub_u32 s62, s62, 1\ns_cmp_lg_u32 s62, 0\ns_cbranch_scc1 {name}")
        A.label(name+"_ok", flush=True)
    def hintstore(s, vaddr, vtmp, srd, execlo):
        A=s.A
        A.I(f"v_mov_b32 v{vtmp}, s6\ns_mov_b32 exec_lo, {hex(execlo)}\ns_mov_b32 exec_hi, 0")
        A.I(f"buffer_store_byte v{vtmp}, v{vaddr}, s[{srd}:{srd+3}], 0 offen sc1\ns_mov_b64 exec, -1")
    def donegate(s, name, n=4, sleep=1):
        A=s.A
        A.I(f"s_mov_b32 s62, {s.o.timeout}\nv_mov_b32 v8, 0")
        A.label(name, flush=True)
        A.I(f"ds_read_b32 v9, v8 offset:{L_P+4}\ns_waitcnt lgkmcnt(0)\nv_cmp_gt_u32 vcc, {n}, v9\ns_cbranch_vccz {name}_ok\ns_sleep {sleep}\ns_sub_u32 s62, s62, 1\ns_cmp_lg_u32 s62, 0\ns_cbranch_scc1 {name}")
        A.label(name+"_ok", flush=True)
    def qpoll(s, name, quarters, gate=True):
        A=s.A
        if s.o.dbg&16: return
        if gate: s.ldsgate(name+"_g", L_F)
        nq=len(quarters); q0=quarters[0]
        A.I(f"s_lshl_b32 s55, s4, 14\ns_add_u32 s55, s55, {WS_QX+q0*1024}")
        if s.o.hint&16:
            for qi in range(nq):
                s.sprobe(f"{name}s{qi}", 55, [rp*4096+qi*1024+cb*512+4 for rp in range(4) for cb in range(2)], sleep=s.o.qsleep)
        elif s.o.hint&1:
            s.hintprep()
            A.I(f"s_lshl_b32 s54, s4, 7\ns_add_u32 s54, s54, {WS_HQ}")
            s.hintwait(name+"h", 54, 8, 72, sleep=1)
        elif s.o.q2:
            A.I("v_and_b32 v8, 3, v1\nv_lshlrev_b32 v8, 12, v8\nv_lshrrev_b32 v7, 2, v1\nv_lshlrev_b32 v7, 9, v7\nv_add3_u32 v8, v8, v7, s55")
            m=(1<<(8*nq))-1
            s.poll(name+"a", [f"s_mov_b64 exec, {hex(m)}", "buffer_load_dwordx4 v[64:67], v8, s[40:43], 0 offen sc1"], [65], 9, sleep=s.o.qsleep, lanes=m)
        A.I("v_lshlrev_b32 v8, 4, v1\nv_add_u32 v8, s55, v8")
        A.I("v_add_u32 v7, 8192, v8\ns_mov_b32 s58, 4096")
        loads=[]; tags=[]
        for qi in range(nq):
            r=64+16*qi
            loads+=[f"buffer_load_dwordx4 v[{r}:{r+3}], v8, s[40:43], 0 offen offset:{1024*qi} sc1", f"buffer_load_dwordx4 v[{r+4}:{r+7}], v8, s[40:43], s58 offen offset:{1024*qi} sc1",
                    f"buffer_load_dwordx4 v[{r+8}:{r+11}], v7, s[40:43], 0 offen offset:{1024*qi} sc1", f"buffer_load_dwordx4 v[{r+12}:{r+15}], v7, s[40:43], s58 offen offset:{1024*qi} sc1"]
            tags+=[r+1+2*i for i in range(8)]
        if not (s.o.dbg&2048): s.poll(name, loads, tags, 9, sleep=s.o.qsleep)
        else:
            for r in range(64,64+16*nq): A.I(f"v_mov_b32 v{r}, 0")
        A.I("v_lshlrev_b32 v9, 2, v1")
        for qi in range(nq):
            r=64+16*qi
            A.I(f"v_add_f32 v10, v{r}, v{r+4}\nv_add_f32 v11, v{r+2}, v{r+6}\nv_add_f32 v12, v{r+8}, v{r+12}\nv_add_f32 v13, v{r+10}, v{r+14}")
            A.I(f"v_add_f32 v10, v10, v12\nv_add_f32 v11, v11, v13\nv_cvt_pk_bf16_f32 v{14+qi}, v10, v11")
            A.I(f"ds_write_b32 v9, v{14+qi} offset:{L_Q+256*(q0+qi)}")
        A.I("s_waitcnt lgkmcnt(0)")
        A.I(f"v_mov_b32 v8, 0\nv_mov_b32 v9, 1")
        for qi in range(nq): A.I(f"ds_write_b32 v8, v9 offset:{L_G+4*(q0+qi)}")
    def h0(s):
        A=s.A; o=s.o
        wf=" nt" if o.wnt else ""
        A.label("L_h0")
        if o.hprio: A.I(f"s_setprio {o.hprio}")
        if o.dbg&1:
            A.I("s_barrier"); s.stamps_out(); A.I("s_endpgm"); return
        s.srd(32,8,896); s.srd(36,14,448*8192); s.srd(40,30,WS_SIZE)
        if o.dbg&32:
            A.I("s_barrier"); A.I("s_waitcnt lgkmcnt(0)"); s.tag_from_E(); s.qpoll("L_pq0",[0]); s.stamps_out(); A.I("s_endpgm"); return
        if not o.dbg&256: A.I("v_lshlrev_b32 v2, 4, v1\nbuffer_load_dwordx4 v[4:7], v2, s[32:35], 0 offen")
        if o.dyn:
            A.I(f"s_and_b32 s54, s2, {o.sh-1}\ns_cmp_lg_u32 s54, 0\ns_cbranch_scc1 L_h0_noinit")
            A.I(f"s_lshl_b32 s54, s2, 5\ns_add_u32 s54, s54, {WS_CT}\nv_mov_b32 v8, s54\nv_mov_b32 v9, 0\ns_mov_b64 exec, 1\nbuffer_store_dword v9, v8, s[40:43], 0 offen sc1\ns_mov_b64 exec, -1")
            A.label("L_h0_noinit")
        A.I("s_and_b32 s54, s5, 7\ns_lshr_b32 s59, s5, 3")
        A.I(f"s_lshl_b32 s55, s4, 10\ns_lshl_b32 s56, s54, 7\ns_add_u32 s55, s55, s56\ns_mul_i32 s56, s59, {112*8192}\ns_add_u32 s55, s55, s56")
        A.I("v_lshrrev_b32 v3, 3, v1\nv_lshlrev_b32 v3, 13, v3\nv_and_b32 v8, 7, v1\nv_lshlrev_b32 v8, 4, v8\nv_add3_u32 v3, v3, v8, s55")
        for k in range(14):
            A.I(f"s_mov_b32 s57, {k*65536}\nbuffer_load_dwordx4 v[{64+4*k}:{67+4*k}], v3, s[36:39], s57 offen{wf}")
        A.I("s_barrier")
        if o.dbg&128:
            A.I("s_waitcnt vmcnt(0)"); s.stamp(1); s.stamps_out(); A.I("s_endpgm"); return
        A.I("s_waitcnt vmcnt(14)")
        s.layernorm(L_X)
        s.tag_from_E()
        A.I(f"v_mov_b32 v8, 0\nv_mov_b32 v9, 1\nds_write_b32 v8, v9 offset:{L_F+4}")
        A.I(f"s_mul_i32 s56, s59, {112*4}\nv_lshrrev_b32 v9, 3, v1\nv_lshlrev_b32 v9, 2, v9\nv_add_u32 v9, s56, v9")
        for k in range(14): A.I(f"ds_read_b32 v{32+k}, v9 offset:{L_X+32*k}")
        for i in range(8): A.I(f"v_mov_b32 v{10+i}, 0")
        A.I(f"s_lshl_b32 s55, s4, 14\ns_lshl_b32 s56, s59, 12\ns_add_u32 s55, s55, s56\ns_lshl_b32 s56, s54, 9\ns_add_u32 s55, s55, s56\ns_add_u32 s55, s55, {WS_QX}")
        s.pub8_voff(2,8,55)
        A.I("s_waitcnt lgkmcnt(0)")
        for k in range(14): A.I(f"v_lshlrev_b32 v{46+k}, 16, v{32+k}")
        for k in range(14):
            A.I(f"s_waitcnt vmcnt({13-k})")
            for d in range(4):
                A.I(f"v_dot2c_f32_bf16 v{10+2*d}, v{64+4*k+d}, v{32+k}\nv_dot2c_f32_bf16 v{11+2*d}, v{64+4*k+d}, v{46+k}")
        s.stamp(1)
        s.reduce8(10)
        if not o.dbg&64: s.pub8(10,2,40)
        if o.hint&1:
            A.I(f"s_lshl_b32 s55, s4, 7\ns_add_u32 s55, s55, s5\ns_add_u32 s55, s55, {WS_HQ}\nv_mov_b32 v8, s55")
            s.hintstore(8,9,40,1)
        A.I(f"v_mov_b32 v8, 0\nv_mov_b32 v9, 1\nds_write_b32 v8, v9 offset:{L_F}")
        s.stamp(2)
        s.qpoll("L_pq0", [0], gate=False)
        s.stamp(3)
        s.stamps_out()
        A.I("s_endpgm")

    def h1(s):
        A=s.A; o=s.o
        wf=" nt" if o.wnt else ""
        A.label("L_h1")
        A.I("s_barrier")
        s.srd(40,30,WS_SIZE)
        A.I("s_waitcnt lgkmcnt(0)")
        s.tag_from_E()
        if o.dbg&2:
            A.I("s_endpgm"); return
        if o.ffnspread:
            A.I("s_mov_b32 s61, s2\ns_lshr_b32 s54, s2, 3\ns_and_b32 s55, s2, 7\ns_and_b32 s56, s54, 7")
            A.I("s_cmp_eq_u32 s55, s56\ns_cbranch_scc1 L_end")
            A.I("s_cmp_gt_u32 s55, s56\ns_cselect_b32 s56, 1, 0\ns_sub_u32 s55, s55, s56\ns_mul_i32 s54, s54, 7\ns_add_u32 s2, s54, s55")
        else:
            A.I("s_mov_b32 s61, s2\ns_cmp_ge_u32 s2, 224\ns_cbranch_scc1 L_end")
        s.ldsgate("L_xg", (L_F+4) if not o.ffnafterq else L_G+4, sleep=4)
        if o.ffnlate:
            s.ldsgate("L_fl", L_F+(12 if o.ffnlate==1 else 8), sleep=8)
        s.srd(36,20,448*3584); s.srd(44,22,448*3584); s.srd(48,24,1792*896)
        A.I("s_lshr_b32 s54, s2, 3\ns_and_b32 s59, s2, 7")
        A.I(f"s_lshl_b32 s55, s54, 7\ns_mul_i32 s56, s59, {56*3584}\ns_add_u32 s55, s55, s56")
        A.I("v_lshrrev_b32 v3, 3, v1\nv_mul_u32_u24 v3, 3584, v3\nv_and_b32 v8, 7, v1\nv_lshlrev_b32 v8, 4, v8\nv_add3_u32 v3, v3, v8, s55")
        for k in range(7):
            A.I(f"s_mov_b32 s57, {k*28672}")
            if o.hp1 and 2*k>=o.hp1: A.I(f"s_waitcnt vmcnt({o.hp1-1})")
            A.I(f"buffer_load_dwordx4 v[{64+4*k}:{67+4*k}], v3, s[36:39], s57 offen{wf}")
            if o.hp1 and 2*k+1>=o.hp1: A.I(f"s_waitcnt vmcnt({o.hp1-1})")
            A.I(f"buffer_load_dwordx4 v[{92+4*k}:{95+4*k}], v3, s[44:47], s57 offen{wf}")
        A.I("v_lshrrev_b32 v60, 4, v1\nv_lshlrev_b32 v60, 1, v60\ns_lshl_b32 s55, s2, 3\nv_add_u32 v60, s55, v60\nv_mul_u32_u24 v60, 896, v60\nv_and_b32 v9, 15, v1\nv_lshlrev_b32 v9, 4, v9\nv_add_u32 v60, v60, v9")
        ylate = o.ylate and o.dyn
        def wdloads(hp):
            for t in range(2):
                for cb in range(4):
                    r=120+16*t+4*cb
                    if hp: A.I(f"s_waitcnt vmcnt({hp-1})")
                    if cb==3: A.I("s_mov_b32 exec_lo, 0x00ff00ff\ns_mov_b32 exec_hi, 0x00ff00ff")
                    A.I(f"buffer_load_dwordx4 v[{r}:{r+3}], v60, s[48:51], 0 offen offset:{t*896+cb*256}{wf}")
                    if cb==3: A.I("s_mov_b64 exec, -1")
        wdearly = (not ylate) or o.wdearly
        if wdearly: wdloads(o.hp1)
        A.I(f"s_mul_i32 s56, s59, {56*4}\nv_lshrrev_b32 v9, 3, v1\nv_lshlrev_b32 v9, 2, v9\nv_add_u32 v9, s56, v9")
        for k in range(7): A.I(f"ds_read_b32 v{32+k}, v9 offset:{L_X+32*k}")
        for i in range(16): A.I(f"v_mov_b32 v{10+i}, 0")
        A.I(f"s_mul_i32 s55, s59, 14336\ns_lshl_b32 s56, s54, 9\ns_add_u32 s55, s55, s56\ns_add_u32 s55, s55, {WS_GX}")
        s.pub8_voff(2,8,55)
        A.I(f"v_add_u32 v3, {8*14336}, v2")
        A.I("s_waitcnt lgkmcnt(0)")
        if o.dbg&1024:
            A.I("s_waitcnt vmcnt(0)"); s.stamp(1); s.stamps_out(); A.I("s_endpgm"); return
        for k in range(7): A.I(f"v_lshlrev_b32 v{46+k}, 16, v{32+k}")
        A.I("s_waitcnt vmcnt(%d)"%(8 if wdearly else 0))
        for k in range(7):
            for d in range(4):
                A.I(f"v_dot2c_f32_bf16 v{10+2*d}, v{64+4*k+d}, v{32+k}\nv_dot2c_f32_bf16 v{11+2*d}, v{64+4*k+d}, v{46+k}")
                A.I(f"v_dot2c_f32_bf16 v{18+2*d}, v{92+4*k+d}, v{32+k}\nv_dot2c_f32_bf16 v{19+2*d}, v{92+4*k+d}, v{46+k}")
        s.reduce8(10); s.reduce8(18)
        s.pub8(10,2,40); s.pub8(18,3,40)
        if o.hint&2:
            A.I(f"s_lshl_b32 s55, s54, 7\ns_add_u32 s55, s55, s59\ns_add_u32 s55, s55, {WS_HG}\nv_mov_b32 v8, s55")
            s.hintstore(8,9,40,1)
        s.stamp(1)
        A.I(f"v_lshrrev_b32 v8, 3, v1\nv_bfe_u32 v9, v1, 2, 1\nv_lshlrev_b32 v9, 3, v9\nv_add_u32 v8, v8, v9\nv_mul_u32_u24 v8, 14336, v8")
        A.I(f"s_lshl_b32 s55, s2, 6\ns_add_u32 s55, s55, {WS_GX}\nv_and_b32 v9, 3, v1\nv_lshlrev_b32 v9, 4, v9\nv_add3_u32 v8, v8, v9, s55")
        s.make_masks(28,1,4,5)
        s.pub_voff(2,4,WS_YP)
        s.matvec_prep(56,160,"s6")
        if o.hint&32:
            A.I(f"s_lshl_b32 s55, s2, 6\ns_add_u32 s55, s55, {WS_GX+8*14336}")
            s.sprobe("L_sg", 55, [rp*14336+4 for rp in range(8)], sleep=o.gxsleep)
        elif o.hint&2:
            s.hintprep()
            A.I(f"s_lshr_b32 s55, s2, 3\ns_lshl_b32 s55, s55, 7\ns_add_u32 s55, s55, {WS_HG}")
            s.hintwait("L_hg", 55, 2, 72, sleep=4)
        s.poll("L_pg", ["buffer_load_dwordx4 v[64:67], v8, s[40:43], 0 offen sc1"], [65,67], 9, sleep=o.gxsleep)
        s.stamp(2)
        A.I("v_mov_b32 v10, v64\nv_mov_b32 v11, v66")
        s.row_allreduce("v_add_f32",[10,11],(8,))
        s.cross_rows("v_add_f32",[10,11],[12,13])
        for e in range(2): s.bf16r(10+e,10+e)
        for e in range(2): A.I(f"v_mov_b32_dpp v{14+e}, v{10+e} row_ror:4 row_mask:0xf bank_mask:0xf")
        k1=-2*0.7978845608028654*1.4426950408889634
        A.I(f"v_mov_b32 v26, {hex(f2u(0.044715))}\nv_mov_b32 v27, {hex(f2u(k1))}")
        for e in range(2): A.I(f"v_mul_f32 v{18+e}, v{10+e}, v{10+e}")
        for e in range(2): A.I(f"v_fma_f32 v{18+e}, v{18+e}, v26, 1.0")
        for e in range(2): A.I(f"v_mul_f32 v{18+e}, v{18+e}, v{10+e}")
        for e in range(2): A.I(f"v_mul_f32 v{18+e}, v27, v{18+e}")
        for e in range(2): A.I(f"v_exp_f32 v{18+e}, v{18+e}")
        for e in range(2): A.I(f"v_add_f32 v{18+e}, 1.0, v{18+e}")
        for e in range(2): A.I(f"v_rcp_f32 v{18+e}, v{18+e}")
        for e in range(2): A.I(f"v_mul_f32 v{18+e}, v{18+e}, v{10+e}")
        for e in range(2): s.bf16r(18+e,18+e)
        for e in range(2): A.I(f"v_mul_f32 v{18+e}, v{18+e}, v{14+e}")
        for e in range(2): A.I(f"v_cvt_pk_bf16_f32 v{18+e}, v{18+e}, v{18+e}")
        for t in range(2): s.bcast_rows(22+t,18+t,lambda kg:kg)
        if ylate and not wdearly:
            if o.ylate==2: s.donegate("L_ydr", n=o.won)
            else: s.ldsgate("L_ydr", L_F+12, sleep=o.gsleep)
            wdloads(0)
            if not o.b2lds: A.I("s_barrier")
        A.I("s_waitcnt vmcnt(0)")
        if o.dbg&512:
            s.stamp(3); s.stamps_out(); A.I("s_endpgm"); return
        s.matvec_publish(2,[22,23],lambda t,cb:120+16*t+4*cb,28,40,32,2,40,56,160)
        A.I("s_mov_b32 s2, s61")
        s.stamp(3)
        s.stamps_out()
        A.I("s_endpgm")

    def h2(s):
        A=s.A; o=s.o
        wf=" nt" if o.wnt else ""
        A.label("L_h2")
        A.I("s_barrier")
        s.srd(36,16,4096*896); s.srd(40,30,WS_SIZE)
        A.I("s_waitcnt lgkmcnt(0)")
        s.tag_from_E()
        if not o.dbg&1: s.qpoll("L_pq2", [1,2])
        if o.dbg&4:
            A.I("s_endpgm"); return
        A.I("s_lshl_b32 s54, s2, 4")
        A.I("v_lshrrev_b32 v60, 4, v1\nv_lshlrev_b32 v60, 2, v60\nv_add_u32 v60, s54, v60\nv_mul_u32_u24 v60, 896, v60\nv_and_b32 v9, 15, v1\nv_lshlrev_b32 v9, 4, v9\nv_add_u32 v60, v60, v9")
        s.make_masks(28,1,8,9)
        A.I(f"s_lshl_b32 s54, s2, 12\ns_add_u32 s54, s54, {WS_H1}")
        if o.lin1: A.I("v_lshlrev_b32 v3, 4, v1\nv_add_u32 v3, s54, v3")
        else: s.rowsplit_voff(3,8,54)
        s.pub_voff(2,8,WS_SP)
        s.matvec_prep(56,160,"s6")
        s.hintprep()
        if o.hint&8:
            A.I(f"s_lshr_b32 s54, s2, 6\ns_lshl_b32 s54, s54, 7\ns_and_b32 s55, s2, 63\ns_add_u32 s54, s54, s55\ns_add_u32 s54, s54, {WS_HS}\nv_lshlrev_b32 v61, 9, v1\nv_add_u32 v61, s54, v61")
        if o.lin1:
            A.I("v_lshrrev_b32 v58, 4, v1\nv_mul_u32_u24 v58, 72, v58\nv_add_u32 v59, 4, v58")
        if o.wolate==3 and o.dyn:
            if o.pregate: s.ldsgate("L_wop", L_F+12, sleep=o.pregate)
            s.donegate("L_woe", n=o.won)
        elif o.wolate and o.dyn:
            s.ldsgate("L_woe", L_F+(8 if o.wolate==1 else 12), sleep=o.gsleep)
        for t in range(4):
            for cb in range(4):
                r=64+16*t+4*cb
                if o.hp2 and 4*t+cb>=o.hp2: A.I(f"s_waitcnt vmcnt({o.hp2-1})")
                if cb==3: A.I("s_mov_b32 exec_lo, 0x00ff00ff\ns_mov_b32 exec_hi, 0x00ff00ff")
                A.I(f"buffer_load_dwordx4 v[{r}:{r+3}], v60, s[36:39], 0 offen offset:{t*896+cb*256}{wf}")
                if cb==3: A.I("s_mov_b64 exec, -1")
        if not o.b2lds: A.I("s_barrier")
        else:
            A.I(f"s_mov_b32 s62, {o.timeout}\nv_mov_b32 v8, 0")
            A.label("L_h2w", flush=True)
            A.I(f"ds_read_b32 v9, v8 offset:{L_P+4}\ns_waitcnt lgkmcnt(0)\nv_cmp_gt_u32 vcc, 4, v9\ns_cbranch_vccz L_h2w_ok\ns_sleep 1\ns_sub_u32 s62, s62, 1\ns_cmp_lg_u32 s62, 0\ns_cbranch_scc1 L_h2w")
            A.label("L_h2w_ok", flush=True)
        s.stamp(1)
        if o.stamps and o.wostamp:
            A.I("s_waitcnt vmcnt(0)"); s.stamp(4)
        if o.hint&128:
            A.I(f"s_lshl_b32 s54, s2, 12\ns_add_u32 s54, s54, {WS_H1}")
            n1=o.n1
            samp=[(i*32)//n1 + (32//n1)//2 for i in range(n1)]
            s.sprobe("L_sh", 54, [p_*128+12 for p_ in samp], d=8, sleep=o.s1sleep)
        if o.hint&4:
            A.I(f"s_lshl_b32 s54, s2, 7\ns_add_u32 s54, s54, {WS_HH}")
            s.hintwait("L_hh", 54, 8, 72)
        loadso=[f"buffer_load_dwordx4 v[{128+4*q}:{131+4*q}], v3, s[40:43], 0 offen offset:{1024*q} sc1" for q in range(4)]
        s.poll("L_p1", loadso, [131,135,139,143], 9, sleep=o.h1sleep)
        s.stamp(2)
        for q in range(4): A.I(f"v_mov_b32_dpp v{144+q}, v{130+4*q} quad_perm:[0,0,2,2] row_mask:0xf bank_mask:0xf")
        A.I("v_max3_f32 v10, v144, v145, v146\nv_max_f32 v10, v10, v147")
        if o.lin1:
            for q in range(4): A.I(f"v_mov_b32_dpp v{148+q}, v{130+4*q} quad_perm:[1,1,3,3] row_mask:0xf bank_mask:0xf")
            s.row_allreduce("v_max_f32",[10],(8,)); s.cross_rows("v_max_f32",[10],[11])
        else:
            for i,st_ in enumerate((2,4,8)):
                A.I(f"v_mov_b32_dpp v{148+i}, v{130+4*i} quad_perm:[1,1,3,3] row_mask:0xf bank_mask:0xf")
                if i==0: A.I(f"v_mov_b32_dpp v151, v142 quad_perm:[1,1,3,3] row_mask:0xf bank_mask:0xf")
                A.I(f"v_max_f32_dpp v10, v10, v10 row_ror:{st_} row_mask:0xf bank_mask:0xf")
        for q in range(4): A.I(f"v_sub_f32 v{12+q}, v{144+q}, v10")
        for q in range(4): A.I(f"v_exp_f32 v{12+q}, v{12+q}")
        A.I("v_mul_f32 v16, v12, v148\nv_mul_f32 v17, v12, v128\nv_mul_f32 v18, v12, v129")
        for q in range(1,4): A.I(f"v_fmac_f32 v16, v{12+q}, v{148+q}\nv_fmac_f32 v17, v{12+q}, v{128+4*q}\nv_fmac_f32 v18, v{12+q}, v{129+4*q}")
        if o.lin1:
            s.row_allreduce("v_add_f32",[16,17,18],(8,)); s.cross_rows("v_add_f32",[16,17,18],[19,20,21])
        else:
            s.row_allreduce("v_add_f32",[16,17,18],(2,4,8))
        A.I("v_rcp_f32 v16, v16")
        A.I("v_mul_f32 v17, v17, v16\nv_mul_f32 v18, v18, v16")
        A.I("v_cvt_pk_bf16_f32 v17, v17, v17\nv_cvt_pk_bf16_f32 v18, v18, v18")
        if o.lin1:
            A.I("ds_bpermute_b32 v22, v58, v17\nds_bpermute_b32 v23, v58, v18\nds_bpermute_b32 v24, v59, v17\nds_bpermute_b32 v25, v59, v18\ns_waitcnt lgkmcnt(0)")
        else:
            A.I("v_mov_b32_dpp v22, v17 quad_perm:[0,0,2,2] row_mask:0xf bank_mask:0xf\nv_mov_b32_dpp v23, v18 quad_perm:[0,0,2,2] row_mask:0xf bank_mask:0xf")
            A.I("v_mov_b32_dpp v24, v17 quad_perm:[1,1,3,3] row_mask:0xf bank_mask:0xf\nv_mov_b32_dpp v25, v18 quad_perm:[1,1,3,3] row_mask:0xf bank_mask:0xf")
        s.matvec_publish(4,[22,23,24,25],lambda t,cb:64+16*t+4*cb,28,40,32,2,40,56,160)
        if o.hint&8: s.hintstore(61,62,40,0x0fffffff)
        s.stamp(3)
        A.I("s_barrier")
        s.stamps_out()
        A.I("s_endpgm")

    def h3(s):
        A=s.A; o=s.o
        A.label("L_h3")
        s.srd(40,30,WS_SIZE)
        A.I("s_waitcnt lgkmcnt(0)")
        s.tag_from_E()
        if not o.dbg&1: s.qpoll("L_pq3", [3])
        if o.dyn:
            S=32-o.dyn; NP=o.sh*o.dyn; LSH=o.sh.bit_length()-1; QCAP=120
            A.I("s_mov_b64 exec, 1")
            A.I(f"s_andn2_b32 s54, s2, {o.sh-1}\ns_lshl_b32 s54, s54, 5\ns_add_u32 s54, s54, {WS_CT}\nv_mov_b32 v8, s54\nv_mov_b32 v0, 0")
            A.I(f"s_andn2_b32 s48, s5, {o.sh-1}")
            A.I(f"s_mov_b32 s46, 0\ns_mov_b32 s47, {S-o.lead}")
            def waitprog(nm):
                A.I(f"s_mov_b32 s62, {o.timeout}")
                if o.adlead and o.satom:
                    A.I(f"s_cmp_gt_u32 s64, {o.sh+o.sh*o.adlead//16}\ns_cselect_b32 s67, 1, 0\ns_add_u32 s67, s67, s47")
                else:
                    A.I("s_mov_b32 s67, s47")
                A.label(nm, flush=False)
                A.I(f"ds_read_b32 v9, v0 offset:{L_P}\ns_waitcnt lgkmcnt(0)\nv_readfirstlane_b32 s54, v9")
                A.I(f"s_cmp_ge_u32 s54, s67\ns_cbranch_scc1 {nm}_ok\ns_sub_u32 s62, s62, 1\ns_cmp_eq_u32 s62, 0\ns_cbranch_scc1 L_dsp_end")
                A.I(f"s_sleep {o.wpsleep}\ns_branch {nm}")
                A.label(nm+"_ok", flush=False)
            cnt=[0]
            def grab(r):
                cnt[0]+=1; n=cnt[0]
                A.I(f"s_cmp_ge_u32 s46, {QCAP}\ns_cbranch_scc1 L_cap{n}")
                A.I(f"v_mov_b32 v{r}, 1\nbuffer_atomic_add v{r}, v8, s[40:43], 0 offen sc0\ns_branch L_capx{n}")
                A.label(f"L_cap{n}", flush=True)
                A.I(f"s_waitcnt vmcnt(0)\nv_mov_b32 v{r}, {NP}")
                A.label(f"L_capx{n}", flush=True)
                A.I("s_add_u32 s46, s46, 1\ns_add_u32 s47, s47, 1")
            def retire(r, n):
                A.I(f"s_waitcnt vmcnt({n})\nv_readfirstlane_b32 s54, v{r}")
                A.I(f"s_cmp_ge_u32 s54, {NP}\ns_cbranch_scc1 L_dsp_end")
                A.I(f"s_and_b32 s55, s54, {o.sh-1}\ns_add_u32 s55, s55, s48\ns_lshl_b32 s55, s55, 18\ns_lshr_b32 s54, s54, {LSH}\ns_add_u32 s54, s54, {S}\ns_lshl_b32 s54, s54, 13\ns_add_u32 s55, s55, s54")
                A.I(f"s_lshl_b32 s54, s49, 2\nv_mov_b32 v9, s54\nv_mov_b32 v13, s55\nds_write_b32 v9, v13 offset:{L_QU}\ns_add_u32 s49, s49, 1")
            A.I("s_mov_b32 s49, 0")
            if o.satom:
                A.I(f"s_andn2_b32 s54, s2, {o.sh-1}\ns_lshl_b32 s54, s54, 5\ns_add_u32 s54, s54, {WS_CT}\ns_add_u32 s52, s30, s54\ns_addc_u32 s53, s31, 0")
                A.I(f"s_mov_b32 s63, 0\ns_mov_b32 s64, {o.sh}\ns_mov_b32 s65, {1 if o.soft else 0}")
                A.label("L_dsp", flush=True)
                def post(tmp="s54"):
                    A.I(f"s_and_b32 s55, s54, {o.sh-1}\ns_add_u32 s55, s55, s48\ns_lshl_b32 s55, s55, 18\ns_lshr_b32 s54, s54, {LSH}\ns_add_u32 s54, s54, {S}\ns_lshl_b32 s54, s54, 13\ns_add_u32 s55, s55, s54")
                    A.I(f"s_lshl_b32 s54, s49, 2\nv_mov_b32 v9, s54\nv_mov_b32 v13, s55\nds_write_b32 v9, v13 offset:{L_QU}\ns_add_u32 s49, s49, 1\ns_add_u32 s47, s47, 1")
                if o.soft:
                    A.I("s_cmp_lt_u32 s49, 2\ns_cbranch_scc1 L_dsp_go")
                    A.I(f"s_mul_i32 s54, s64, {o.soft_a}\ns_sub_u32 s54, s54, {o.soft_b*o.sh//4}\ns_sub_u32 s55, {NP}, s63\ns_cmp_lt_i32 s55, s54\ns_cbranch_scc0 L_dsp_go")
                    A.I(f"s_mov_b32 s66, 0\ns_mov_b32 s65, {o.timeout}\nv_mov_b32 v13, 0\nds_write_b32 v0, v13 offset:{L_P+8}")
                    A.label("L_soft", flush=False)
                    if o.softflag:
                        A.I(f"ds_read_b32 v9, v0 offset:{L_P}\ns_waitcnt lgkmcnt(0)\nv_readfirstlane_b32 s54, v9\ns_add_u32 s55, s47, {o.lead-1}\ns_cmp_lt_u32 s54, s55\ns_cbranch_scc1 L_soft_nf")
                        A.I(f"v_mov_b32 v13, 1\nds_write_b32 v0, v13 offset:{L_F+12}")
                        A.label("L_soft_nf", flush=False)
                    A.I("s_mov_b32 s54, 0\ns_atomic_add s54, s[52:53], 0x0 glc")
                    A.I(f"ds_read_b32 v9, v0 offset:{L_P+8}\ns_waitcnt lgkmcnt(0)\nv_readfirstlane_b32 s55, v9")
                    A.I(f"s_cmp_ge_u32 s54, {NP}\ns_cbranch_scc1 L_dsp_end")
                    A.I(f"s_add_u32 s66, s66, s55\ns_cmp_ge_u32 s66, {o.soft_n}\ns_cbranch_scc1 L_soft_grab")
                    A.I("s_sub_u32 s65, s65, 1\ns_cmp_eq_u32 s65, 0\ns_cbranch_scc1 L_soft_grab\ns_sleep 1\ns_branch L_soft")
                    A.label("L_soft_grab", flush=False)
                    A.I("s_mov_b32 s54, 1\ns_atomic_add s54, s[52:53], 0x0 glc\ns_waitcnt lgkmcnt(0)")
                    A.I(f"s_cmp_ge_u32 s54, {NP}\ns_cbranch_scc1 L_dsp_end")
                    post()
                    A.I(f"s_sleep 3\nv_mov_b32 v13, 0\nds_write_b32 v0, v13 offset:{L_P+8}\ns_mov_b32 s66, 0")
                    A.I(f"s_cmp_lt_u32 s49, {QCAP}\ns_cbranch_scc1 L_soft\ns_branch L_dsp_end")
                    A.label("L_dsp_go", flush=False)
                waitprog("L_wp")
                A.I("s_mov_b32 s54, 1\ns_atomic_add s54, s[52:53], 0x0 glc\ns_waitcnt lgkmcnt(0)")
                A.I(f"s_cmp_ge_u32 s54, {NP}\ns_cbranch_scc1 L_dsp_end")
                if o.ffnlate==2 and o.ffnx:
                    A.I(f"s_cmp_lt_u32 s54, {NP-o.ffnx*o.sh//2}\ns_cbranch_scc1 L_nofl\nv_mov_b32 v13, 1\nds_write_b32 v0, v13 offset:{L_F+8}")
                    A.label("L_nofl", flush=False)
                if o.soft or o.adlead:
                    A.I("s_sub_u32 s55, s54, s63\ns_add_u32 s55, s55, s64\ns_lshr_b32 s55, s55, 1\ns_cmp_eq_u32 s49, 0\ns_cselect_b32 s64, s64, s55\ns_mov_b32 s63, s54")
                A.I(f"s_and_b32 s55, s54, {o.sh-1}\ns_add_u32 s55, s55, s48\ns_lshl_b32 s55, s55, 18\ns_lshr_b32 s54, s54, {LSH}\ns_add_u32 s54, s54, {S}\ns_lshl_b32 s54, s54, 13\ns_add_u32 s55, s55, s54")
                A.I(f"s_lshl_b32 s54, s49, 2\nv_mov_b32 v9, s54\nv_mov_b32 v13, s55\nds_write_b32 v9, v13 offset:{L_QU}\ns_add_u32 s49, s49, 1\ns_add_u32 s47, s47, 1")
                A.I(f"s_cmp_lt_u32 s49, {QCAP}\ns_cbranch_scc1 L_dsp")
            else:
                waitprog("L_w0"); grab(10)
                waitprog("L_w1"); grab(11)
                A.label("L_dsp", flush=True)
                for i,(g_,r_) in enumerate(((12,10),(10,11),(11,12))):
                    waitprog(f"L_wp{i}"); grab(g_); retire(r_,2)
                A.I("s_branch L_dsp")
            A.label("L_dsp_end", flush=True)
            A.I(f"s_lshl_b32 s54, s49, 2\nv_mov_b32 v9, s54\nv_mov_b32 v13, {hex(Q_END)}\nds_write_b32 v9, v13 offset:{L_QU}")
            A.I(f"v_mov_b32 v13, 1\nds_write_b32 v0, v13 offset:{L_F+8}\ns_waitcnt lgkmcnt(0) vmcnt(0)")
            if o.stamps:
                s.stamp(2)
                A.I("s_waitcnt lgkmcnt(0)\ns_mov_b32 s82, s49\ns_mov_b32 s83, 0\ns_mov_b64 exec, -1")
                s.stamps_out()
        A.I("s_endpgm")

    def build(s):
        A=s.A; o=s.o
        A.raw(HDR.rstrip())
        A.raw(f"; @launch grid=(256,1,1) block=(512,1,1) lds={LDS}")
        A.raw(DESC.rstrip())
        A.raw('.amdgcn_target "amdgcn-amd-amdhsa--gfx950"')
        A.raw(".text"); A.raw(f".globl {NAME}_kernel"); A.raw(".p2align 8"); A.raw(f".type {NAME}_kernel,@function"); A.raw(f"{NAME}_kernel:")
        A.I("s_cmp_ge_u32 s2, 256\ns_cbranch_scc1 L_end")
        s.zero_stamps()
        s.stamp(0)
        A.I("s_load_dwordx8 s[8:15], s[0:1], 0\ns_load_dwordx8 s[16:23], s[0:1], 32\ns_load_dwordx8 s[24:31], s[0:1], 64")
        A.I("v_lshrrev_b32 v2, 6, v0\nv_and_b32 v1, 63, v0\nv_readfirstlane_b32 s3, v2")
        if o.gmap==0: A.I("s_lshr_b32 s4, s2, 5\ns_and_b32 s5, s2, 31")
        else:
            A.I("s_bfe_u32 s4, s2, 0x30003\ns_and_b32 s5, s2, 7\ns_lshr_b32 s7, s2, 6\ns_lshl_b32 s7, s7, 3\ns_add_u32 s5, s5, s7\ns_lshl_b32 s2, s4, 5\ns_add_u32 s2, s2, s5")
        pass
        A.I("s_cmp_lg_u32 s3, 7\ns_cbranch_scc1 L_b0")
        A.I(f"v_lshlrev_b32 v8, 2, v1\nv_mov_b32 v9, {hex(Q_EMPTY)}\nv_mov_b32 v10, 0")
        A.I(f"s_mov_b64 exec, 0xff\nds_write_b32 v8, v10 offset:{L_F}\ns_mov_b64 exec, 15\nds_write_b32 v8, v10 offset:{L_P}\ns_mov_b64 exec, -1")
        if o.dyn: A.I(f"ds_write_b32 v8, v9 offset:{L_QU}\nds_write_b32 v8, v9 offset:{L_QU+256}")
        A.I("s_waitcnt lgkmcnt(0)\ns_barrier\ns_load_dword s6, s[30:31], 0\ns_branch L_h3")
        A.label("L_b0", flush=False)
        A.I("s_cmp_ge_u32 s3, 4\ns_cbranch_scc1 L_helpers")
        s.stream()
        A.hist=[]
        A.label("L_helpers", flush=False)
        A.I("s_waitcnt lgkmcnt(0)")
        A.I("s_load_dword s6, s[30:31], 0")
        A.I("s_cmp_eq_u32 s3, 5\ns_cbranch_scc1 L_h1\ns_cmp_eq_u32 s3, 6\ns_cbranch_scc1 L_h2")
        s.h0(); A.hist=[]
        s.h1(); A.hist=[]
        s.h2(); A.hist=[]
        s.h3(); A.hist=[]
        A.label("L_end", flush=False)
        A.I("s_endpgm")
        A.raw('.section .rodata,"a"'); A.raw(".p2align 6"); A.raw(f".amdhsa_kernel {NAME}_kernel")
        A.raw("  .amdhsa_next_free_vgpr 256\n  .amdhsa_next_free_sgpr 102\n  .amdhsa_accum_offset 256\n  .amdhsa_group_segment_fixed_size 0\n  .amdhsa_kernarg_size 96\n  .amdhsa_user_sgpr_count 2\n  .amdhsa_user_sgpr_kernarg_segment_ptr 1\n  .amdhsa_system_sgpr_workgroup_id_x 1\n  .amdhsa_float_denorm_mode_32 3\n.end_amdhsa_kernel")
        return A.text()

if __name__=="__main__":
    ap=argparse.ArgumentParser()
    ap.add_argument("-o",dest="out",default="k.s")
    ap.add_argument("--p",type=int,default=13)
    ap.add_argument("--ns",type=int,default=13)
    ap.add_argument("--d",type=int,default=8)
    ap.add_argument("--rot",type=int,default=0)
    ap.add_argument("--nt",type=int,default=1)
    ap.add_argument("--wnt",type=int,default=1)
    ap.add_argument("--thr",type=float,default=8.0)
    ap.add_argument("--timeout",type=int,default=200000)
    ap.add_argument("--stamps",type=int,default=0)
    ap.add_argument("--dbg",type=int,default=0)
    ap.add_argument("--qsleep",type=int,default=2)
    ap.add_argument("--q2",type=int,default=1)
    ap.add_argument("--dyn",type=int,default=8)
    ap.add_argument("--lin1",type=int,default=0)
    ap.add_argument("--lin2",type=int,default=1)
    ap.add_argument("--hp1",type=int,default=2)
    ap.add_argument("--hp2",type=int,default=0)
    ap.add_argument("--st2",type=int,default=0)
    ap.add_argument("--wodelay",type=int,default=0)
    ap.add_argument("--wolate",type=int,default=3)
    ap.add_argument("--lead",type=int,default=2)
    ap.add_argument("--sh",type=int,default=32)
    ap.add_argument("--satom",type=int,default=1)
    ap.add_argument("--gsleep",type=int,default=3)
    ap.add_argument("--b2lds",type=int,default=1)
    ap.add_argument("--gxsleep",type=int,default=16)
    ap.add_argument("--gmap",type=int,default=0)
    ap.add_argument("--ffnafterq",type=int,default=0)
    ap.add_argument("--emptyflag",type=int,default=0)
    ap.add_argument("--softflag",type=int,default=1)
    ap.add_argument("--won",type=int,default=1)
    ap.add_argument("--n1",type=int,default=3)
    ap.add_argument("--ffnlate",type=int,default=0)
    ap.add_argument("--ffnx",type=int,default=0)
    ap.add_argument("--adlead",type=int,default=0)
    ap.add_argument("--wdearly",type=int,default=0)
    ap.add_argument("--vps",type=str,default="37")
    ap.add_argument("--ps2sleep",type=int,default=1)
    ap.add_argument("--pregate",type=int,default=8)
    ap.add_argument("--wpsleep",type=int,default=2)
    ap.add_argument("--fsamp",type=int,default=16)
    ap.add_argument("--n2",type=int,default=8)
    ap.add_argument("--s1sleep",type=int,default=0)
    ap.add_argument("--s2sleep",type=int,default=0)
    ap.add_argument("--hint",type=int,default=176)
    ap.add_argument("--htimeout",type=int,default=20000)
    ap.add_argument("--ilv",type=int,default=1)
    ap.add_argument("--pssleep",type=int,default=6)
    ap.add_argument("--prio",type=int,default=0)
    ap.add_argument("--hprio",type=int,default=0)
    ap.add_argument("--soft",type=int,default=0)
    ap.add_argument("--soft_a",type=int,default=6)
    ap.add_argument("--soft_b",type=int,default=20)
    ap.add_argument("--soft_n",type=int,default=2)
    ap.add_argument("--wostamp",type=int,default=0)
    ap.add_argument("--ylate",type=int,default=1)
    ap.add_argument("--ffnspread",type=int,default=1)
    ap.add_argument("--d0",type=int,default=8)
    ap.add_argument("--dp",type=int,default=0)
    ap.add_argument("--setup_at",type=int,default=16)
    ap.add_argument("--h1two",type=int,default=0)
    ap.add_argument("--h1sleep",type=int,default=1)
    o=ap.parse_args()
    open(o.out,"w").write(G(o).build())
```
